```python
import torch

def _softmax(x, axis=-1):
    return torch.softmax(x, dim=axis)

def _gelu(x):
    return torch.nn.functional.gelu(x, approximate='tanh')

def _silu(x):
    return torch.nn.functional.silu(x)

def _sigmoid(x):
    return torch.sigmoid(x)

def _layernorm(x, axis=-1, eps=1e-05):
    m = x.mean(dim=axis, keepdim=True)
    v = x.var(dim=axis, keepdim=True, unbiased=False)
    return (x - m) / torch.sqrt(v + eps)

def _scatter_add(tgt, idx, src, axis=0):
    return tgt.clone().index_add_(axis, idx, src)

def _segment_sum(src, seg, n):
    out = torch.zeros((n,) + src.shape[1:], dtype=src.dtype)
    return out.index_add_(0, seg, src)

def _pad(x, pw):
    flat = tuple((v for pair in reversed(pw) for v in pair))
    return torch.nn.functional.pad(x, flat)
kernel_name = 'interleave_layers__memory_aug_recurrent_mem_tr__sliding_local_dilated__prompt'

def setup_inputs():

    _w = lambda a: (lambda t: t.to(torch.bfloat16) if t.is_floating_point() else t)(torch.as_tensor(a))

    def _A_setup():
        B, S, Dm = (1, 2048, 512)
        H, Dh = (32, 128)
        M, seg = (8, 32)
        seg = min(seg, S)
        S = S // seg * seg
        return {'x': _w((lambda *s: torch.randn(*s, dtype=torch.bfloat16) * 0.05)(B, S, Dm)), 'mem0': _w((lambda *s: torch.randn(*s, dtype=torch.bfloat16) * 0.8)(B, M, Dm)), 'Wq': _w((lambda *s: torch.randn(*s, dtype=torch.bfloat16) * 0.8)(Dm, H, Dh) * Dm ** (-0.5)), 'Wk': _w((lambda *s: torch.randn(*s, dtype=torch.bfloat16) * 0.8)(Dm, H, Dh) * Dm ** (-0.5)), 'Wv': _w((lambda *s: torch.randn(*s, dtype=torch.bfloat16) * 0.8)(Dm, H, Dh) * Dm ** (-0.5)), 'Wo': _w((lambda *s: torch.randn(*s, dtype=torch.bfloat16) * 0.8)(H, Dh, Dm) * (H * Dh) ** (-0.5)), 'seg_len': seg}
    _A_in = _A_setup()

    def _B_setup():
        B, S, D = (1, 2048, 512)
        return {'x': _w((lambda *s: torch.randn(*s, dtype=torch.bfloat16) * 0.05)(B, S, D)), 'wqkv': _w((lambda *s: torch.randn(*s, dtype=torch.bfloat16) * 0.05)(D, 3 * D)), 'wo': _w((lambda *s: torch.randn(*s, dtype=torch.bfloat16) * 0.05)(D, D))}
    _B_in = _B_setup()
    return {'A_x': _A_in['x'], 'A_mem0': _A_in['mem0'], 'A_Wq': _A_in['Wq'], 'A_Wk': _A_in['Wk'], 'A_Wv': _A_in['Wv'], 'A_Wo': _A_in['Wo'], 'A_seg_len': _A_in['seg_len'], 'B_x': _B_in['x'], 'B_wqkv': _B_in['wqkv'], 'B_wo': _B_in['wo']}

def reference(A_x, A_mem0, A_Wq, A_Wk, A_Wv, A_Wo, A_seg_len, B_x, B_wqkv, B_wo):

    def _A_ref(x, mem0, Wq, Wk, Wv, Wo, seg_len):
        B, S, Dm = x.shape
        H, Dh = (Wq.shape[1], Wq.shape[2])
        M = mem0.shape[1]
        scale = Dh ** (-0.5)
        n_seg = S // seg_len
        L = M + seg_len
        idx = torch.arange(L)
        mask = (idx[:, None] < M) | (idx[:, None] >= idx[None, :])
        mem = mem0
        outs = []
        for s in range(n_seg):
            xs = x[:, s * seg_len:(s + 1) * seg_len, :].clone()
            h = torch.concatenate([mem, xs], axis=1)
            q = torch.einsum('btd,dhe->bhte', h, Wq)
            k = torch.einsum('btd,dhe->bhte', h, Wk)
            v = torch.einsum('btd,dhe->bhte', h, Wv)
            scores = torch.einsum('bhqe,bhke->bhqk', q, k) * scale
            scores = torch.where(mask[None, None], scores, -1000000000.0)
            p = _softmax(scores, axis=-1)
            o = torch.einsum('bhqk,bhke->bhqe', p, v)
            o = torch.einsum('bhte,hed->btd', o, Wo)
            mem = o[:, :M, :].clone()
            outs.append(o[:, M:, :])
        return torch.concatenate(outs, axis=1)

    def _B_ref(x, wqkv, wo):
        B, S, D = x.shape
        H = 32
        Dh = D // H
        W, dil = (8, 2)
        qkv = (lambda x, *d: x.permute(*d))((x @ wqkv).reshape(B, S, 3, H, Dh), 2, 0, 3, 1, 4)
        q, k, v = (qkv[0], qkv[1], qkv[2])
        scale = Dh ** (-0.5)
        pos = torch.arange(S)
        off = torch.arange(W) * dil
        idx = pos[:, None] - off[None, :]
        mask = idx >= 0
        idx_c = torch.where(mask, idx, 0).reshape(-1)
        kg = k[:, :, idx_c, :].reshape(B, H, S, W, Dh)
        vg = v[:, :, idx_c, :].reshape(B, H, S, W, Dh)
        logits = torch.einsum('bhsd,bhswd->bhsw', q, kg) * scale
        logits = torch.where(mask[None, None, :, :], logits, -1000000000.0)
        attn = _softmax(logits, axis=-1)
        o = torch.einsum('bhsw,bhswd->bhsd', attn, vg)
        return (lambda x, *d: x.permute(*d))(o, 0, 2, 1, 3).reshape(B, S, D) @ wo
    x = A_x
    x = x + _A_ref(_layernorm(x, axis=-1), A_mem0, A_Wq, A_Wk, A_Wv, A_Wo, A_seg_len)
    x = x + _B_ref(_layernorm(x, axis=-1), B_wqkv, B_wo)
    x = x + _A_ref(_layernorm(x, axis=-1), A_mem0, A_Wq, A_Wk, A_Wv, A_Wo, A_seg_len)
    x = x + _B_ref(_layernorm(x, axis=-1), B_wqkv, B_wo)
    return x
```

```python
import re

REG_RE = re.compile(r'^(-|\|)?(v|a|s)(\d+)\|?$')
RNG_RE = re.compile(r'^(-)?(v|a|s)\[(\d+):(\d+)\]$')
TRANS = ('v_exp_f32', 'v_log_f32', 'v_rcp_f32', 'v_rsq_f32', 'v_sqrt_f32', 'v_sin_f32', 'v_cos_f32')


def regs_of(op):
    op = op.strip()
    if op.startswith('abs(') and op.endswith(')'):
        op = op[4:-1]
    if op.startswith('-abs(') and op.endswith(')'):
        op = op[5:-1]
    m = REG_RE.match(op)
    if m:
        return [(m.group(2), int(m.group(3)))]
    m = RNG_RE.match(op)
    if m:
        return [(m.group(2), i) for i in range(int(m.group(3)), int(m.group(4)) + 1)]
    if op in ('vcc', 'vcc_lo', 'vcc_hi'):
        return [('s', 'vcc')]
    if op in ('exec', 'exec_lo', 'exec_hi'):
        return [('s', 'exec')]
    if op == 'm0':
        return [('s', 'm0')]
    return []


class Ins:
    __slots__ = ('text', 'mn', 'kind', 'wr', 'rd', 'cyc', 'srcc', 'ab', 'trans', 'dpp', 'perm', 'rdlane',
                 'wide_store', 'target', 'uncond', 'nopn', 'wait', 'lds_dma', 'sdwa', 'dst_key', 'asyncw')

    def __init__(self, text):
        self.text = text
        t = text.split(';')[0].strip()
        parts = t.split(None, 1)
        mn = parts[0]
        self.mn = mn
        rest = parts[1] if len(parts) > 1 else ''
        ops, depth, cur = [], 0, ''
        for ch in rest:
            if ch in '[(':
                depth += 1
            if ch in '])':
                depth -= 1
            if ch == ',' and depth == 0:
                ops.append(cur.strip())
                cur = ''
            else:
                cur += ch
        if cur.strip():
            ops.append(cur.strip())
        mods = ''
        if ops:
            last = ops[-1].split(None, 1)
            if len(last) > 1 and not mn.startswith('s_waitcnt') and not mn.startswith('s_getreg'):
                ops[-1] = last[0]
                mods = last[1]
        self.wr, self.rd, self.srcc, self.ab, self.asyncw = [], [], [], [], []
        self.cyc = 0
        self.trans = self.dpp = self.perm = self.rdlane = self.lds_dma = self.sdwa = False
        self.wide_store = []
        self.target = None
        self.uncond = False
        self.nopn = None
        self.wait = None
        self.dst_key = None
        R = regs_of
        allr = lambda l: [r for o in l for r in R(o)]
        if mn.startswith('v_mfma') or mn.startswith('v_smfmac'):
            self.kind = 'mfma'
            self.cyc = 32 if '32x32' in mn else 16
            self.wr = R(ops[0])
            self.dst_key = (self.wr[0], len(self.wr), mn)
            if mn.startswith('v_smfmac'):
                self.srcc = R(ops[0])
                self.ab = allr(ops[1:4])
            else:
                self.srcc = R(ops[3])
                self.ab = allr(ops[1:3])
            self.rd = self.srcc + self.ab
        elif mn.startswith('ds_'):
            self.kind = 'ds'
            if mn.startswith('ds_read') or mn.startswith('ds_bpermute') or mn.startswith('ds_swizzle') or mn.startswith('ds_permute'):
                self.asyncw = R(ops[0])
                self.rd = allr(ops[1:])
            else:
                self.rd = allr(ops)
        elif mn.startswith('buffer_') or mn.startswith('global_'):
            self.kind = 'vmem'
            if mn in ('buffer_wbl2', 'buffer_inv'):
                pass
            elif 'load_lds' in mn or re.search(r'\blds\b', mods):
                self.lds_dma = True
                self.rd = allr(ops) + [('s', 'm0')]
            elif '_load_' in mn:
                self.asyncw = R(ops[0])
                self.rd = allr(ops[1:])
            elif '_atomic_' in mn:
                if re.search(r'\bsc0\b', mods):
                    self.asyncw = R(ops[0])
                    self.rd = allr(ops[1:]) if mn.startswith('global_') else allr(ops)
                else:
                    self.rd = allr(ops)
            else:
                self.rd = allr(ops)
                if 'x4' in mn or 'x3' in mn:
                    self.wide_store = R(ops[0]) if mn.startswith('buffer_') else R(ops[1])
        elif mn.startswith('v_'):
            self.kind = 'valu'
            base = mn.replace('_e32', '').replace('_e64', '')
            self.trans = base in TRANS
            self.dpp = mn.endswith('_dpp') or 'quad_perm' in mods or 'row_' in mods
            self.sdwa = mn.endswith('_sdwa') and 'dst_sel:DWORD' not in mods
            if 'permlane' in mn:
                self.perm = True
                self.wr = allr(ops[:2])
                self.rd = allr(ops[:2])
            elif mn.startswith('v_cmp'):
                self.wr = R(ops[0])
                self.rd = allr(ops[1:])
            elif mn.startswith('v_readlane') or mn.startswith('v_readfirstlane'):
                self.rdlane = True
                self.wr = R(ops[0])
                self.rd = allr(ops[1:])
            elif mn.startswith('v_add_co') or mn.startswith('v_sub_co') or mn.startswith('v_addc_co'):
                self.wr = allr(ops[:2])
                self.rd = allr(ops[2:])
            else:
                self.wr = R(ops[0])
                self.rd = allr(ops[1:])
                if 'fmac' in mn or 'dot2c' in mn or self.dpp or mn.startswith('v_writelane'):
                    self.rd += self.wr
        elif mn.startswith('s_'):
            self.kind = 'salu'
            if mn == 's_nop':
                self.nopn = int(ops[0])
            elif mn == 's_waitcnt':
                w = {}
                for k, v in re.findall(r'(vmcnt|lgkmcnt)\((\d+)\)', rest):
                    w[k] = int(v)
                self.wait = w
            elif mn == 's_branch':
                self.target = ops[0]
                self.uncond = True
            elif mn.startswith('s_cbranch'):
                self.target = ops[0]
            elif mn == 's_endpgm':
                self.uncond = True
            elif mn.startswith('s_load') or mn.startswith('s_memtime') or mn.startswith('s_memrealtime') or mn.startswith('s_buffer_load'):
                self.kind = 'smem'
                self.asyncw = R(ops[0])
                self.rd = allr(ops[1:])
            elif mn.startswith('s_cmp') or mn in ('s_barrier', 's_setprio', 's_sleep') or mn.startswith('s_bitcmp'):
                self.rd = allr(ops)
            else:
                self.wr = R(ops[0])
                self.rd = allr(ops[1:])
                if 'saveexec' in mn:
                    self.wr = self.wr + [('s', 'exec')]
        else:
            raise ValueError('unknown instruction: ' + text)


CAP = 96


class State:
    def __init__(self):
        self.h = {}
        self.vm = {}
        self.lg = {}
        self.smem = False
        self.last_mfma = None
        self.prev_mfma = False

    def copy(self):
        s = State()
        s.h = dict(self.h)
        s.vm = dict(self.vm)
        s.lg = dict(self.lg)
        s.smem = self.smem
        s.last_mfma = self.last_mfma
        s.prev_mfma = self.prev_mfma
        return s

    def merge(self, o):
        ch = False
        for k, v in o.h.items():
            if k not in self.h:
                self.h[k] = v
                ch = True
            else:
                a, i = self.h[k]
                b, j = v
                n = (min(a, b), i if i == j else (max(i[0], j[0]), None) if i and j else None)
                if n != self.h[k]:
                    self.h[k] = n
                    ch = True
        for d, e in ((self.vm, o.vm), (self.lg, o.lg)):
            for k, v in e.items():
                if k not in d or v < d[k]:
                    d[k] = v
                    ch = True
        if o.smem and not self.smem:
            self.smem = True
            ch = True
        if self.last_mfma != o.last_mfma and self.last_mfma is not None:
            self.last_mfma = None
            ch = True
        if self.prev_mfma and not o.prev_mfma:
            self.prev_mfma = False
            ch = True
        return ch

    def advance(self, dt, slot=None):
        slot = dt if slot is None else slot
        nh = {}
        for k, (a, i) in self.h.items():
            d = dt if k[0] == 'mfmaw' else slot
            if a + d < CAP:
                nh[k] = (a + d, i)
        self.h = nh
        if self.last_mfma:
            a, c = self.last_mfma
            self.last_mfma = (a + dt, c) if a + dt < CAP else None


def is_v(r):
    return r[0] in ('v', 'a')


class Asm:
    def __init__(self):
        self.items = []
        self.uid = 0

    def __call__(self, text):
        for line in text.split('\n'):
            line = line.strip()
            if not line:
                continue
            if line.startswith(';'):
                self.items.append(('c', line))
            elif line.endswith(':') and ' ' not in line:
                self.items.append(('l', line[:-1]))
            elif line.startswith('.'):
                self.items.append(('d', line))
            else:
                self.items.append(('i', Ins(line)))

    def label(self, name):
        self.items.append(('l', name))

    def newlabel(self, p='L'):
        self.uid += 1
        return f'{p}_{self.uid}'

    def comment(self, t):
        self.items.append(('c', '; ' + t))

    def _step(self, st, ins, out):
        need_vm = need_lg = None
        touched = ins.rd + ins.wr + ins.asyncw
        for r in touched:
            if r in st.vm:
                if not (r in ins.asyncw and ins.kind == 'vmem' and r not in ins.rd):
                    n = st.vm[r]
                    need_vm = n if need_vm is None else min(need_vm, n)
            if r in st.lg:
                if not (r in ins.asyncw and ins.kind == 'ds' and r not in ins.rd):
                    n = max(st.lg[r], 0)
                    need_lg = n if need_lg is None else min(need_lg, n)
        if need_vm is not None or need_lg is not None:
            p = []
            if need_vm is not None:
                p.append(f'vmcnt({min(need_vm, 63)})')
            if need_lg is not None:
                p.append(f'lgkmcnt({min(need_lg, 15)})')
            w = Ins('s_waitcnt ' + ' '.join(p))
            self._issue(st, w)
            out.append(w.text)
        dt = self._dt(st, ins)
        short = 0

        def need(kind, reg, states):
            nonlocal short
            e = st.h.get((kind, reg))
            if e is not None:
                req = 4 * (states + 1)
                short = max(short, req - (e[0] + (dt if kind == 'mfmaw' else 4)))

        for r in ins.rd:
            if is_v(r):
                if ins.kind == 'mfma':
                    need('valu', r, 2)
                if ins.kind == 'valu':
                    if ins.dpp or ins.perm:
                        need('valu', r, 2)
                    if ins.rdlane:
                        need('valu', r, 1)
                    if not ins.trans:
                        need('trans', r, 1)
                    need('sdwa', r, 1)
                e = st.h.get(('mfmaw', r))
                if e is not None:
                    cyc, key = e[1]
                    if ins.kind == 'mfma' and r in ins.srcc and r not in ins.ab:
                        same = key is not None and ins.srcc and key == (ins.srcc[0], len(ins.srcc), ins.mn)
                        if not same:
                            need('mfmaw', r, 6 if cyc == 16 else 10)
                    else:
                        need('mfmaw', r, 8 if cyc == 16 else 12)
            else:
                if ins.kind == 'valu' and r != ('s', 'exec'):
                    need('valus', r, 4 if ins.rdlane else 2)
                if ins.kind == 'vmem':
                    need('valus', r, 5)
                if ins.lds_dma and r == ('s', 'm0'):
                    need('m0', r, 1)
        for r in ins.wr + ins.asyncw:
            if is_v(r):
                e = st.h.get(('mfmaw', r))
                if e is not None:
                    cyc, key = e[1]
                    if ins.kind == 'mfma':
                        if not (r in ins.srcc):
                            need('mfmaw', r, 8 if cyc == 16 else 12)
                    else:
                        need('mfmaw', r, 8 if cyc == 16 else 12)
                e = st.h.get(('mfmac', r))
                if e is not None and ins.kind == 'valu':
                    need('mfmac', r, 3 if e[1][0] == 16 else 7)
                need('wstore', r, 2)
        if short > 0:
            n = (short + 3) // 4
            while n > 0:
                k = min(n, 16)
                nop = Ins(f's_nop {k - 1}')
                self._issue(st, nop)
                out.append(nop.text)
                n -= k
        self._issue(st, ins)
        out.append(ins.text)

    def _dt(self, st, ins):
        dt = 4
        if ins.kind == 'mfma' and st.last_mfma:
            a, c = st.last_mfma
            dt = max(dt, c - a)
        return dt

    def _issue(self, st, ins):
        st.advance(self._dt(st, ins), 4)
        if ins.nopn is not None:
            st.advance(4 * ins.nopn)
        st.prev_mfma = ins.kind == 'mfma'
        if ins.wait is not None:
            if 'vmcnt' in ins.wait:
                n = ins.wait['vmcnt']
                st.vm = {r: a for r, a in st.vm.items() if a < n}
            if 'lgkmcnt' in ins.wait:
                n = ins.wait['lgkmcnt']
                st.lg = {} if n == 0 else {r: a for r, a in st.lg.items() if a < n}
        if ins.kind == 'vmem':
            st.vm = {r: a + 1 for r, a in st.vm.items()}
            for r in ins.asyncw:
                st.vm[r] = 0
            for r in ins.wide_store:
                st.h[('wstore', r)] = (0, None)
        elif ins.kind == 'ds':
            st.lg = {r: (a + 1 if a >= 0 else a) for r, a in st.lg.items()}
            for r in ins.asyncw:
                st.lg[r] = 0
        elif ins.kind == 'smem':
            for r in ins.asyncw:
                st.lg[r] = -1
        elif ins.kind == 'mfma':
            for r in ins.wr:
                st.h[('mfmaw', r)] = (0, (ins.cyc, ins.dst_key))
                st.h.pop(('valu', r), None)
            for r in ins.srcc:
                st.h[('mfmac', r)] = (0, (ins.cyc, None))
            st.last_mfma = (0, ins.cyc)
        elif ins.kind == 'valu':
            for r in ins.wr:
                if is_v(r):
                    st.h[('valu', r)] = (0, None)
                    if ins.trans:
                        st.h[('trans', r)] = (0, None)
                    else:
                        st.h.pop(('trans', r), None)
                    if ins.sdwa:
                        st.h[('sdwa', r)] = (0, None)
                else:
                    st.h[('valus', r)] = (0, None)
        elif ins.kind == 'salu':
            for r in ins.wr:
                st.h.pop(('valus', r), None)
                if r == ('s', 'm0'):
                    st.h[('m0', r)] = (0, None)

    def finalize(self, entries=()):
        lab_state = {}
        for _ in range(12):
            changed = False
            out = []
            st = State()
            for kind, it in self.items:
                if kind == 'c' or kind == 'd':
                    out.append(it)
                elif kind == 'l':
                    if it in entries:
                        st = State()
                    elif it in lab_state:
                        if st is None:
                            st = lab_state[it].copy()
                        else:
                            st.merge(lab_state[it])
                    out.append(it + ':')
                else:
                    if st is None:
                        st = State()
                    self._step(st, it, out)
                    if it.target is not None:
                        t = st.copy()
                        t.prev_mfma = False
                        if it.target in lab_state:
                            changed |= lab_state[it.target].merge(t)
                        else:
                            lab_state[it.target] = t
                            changed = True
                    if it.uncond:
                        st = None
            if not changed:
                return '\n'.join(out) + '\n'
        raise RuntimeError('finalize did not converge')


def vr(base, n=1):
    return f'v{base}' if n == 1 else f'v[{base}:{base + n - 1}]'


def ar(base, n=1):
    return f'a{base}' if n == 1 else f'a[{base}:{base + n - 1}]'


def sr(base, n=1):
    return f's{base}' if n == 1 else f's[{base}:{base + n - 1}]'
```

```python
import re
from asmlib import *
from layout import *

L_MEM, L_KX, L_VX = 0, 8192, 16384
L_QM = 24576
L_KM = L_QM + 2304
L_VM = L_KM + 2304
L_ZERO = L_VM + 2048
L_WST = 32768
vL16, vW16, vXw, vQr, vKr, vIdx, vPst, vOx, v8, v9, vT0, vT1 = range(12)
A_, ACC, S_, X_ = 12, 44, 60, 124
sStep, sQKV, sQKVn, sOX, sOX2, sP, sPr, sM, sMr, sMw, sSpin, sFlag, sT, sT2, sPb, sMb, sQx, sQx2 = range(20, 38)
sC = 38
sMASK = 40
sEM, sEX = 56, 58
sSEL = 60
sOXp, sTag = 68, 69
sPROF = 70
SPIN_MAX = 1 << 22

S1A = [(t, 0) for t in range(4)] + [(0, 1), (1, 1)]
S1B = [(t, 5) for t in range(4)]
S1C = [(0, 4), (1, 4)]
S3 = [(t, 1) for t in range(4, 8)]


def resident_map():
    staged = S1A + S1B + S1C
    ops = [('qk', t, kt) for kt in range(8) for t in range(4) if (t, kt) not in staged]
    ops += [('v', t, kt) for kt in range(8) for t in range(2)]
    ops += [('o', t, z) for z in range(2) for t in range(8) if (t, z) not in S3]
    assert len(ops) == 48
    m = {}
    for i, o in enumerate(ops):
        m[o] = ('a', 8 * i) if i < 32 else ('v', 128 + 8 * (i - 32))
    for i, (t, kt) in enumerate(S1A):
        m[('qk', t, kt)] = ('lds', i, S_ + 8 * i)
    for i, (t, kt) in enumerate(S1B):
        m[('qk', t, kt)] = ('lds', 6 + i, S_ + 8 * i)
    for i, (t, kt) in enumerate(S1C):
        m[('qk', t, kt)] = ('lds', 10 + i, S_ + 32 + 8 * i)
    for i, (t, z) in enumerate(S3):
        m[('o', t, z)] = ('lds', 12 + i, [ACC, S_ + 32, S_ + 16, S_ + 24][i])
    return m


RM = resident_map()


def bop(key):
    e = RM[key]
    if e[0] == 'a':
        return ar(e[1], 8)
    if e[0] == 'v':
        return vr(e[1], 8)
    return vr(e[2], 8)


def stage_reads(key):
    e = RM[key]
    return [f'ds_read_b128 {vr(e[2] + 4 * hh, 4)}, v{vW16} offset:{e[1] * 2048 + hh * 1024}' for hh in range(2)]


def zfill(reg):
    return f'ds_read_b128 {vr(reg, 4)}, v{vL16} offset:{L_ZERO}'


vCNT, vFLG = 124, 7


sOKF = 78


def check_loads(a, d_ready, vFLG=vFLG):
    a(f's_load_dwordx2 s[70:71], s[0:1], {KA_DBG}')
    a('v_mbcnt_lo_u32_b32 v113, -1, 0')
    a('v_lshlrev_b32 v112, 4, v113')
    a(f'v_mov_b32 v114, {d_ready}')
    a(f's_lshl_b32 s3, s{sL}, 5')
    a(f's_add_u32 s3, s3, s{sH}')
    a('s_lshl_b32 s76, s3, 8')
    a(f's_add_u32 s76, s76, {FLAG_OFF}')
    a('s_waitcnt lgkmcnt(0)')
    a('s_mov_b64 exec, 1')
    a(f'global_load_dword v{vCNT}, v114, s[70:71] sc1')
    a('s_mov_b64 exec, 0xfff')
    a(f'buffer_load_dword v{vFLG}, v112, {WS}, s76 offen sc1')
    a('s_mov_b64 exec, -1')


def check_eval(a, vFLG=vFLG, need=2):
    a(f'v_readlane_b32 s76, v{vCNT}, 0')
    a('s_mov_b64 exec, 0xfff')
    a(f'v_cmp_gt_u32 vcc, {need}, v{vFLG}')
    a('s_mov_b64 exec, -1')
    a('s_cmp_eq_u64 vcc, 0')
    a('s_cselect_b32 s76, s76, 0')
    a('s_cmp_ge_u32 s76, 48')


def first_loads(a):
    a(f's_load_dwordx2 s[72:73], s[0:1], {KA_MEM0}')
    a('s_mov_b32 s74, 8192')
    a('s_mov_b32 s75, 0x20000')
    a('v_mbcnt_lo_u32_b32 v113, -1, 0')
    a('v_mbcnt_hi_u32_b32 v113, -1, v113')
    a('v_lshlrev_b32 v112, 4, v113')
    a(f's_lshl_b32 s3, s{sL}, 5')
    a(f's_add_u32 s3, s3, s{sH}')
    a('s_lshl_b32 s3, s3, 6')
    a(f's_mul_i32 s77, s3, {QKV_BLK}')
    a(f's_lshl_b32 s3, s{sW}, 12')
    a(f's_add_u32 m0, s3, {L_KX}')
    a('s_add_u32 s3, s3, s77')
    for p in range(4):
        a(f'buffer_load_dwordx4 v112, {WS}, s3 offen offset:{1024 * p} sc1 lds')
    a('v_and_b32 v114, 1, v113')
    a('v_bfe_u32 v115, v113, 2, 2')
    a('v_lshl_add_u32 v114, v115, 1, v114')
    a('v_lshrrev_b32 v115, 4, v113')
    a('v_bfe_u32 v113, v113, 1, 1')
    a('v_lshlrev_b32 v114, 10, v114')
    a('v_lshl_add_u32 v114, v115, 5, v114')
    a('v_lshl_add_u32 v114, v113, 4, v114')
    a(f's_lshl_b32 s3, s{sW}, 11')
    a('s_add_u32 s3, s3, s77')
    a('s_add_u32 s3, s3, 16384')
    a(f'buffer_load_dwordx4 v[116:119], v112, {WS}, s3 offen sc1')
    a(f'buffer_load_dwordx4 v[120:123], v112, {WS}, s3 offen offset:1024 sc1')
    a(f's_lshl_b32 s3, s{sL}, 19')
    a(f's_lshl_b32 s76, s{sH}, 13')
    a('s_add_u32 s3, s3, s76')
    a(f's_and_b32 s76, s{sW}, 1')
    a('s_lshl_b32 s76, s76, 18')
    a('s_add_u32 s3, s3, s76')
    a(f's_add_u32 s3, s3, {CPART_OFF}')
    a(f's_lshl_b32 s76, s{sL}, 15')
    a(f's_lshl_b32 s77, s{sH}, 10')
    a('s_add_u32 s76, s76, s77')
    a(f's_add_u32 s76, s76, {CMEM_OFF}')
    a(f's_cmp_lt_u32 s{sW}, 2')
    a('s_cselect_b32 s3, s3, s76')
    a('s_cselect_b32 s76, 3, 0')
    a('v_lshlrev_b32 v115, s76, v112')
    a(f'buffer_load_dword v115, v115, {WS}, s3 offen sc1')
    a('s_waitcnt lgkmcnt(0)')
    for k in range(2):
        a(f's_lshl_b32 s3, s{sW}, 11')
        a(f's_add_u32 m0, s3, {L_MEM + 1024 * k}')
        a(f's_lshl_b32 s3, s{sW}, 8')
        a(f's_add_u32 s3, s3, {128 * k}')
        a('buffer_load_dwordx4 v114, s[72:75], s3 offen lds')


def emit_chain_setup(a, hook=None, d_ready=None, opt=None):
    lane, vn, vgb, vAq, vAv, vAo = 0, 1, 2, 3, 4, 5
    a(f'v_and_b32 v{vn}, 15, v{lane}')
    a(f'v_lshrrev_b32 v{vgb}, 4, v{lane}')
    a(f'v_lshrrev_b32 v6, 1, v{vgb}')
    a(f'v_and_b32 v7, 1, v{vgb}')
    a(f'v_lshlrev_b32 v8, 17, v6')
    a(f'v_lshl_add_u32 v8, v7, 15, v8')
    a(f'v_lshl_add_u32 v{vAq}, v{vn}, 3, v8')
    a(f'v_and_b32 v9, 14, v{vn}')
    a(f'v_lshl_add_u32 v{vAv}, v9, 2, v8')
    a(f'v_and_b32 v9, 1, v{vn}')
    a(f'v_lshl_add_u32 v{vAv}, v9, 18, v{vAv}')
    a(f'v_lshlrev_b32 v8, 15, v7')
    a(f'v_lshl_add_u32 v8, v6, 13, v8')
    a(f'v_lshl_add_u32 v{vAo}, v{vn}, 3, v8')
    a(f's_lshl_b32 s3, s{sW}, 15')
    a(f's_add_u32 s3, s3, {L_WST}')
    a(f'v_lshl_add_u32 v6, v{lane}, 4, s3')
    vSt = 6
    a(f's_load_dwordx4 s[40:43], s[0:1], {KA_WQ}')
    a(f's_load_dwordx4 s[44:47], s[0:1], {KA_WV}')
    a('s_waitcnt lgkmcnt(0)')
    a(f's_cmp_lt_u32 s{sW}, 2')
    a('s_cselect_b32 s4, s40, s42')
    a('s_cselect_b32 s5, s41, s43')
    a('s_mov_b32 s6, 0x400000')
    a('s_mov_b32 s7, 0x20000')
    a('s_mov_b32 s8, s44')
    a('s_mov_b32 s9, s45')
    a('s_mov_b32 s10, 0x400000')
    a('s_mov_b32 s11, 0x20000')
    a('s_mov_b32 s48, s46')
    a('s_mov_b32 s49, s47')
    a('s_mov_b32 s50, 0x400000')
    a('s_mov_b32 s51, 0x20000')
    a(f's_lshl_b32 s20, s{sH}, 8')
    a(f's_and_b32 s21, s{sW}, 1')
    a('s_lshl_b32 s21, s21, 7')
    a('s_add_u32 s21, s21, s20')
    a(f's_lshl_b32 s22, s{sW}, 6')
    a('s_add_u32 s22, s22, s20')
    a(f's_lshl_b32 s23, s{sH}, 17')
    a(f's_lshl_b32 s24, s{sW}, 8')
    a('s_add_u32 s23, s23, s24')
    a('s_mov_b32 s26, 0x05040100')
    a('s_mov_b32 s27, 0x07060302')
    a('s_mov_b32 s30, 0x55555555')
    a('s_mov_b32 s31, 0x55555555')
    SEL = (26, 27)
    rowqk = lambda jb: 32 * (jb >> 3) + 8 * ((jb >> 1) & 1) + 2 * ((jb >> 2) & 1) + (jb & 1)
    rowo = lambda jb: 16 * (jb >> 3) + 2 * (jb & 3) + ((jb >> 2) & 1)
    BUF = [16, 48, 80]
    TMP = 8
    units = []

    def put(key, j0, n, srcs):
        out = []
        e = RM[key]
        for k, (hi, lo, sel) in enumerate(srcs):
            if e[0] == 'v':
                out.append(f'v_perm_b32 v{e[1] + j0 + k}, v{hi}, v{lo}, s{SEL[sel]}')
            else:
                out.append(f'v_perm_b32 v{TMP + k}, v{hi}, v{lo}, s{SEL[sel]}')
        if e[0] == 'a':
            out += [f'v_accvgpr_write_b32 a{e[1] + j0 + k}, v{TMP + k}' for k in range(n)]
        elif e[0] == 'lds':
            for hh in range(n // 4):
                out.append(f'ds_write_b128 v{vSt}, {vr(TMP + 4 * hh, 4)} offset:{e[1] * 2048 + (j0 // 4 + hh) * 1024}')
        return out

    def rot(kt, base):
        return [f's_lshl_b32 s28, s{sW}, 1', f's_add_u32 s28, s28, {kt}', 's_and_b32 s28, s28, 7', 's_lshl_b32 s28, s28, 19', f's_add_u32 s28, s28, s{base}']

    for kt in range(8):
        def ld(B, kt=kt):
            o = rot(kt, 21)
            for jb in range(16):
                o.append(f's_add_u32 s25, s28, {rowqk(jb) * 8192}')
                o.append(f'buffer_load_dwordx2 {vr(B + 2 * jb, 2)}, v{vAq}, s[4:7], s25 offen')
            return o

        def pr(B, kt=kt):
            o = []
            for t in range(4):
                o += put(('qk', t, kt), 0, 8, [(B + 2 * (2 * jj + 1) + (t >> 1), B + 2 * (2 * jj) + (t >> 1), t & 1) for jj in range(8)])
            return o
        units.append((ld, pr))
    for kp in range(4):
        def ld(B, kp=kp):
            o = []
            for kk in range(2):
                for jb in range(8):
                    o.append(f's_add_u32 s25, s22, {(64 * (2 * kp + kk) + rowqk(jb)) * 8192}')
                    o.append(f'buffer_load_dwordx2 {vr(B + 16 * kk + 2 * jb, 2)}, v{vAv}, s[8:11], s25 offen')
            return o

        def pr(B, kp=kp):
            o = []
            for kk in range(2):
                R = B + 16 * kk
                o.append('s_mov_b64 vcc, s[30:31]')
                o += [f'v_cndmask_b32_dpp v{112 + j}, v{R + 2 * j + 1}, v{R + 2 * j}, vcc quad_perm:[0,0,2,2] row_mask:0xf bank_mask:0xf' for j in range(8)]
                o.append('s_not_b64 vcc, vcc')
                o += [f'v_cndmask_b32_dpp v{R + 2 * j + 1}, v{R + 2 * j}, v{R + 2 * j + 1}, vcc quad_perm:[1,1,3,3] row_mask:0xf bank_mask:0xf' for j in range(8)]
                row = lambda jb: 112 + jb if jb < 8 else R + 2 * (jb - 8) + 1
                for t in range(2):
                    o += put(('v', t, 2 * kp + kk), 0, 8, [(row(2 * jj + 1), row(2 * jj), t) for jj in range(8)])
            return o
        units.append((ld, pr))
    for z in range(2):
        for hb in range(2):
            def ld(B, z=z, hb=hb):
                o = []
                for jb in range(16):
                    o.append(f's_add_u32 s25, s23, {(64 * z + rowo(jb)) * 1024 + 128 * hb}')
                    o.append(f'buffer_load_dwordx2 {vr(B + 2 * jb, 2)}, v{vAo}, s[48:51], s25 offen')
                return o

            def pr(B, z=z, hb=hb):
                o = []
                for t in range(4):
                    o += put(('o', 4 * hb + t, z), 0, 8, [(B + 2 * (2 * jj + 1) + (t >> 1), B + 2 * (2 * jj) + (t >> 1), t & 1) for jj in range(8)])
                return o
            units.append((ld, pr))
    opt = opt or {}
    if opt.get('wofirst', 0):
        units = units[12:] + units[8:12] + units[:8]
    D = opt.get('depth', 2)
    n = len(units)
    for u in range(n + 2):
        if hook:
            if u == n - 3:
                check_loads(a, d_ready)
            if u == n:
                NL = a.newlabel('CNL')
                check_eval(a)
                a(f's_cselect_b32 s{sOKF}, 1, 0')
                a(f's_cbranch_scc0 {NL}')
                first_loads(a)
                a.label(NL)
        if u < n:
            for l in units[u][0](BUF[u % 3]):
                a(l)
        if hook:
            hook(u)
        if D <= u < n + D:
            for l in units[u - D][1](BUF[(u - D) % 3]):
                a(l)
    a('v_mov_b64 v[12:13], 0')
    a('v_mov_b64 v[14:15], 0')
    a(f'v_lshlrev_b32 v8, 4, v{lane}')
    a(f'ds_write_b128 v8, v[12:15] offset:{L_ZERO}')
    a(f'v_mov_b32 v125, v{vFLG}')
    a('s_waitcnt lgkmcnt(0)')


def emit_chain_consts(a, w):
    i, g, t1, t2, vtq, vhf = 20, 21, 22, 23, 24, 25
    a(f'v_and_b32 v{i}, 15, v0')
    a(f'v_lshrrev_b32 v{g}, 4, v0')
    a(f'v_lshrrev_b32 v{t1}, 2, v{i}')
    a(f'v_and_b32 v{t2}, 1, v{i}')
    a(f'v_lshl_add_u32 v{vtq}, v{t1}, 1, v{t2}')
    a(f'v_bfe_u32 v{vhf}, v{i}, 1, 1')
    a(f'v_mov_b32 v26, v0')
    a(f'v_lshlrev_b32 v{vL16}, 4, v26')
    a(f'v_add_u32 v{vW16}, {L_WST + w * 32768}, v{vL16}')
    a('s_movk_i32 s3, 144')
    if w < 2:
        a(f'v_lshrrev_b32 v27, 1, v{i}')
        a(f'v_mul_lo_u32 v27, v27, s3')
        a(f'v_lshl_add_u32 v27, v{g}, 5, v27')
        a(f'v_lshl_add_u32 v27, v{t2}, 3, v27')
        a(f'v_add_u32 v{vXw}, {L_QM + 8 * w * 144}, v27')
    else:
        a(f'v_lshlrev_b32 v27, 1, v{t1}')
        a(f'v_mul_lo_u32 v27, v27, s3')
        a(f'v_lshl_add_u32 v27, v{g}, 5, v27')
        a(f'v_and_b32 v28, 3, v{i}')
        a(f'v_lshl_add_u32 v27, v28, 2, v27')
        a(f'v_add_u32 v{vXw}, {L_KM + 8 * (w - 2) * 144}, v27')
    a(f'v_mul_lo_u32 v27, v{g}, s3')
    a(f'v_lshl_add_u32 v27, v{vtq}, 4, v27')
    a(f'v_add_u32 v{vQr}, {L_QM}, v27')
    a(f'v_lshl_add_u32 v27, v{g}, 1, v{vhf}')
    a(f'v_mul_lo_u32 v27, v27, s3')
    a(f'v_lshl_add_u32 v27, v{vtq}, 4, v27')
    a(f'v_add_u32 v{vKr}, {L_KM}, v27')
    a(f'v_mul_u32_u24 v27, 0xaaaa, v{vhf}')
    a(f'v_add_u32 v{vIdx}, 0x4444, v27')
    a(f'v_lshlrev_b32 v27, 13, v{t1}')
    a(f'v_lshl_add_u32 v27, v{g}, 11, v27')
    a(f'v_and_b32 v28, 3, v{i}')
    a(f'v_lshl_add_u32 v27, v28, 4, v27')
    a(f's_lshl_b32 s3, s{sH}, 6')
    a(f's_add_u32 s3, s3, {8 * w * 8192}')
    a(f'v_add_u32 v{vPst}, s3, v27')
    for k in range(4):
        smov64(a, sSEL + 2 * k, mask64(lambda i, g: (i >> 1) == k))
    a(f'v_lshlrev_b32 v28, 10, v{vtq}')
    a(f'v_lshl_add_u32 v28, v{g}, 5, v28')
    a(f'v_lshl_add_u32 v28, v{vhf}, 4, v28')
    for T in range(2):
        for rho in range(4):
            m = mask64(lambda i, g: hf(i) == 1 and 16 * (g >> 1) + 8 * T + 4 * (g & 1) + rho > 8 * w + tq(i))
            smov64(a, sMASK + 2 * (4 * T + rho), m)
    smov64(a, sEM, 0x3333333333333333)
    smov64(a, sEX, 0xcccccccccccccccc)
    a(f's_mov_b32 s{sC}, {f32bits(SCALE_A):#x}')
    a(f's_mov_b32 s{sC + 1}, {f32bits(SCALE_A):#x}')
    a(f's_mov_b32 s{sStep}, 0')
    a(f's_lshl_b32 s3, s{sL}, 5')
    a(f's_add_u32 s3, s3, s{sH}')
    a('s_lshl_b32 s3, s3, 6')
    a(f's_mul_i32 s{sQKV}, s3, {QKV_BLK}')
    a(f's_lshl_b32 s{sOX}, s3, 13')
    a(f's_add_u32 s{sOX}, s{sOX}, {OX_OFF + 2048 * w}')
    a(f's_lshl_b32 s{sPb}, s{sL}, 19')
    a(f's_add_u32 s{sPb}, s{sPb}, {CPART_OFF}')
    a(f's_lshl_b32 s{sMb}, s{sL}, 15')
    a(f's_add_u32 s{sMb}, s{sMb}, {CMEM_OFF}')
    a(f's_lshl_b32 s3, s{sL}, 5')
    a(f's_add_u32 s3, s3, s{sH}')
    a('s_lshl_b32 s3, s3, 8')
    a(f's_add_u32 s{sFlag}, s3, {FLAG_OFF}')


def flag_wait(a, need_sreg, fail, preloaded=False):
    L, Lok = a.newlabel('FW'), a.newlabel('FOK')
    a('s_mov_b64 exec, 0xfff')
    if preloaded:
        a(f'v_cmp_gt_u32 vcc, s{need_sreg}, v{v9}')
        a(f's_cbranch_vccz {Lok}')
    a.label(L)
    spin_guard(a, sSpin, fail)
    a(f'buffer_load_dword v{v9}, v{vL16}, {WS}, s{sFlag} offen sc1')
    a(f'v_cmp_gt_u32 vcc, s{need_sreg}, v{v9}')
    a(f's_cbranch_vccnz {L}')
    a.label(Lok)
    a('s_mov_b64 exec, -1')


def prefetch_next(a):
    for key in S1A:
        for l in stage_reads(('qk',) + key):
            a(l)
    for t in range(4):
        a(f'v_mov_b64 {vr(ACC + 4 * t, 2)}, 0')
        a(f'v_mov_b64 {vr(ACC + 4 * t + 2, 2)}, 0')


def emit_chain_first(a, w, fail, d_ready):
    RE, OK = a.newlabel('CF'), a.newlabel('CK')
    a(f's_mov_b32 s{sSpin}, 0')
    a(f's_cmp_eq_u32 s{sOKF}, 1')
    a(f's_cbranch_scc1 {OK}')
    a.label(RE)
    spin_guard(a, sSpin, fail)
    a('s_sleep 2')
    check_loads(a, d_ready, 125)
    check_eval(a, 125, 1)
    a(f's_cbranch_scc0 {RE}')
    first_loads(a)
    if w == 0:
        a(f's_mov_b32 s{sT}, 2')
        flag_wait(a, sT, fail)
        a(f'v_mov_b32 v125, v{v9}')
    a.label(OK)
    a(f'v_mov_b32 v{v9}, v125')
    a('s_waitcnt vmcnt(0)')
    for k in range(2):
        a(f'ds_read_b128 {vr(A_ + 4 * k, 4)}, v{vL16} offset:{L_MEM + 1024 * (2 * w + k)}')
    prefetch_next(a)
    a(f's_mov_b32 s{sOXp}, {WS_BYTES}')
    a('s_waitcnt lgkmcnt(0)')


def emit_chain_loop(a0, w, fast, fail, done, prof=False, opt=None):
    opt = opt or {}
    drop = opt.get('drop', [])

    class Filt:
        def __call__(self, text):
            for line in text.split('\n'):
                if not any(re.search(p, line) for p in drop):
                    a0(line)

        def __getattr__(self, n):
            return getattr(a0, n)
    a = Filt()
    sc = '' if fast else ' sc1'
    LOOP = a.newlabel('CL')
    LAST = a.newlabel('CLAST')
    npr = [0]

    fine = opt.get('fine')

    def fstamp(name):
        if prof and fine and name in fine:
            a(f's_memtime {sr(sPROF + 16 + 2 * fine.index(name), 2)}')

    def stamp():
        if prof:
            a(f'{"s_memrealtime" if opt.get("rt") else "s_memtime"} {sr(sPROF + 2 * npr[0], 2)}')
            npr[0] += 1

    def smf(d, A, B):
        return f'v_smfmac_f32_16x16x64_bf16 {vr(d, 4)}, {vr(A, 4)}, {B}, v{vIdx}'

    Q_, VACC = S_ + 32, S_ + 48
    QA, QB, KM_ = S_ + 56, S_ + 40, S_ + 32
    QE = [QA, QA + 4, QB, QB + 4]
    T0, T1, TM = ACC, ACC + 4, X_
    DD = [S_ + 48 + 2 * U for U in range(8)]

    def ox_store(u, s0):
        return f'buffer_store_dwordx4 {vr(DD[2 * u], 4)}, v{vL16}, {WS}, s{s0} offen offset:{1024 * u} sc1'

    def ox_pack():
        o = [f's_mov_b64 vcc, {sr(sEX, 2)}']
        o += [f'v_cndmask_b32_dpp v{DD[0] + k}, v{DD[4] + k}, v{DD[0] + k}, vcc quad_perm:[2,3,2,3] row_mask:0xf bank_mask:0xf' for k in range(8)]
        o += [f'v_min_u32 v{DD[2 * u]}, -2, v{DD[2 * u]}' for u in range(2)]
        return o

    def memrd(k):
        return f'ds_read_b128 {vr(A_ + 4 * k, 4)}, v{vL16} offset:{L_MEM + 1024 * ((2 * w + k) & 7)}'
    sal = [f's_add_u32 s{sQx}, s{sQKV}, {16384 + 2048 * w}',
           f's_add_u32 s{sQKVn}, s{sQKV}, {0 if opt.get("samekv") else QKV_BLK}', f's_add_u32 s{sQx2}, s{sQKVn}, {8192 * max(w - 1, 0)}']
    for l in sal:
        a(l)
    a(f'v_lshlrev_b32 v{vOx}, 3, v{vL16}')
    a(f's_branch {LOOP}')
    i_loop = len(a0.items)
    a.label(LOOP)
    a('s_barrier')
    stamp()
    order = [(t, kt) for kt in range(6) for t in range(4)] + [(t, kt) for t in range(4) for kt in (6, 7)]
    mem = [[] for _ in range(32)]
    alu = [[] for _ in range(32)]
    qearly = opt.get('qearly', 0)
    qld = [f'buffer_load_dwordx4 {vr(QA + 4 * p, 4)}, v{vL16}, {WS}, s{sQx} offen offset:{1024 * p} sc1' for p in range(2)]
    vm = ['\n'.join(qld)] if qearly else []
    kpv = opt.get('kpv', 0)
    kreal = 0 if kpv else opt.get('kreal', 1)
    vlate = opt.get('vlate', 0)
    if w > (1 if kreal else 0) and opt.get('warm', 1):
        vm.append(f'buffer_load_dword v{v8}, v{vOx}, {WS}, s{sQx2} offen sc1')
    flag_ld = f's_mov_b64 exec, 0xfff\nbuffer_load_dword v{v9}, v{vL16}, {WS}, s{sFlag} offen sc1\ns_mov_b64 exec, -1'
    fresh = opt.get('fresh', 0)
    if kpv and w == 0:
        vm = [flag_ld] + vm
    if fresh:
        vm = [flag_ld + ''.join('\n' + x for x in vm)]
    vm += [ox_store(0, sOXp), ox_store(1, sOXp)]
    for k, l in enumerate(vm):
        mem[4 * k + w].append(l)
    rd = [memrd(k) for k in range(2, 8)]
    rd += [l for key in S1C + S1B for l in stage_reads(('qk',) + key)]
    for k, l in enumerate(rd):
        mem[k].append(l)
    for j in range(8):
        mem[21 + j].append(f'ds_read_b128 {vr(S_ + 4 * j, 4)}, v{vL16} offset:{L_KX + j * 1024}')
    qmv = [f'v_mov_b32_dpp v{QB + k}, v{QA + k} quad_perm:[0,1,0,1] row_mask:0xf bank_mask:0xf' for k in range(8)]
    if qearly:
        for k in range(4):
            alu[17 + k].append(f'v_mov_b64 {vr(VACC + 2 * k, 2)}, 0')
        alu[21].append(f'v_mov_b32 v{vT1}, {NEG:#x}')
        for k in range(5):
            alu[22 + k].append(qmv[k])
        qrest = qmv[5:]
    else:
        for k in range(4):
            alu[13 + k].append(f'v_mov_b64 {vr(VACC + 2 * k, 2)}, 0')
        for k in range(8):
            alu[18 + k].append(qmv[k])
        alu[26].append(f'v_mov_b32 v{vT1}, {NEG:#x}')
        qrest = []
    for k, (tt, x) in zip((27, 28, 29, 30, 31, 31), ((0, 0), (0, 1), (1, 0), (1, 1), (2, 0), (2, 1))):
        alu[k].append(f'v_add_f32 v{ACC + 4 * tt + x}, v{ACC + 4 * tt + x}, v{ACC + 4 * tt + 2 + x}')
    FSL, FRET = a.newlabel('FSL'), a.newlabel('FRET')
    fhop = opt.get('fhop', 1)
    if w == 0 and not fhop:
        mem[6] += [f's_add_u32 s{sT}, s{sStep}, 2', f's_min_u32 s{sT}, s{sT}, {NSEG}']
        alu[7] += ['s_mov_b64 exec, 0xfff', f'v_cmp_gt_u32 vcc, s{sT}, v{v9}', 's_mov_b64 exec, -1']
        mem[10] += [f's_cbranch_vccnz {FSL}', FRET + ':']
    for k, (t, kt) in enumerate(order):
        a(smf(ACC + 4 * t, A_ + 4 * kt, bop(('qk', t, kt))))
        for l in mem[k] + alu[k]:
            a(l)
    stamp()
    for x in range(2):
        a(f'v_cvt_pk_bf16_f32 v{X_ + 2 * x}, v{ACC + x}, v{ACC + 4 + x}')
    masks = [f'v_cndmask_b32 v{T0 + k}, 0, v{vT1}, {sr(sMASK + 2 * k, 2)}' for k in range(8)]
    pend = qrest + masks
    a(pend.pop(0))
    a(pend.pop(0))
    for x in range(2):
        a(f'v_add_f32 v{ACC + 12 + x}, v{ACC + 12 + x}, v{ACC + 14 + x}')
    for x in range(2):
        a(f'v_cvt_pk_bf16_f32 v{X_ + 2 * x + 1}, v{ACC + 8 + x}, v{ACC + 12 + x}')
    for x in range(2):
        if w < 2:
            a(f'ds_write_b64 v{vXw}, {vr(X_ + 2 * x, 2)} offset:{16 * x}')
        else:
            a(f'ds_write2_b32 v{vXw}, v{X_ + 2 * x}, v{X_ + 2 * x + 1} offset0:{4 * x} offset1:{36 + 4 * x}')
    vlist = [(t, kt) for kt in range(8) for t in range(2)]
    vi = [0]

    def vmf(n, fillers=()):
        fillers = list(fillers)
        for _ in range(n):
            t, kt = vlist[vi[0]]
            vi[0] += 1
            a(smf(VACC + 4 * t, A_ + 4 * ((kt - 2 * w) & 7), bop(('v', t, kt))))
            if fillers:
                a(fillers.pop(0))
        for l in fillers:
            a(l)
    PX, PM = ACC + 12, ACC + 8
    n1, n2 = opt.get('nv1', 4), opt.get('nv2', 6)
    todo = pend + [f'v_mov_b32 v{PM + 1}, 0', f'v_mov_b32 v{PM + 2}, 0']
    if kreal:
        a(f's_mov_b32 m0, {L_KX + 2048 * w}')
        a(f's_add_u32 s{sT}, s{sQKVn}, {2048 * w}')
    vmf(n1, todo[:n1])
    todo = todo[n1:]
    a('s_waitcnt lgkmcnt(0)')
    a('s_barrier')
    stamp()
    a(f's_mov_b64 exec, {sr(sEM, 2)}')
    for E in range(4):
        a(f'ds_read_b128 {vr(QE[E], 4)}, v{vQr} offset:{576 * E}')
    a('s_mov_b64 exec, -1')
    for z in range(2):
        a(f'ds_read_b128 {vr(KM_ + 4 * z, 4)}, v{vKr} offset:{1152 * z}')
    fstamp('rd')
    kk = [f'buffer_load_dwordx4 v{vL16}, {WS}, s{sT} offen offset:{1024 * p} sc1 lds' if kreal else '' for p in range(2)]
    kkf = kk
    if fresh:
        kk = ['', '']
    todo += [f'v_mov_b64 {vr(TM, 2)}, 0', f'v_mov_b64 {vr(TM + 2, 2)}, 0']
    fl = [kk[0] if k == w else '' for k in range(n2)]
    for k, l in enumerate(todo):
        fl[k % n2] += '\n' + l
    vmf(n2, fl)
    fstamp('v2')
    VX_ = S_
    vxr = [f'ds_read_b128 {vr(VX_ + 4 * U, 4)}, v{vL16} offset:{L_VX + 1024 * U}' for U in range(8)]

    def sc_(E, T):
        return f'v_mfma_f32_16x16x32_bf16 {vr(T0 + 4 * T, 4)}, {vr(S_ + 16 * T + 4 * E, 4)}, {vr(QE[E], 4)}, {vr(T0 + 4 * T, 4)}'
    seq = [sc_(0, 0), sc_(0, 1), sc_(1, 0), sc_(1, 1), smf(TM, KM_, vr(QE[0], 8)), sc_(2, 0), sc_(2, 1),
           smf(TM, KM_ + 4, vr(QE[2], 8)), sc_(3, 0), sc_(3, 1)]
    after = {1: [vxr[0]], 2: [vxr[4]], 3: [vxr[1]], 4: [vxr[5]], 6: [vxr[2]], 7: [vxr[6]], 9: [vxr[3], vxr[7]]}
    for k, l in enumerate(seq):
        a(l)
        if k == w:
            a(kk[1])
        if w == 0 and k == 5 and not fresh and not kpv:
            a(flag_ld)
        if fresh:
            kp = opt.get('kp', 5)
            if k == kp - 3:
                a(f's_add_u32 s{sT2}, s{sStep}, 2')
                a(f's_min_u32 s{sT2}, s{sT2}, {NSEG}')
                a('s_mov_b64 exec, 0xfff')
                a(f'v_cmp_gt_u32 vcc, s{sT2}, v{v9}')
                a('s_mov_b64 exec, -1')
            if k == kp:
                a(f's_cbranch_vccnz {FSL}')
                a.label(FRET)
                a(kkf[0])
            if k == kp + 2:
                a(kkf[1])
        for x in after.get(k, []):
            a(x)
        fstamp(f'sc{k}')
    stamp()
    a(f'v_add_f32 v{TM}, v{TM}, v{TM + 2}')
    a(f'v_add_f32 v{TM + 1}, v{TM + 1}, v{TM + 3}')
    a(f'v_max3_f32 v{vT0}, v{TM}, v{TM + 1}, v{T0}')
    a(f'v_max3_f32 v{vT0}, v{vT0}, v{T0 + 1}, v{T0 + 2}')
    a(f'v_max3_f32 v{vT0}, v{vT0}, v{T0 + 3}, v{T1}')
    a(f'v_max3_f32 v{vT0}, v{vT0}, v{T1 + 1}, v{T1 + 2}')
    a(f'v_max_f32 v{vT1}, v{vT0}, v{T1 + 3}')
    a(f'v_max_f32 v{vT0}, v{vT0}, v{T1 + 3}')
    vmf(1)
    a(f'v_permlane16_swap_b32 v{vT0}, v{vT1}')
    a(f'v_max_f32 v{vT0}, v{vT0}, v{vT1}')
    a(f'v_mov_b32 v{vT1}, v{vT0}')
    vmf(1)
    a(f'v_permlane32_swap_b32 v{vT0}, v{vT1}')
    a(f'v_max_f32 v{vT0}, v{vT0}, v{vT1}')
    a(f'v_mul_f32 v{vT0}, s{sC}, v{vT0}')
    sc_regs = [T0 + k for k in range(8)] + [TM, TM + 1]
    a(f'v_fma_f32 v{TM}, v{TM}, s{sC}, -v{vT0}')
    a(f'v_fma_f32 v{TM + 1}, v{TM + 1}, s{sC}, -v{vT0}')
    for k in range(4):
        a(f'v_pk_fma_f32 {vr(T0 + 2 * k, 2)}, {vr(T0 + 2 * k, 2)}, {sr(sC, 2)}, {vr(vT0, 2)} op_sel_hi:[1,1,0] neg_lo:[0,0,1] neg_hi:[0,0,1]')
    for r in sc_regs:
        if vi[0] < 16:
            vmf(1)
        a(f'v_exp_f32 v{r}, v{r}')
    assert vi[0] == 16
    vx_ = [f'v_pk_add_f32 {vr(VACC + 4 * t, 2)}, {vr(VACC + 4 * t, 2)}, {vr(VACC + 4 * t + 2, 2)}' for t in range(2)]
    vx_ += [f'v_cvt_pk_bf16_f32 v{VACC + t}, v{VACC + 4 * t}, v{VACC + 4 * t + 1}' for t in range(2)]
    vx_ += [f'ds_write_b64 v{vL16}, {vr(VACC, 2)} offset:{L_VM + (w >> 1) * 1024 + (w & 1) * 8}']
    a(vx_[0])
    a(f'v_pk_add_f32 {vr(vT0, 2)}, {vr(T0, 2)}, {vr(T0 + 2, 2)}')
    a(f'v_pk_add_f32 {vr(TM + 2, 2)}, {vr(T1, 2)}, {vr(T1 + 2, 2)}')
    a(f'v_pk_add_f32 {vr(vT0, 2)}, {vr(vT0, 2)}, {vr(TM, 2)}')
    a(f'v_pk_add_f32 {vr(vT0, 2)}, {vr(vT0, 2)}, {vr(TM + 2, 2)}')
    a(vx_[1])
    a(f'v_add_f32 v{TM + 2}, v{vT0}, v{vT1}')
    a(f'v_add_f32 v{vT0}, v{vT0}, v{vT1}')
    a(vx_[2])
    a(vx_[3])
    a(f'v_permlane16_swap_b32 v{vT0}, v{TM + 2}')
    a(f'v_add_f32 v{vT1}, v{vT0}, v{TM + 2}')
    a(f'v_add_f32 v{vT0}, v{vT0}, v{TM + 2}')
    a(vx_[4])
    if kpv and w == 0:
        a(f's_add_u32 s{sT}, s{sStep}, 2')
        a(f's_min_u32 s{sT}, s{sT}, {NSEG}')
        a('s_mov_b64 exec, 0xfff')
        a(f'v_cmp_gt_u32 vcc, s{sT}, v{v9}')
        a('s_mov_b64 exec, -1')
    else:
        a(f's_mov_b64 vcc, {sr(sEM, 2)}')
    a(f'v_permlane32_swap_b32 v{vT0}, v{vT1}')
    a(f'v_add_f32 v{vT0}, v{vT0}, v{vT1}')
    a(f'v_rcp_f32 v{vT0}, v{vT0}')
    a(f's_cmp_eq_u32 s{sStep}, {NSEG - 1}')
    for k in range(5):
        r = sc_regs[2 * k]
        a(f'v_pk_mul_f32 {vr(r, 2)}, {vr(r, 2)}, {vr(vT0, 2)} op_sel_hi:[1,0]')
    for k in range(4):
        a(f'v_cvt_pk_bf16_f32 v{PX + k}, v{T0 + 2 * k}, v{T0 + 2 * k + 1}')
    a(f'v_cvt_pk_bf16_f32 v{PM}, v{TM}, v{TM + 1}')
    a(f'v_cvt_pk_bf16_f32 v{PM + 3}, v{TM}, v{TM + 1}')
    vsetup = [f's_mov_b32 m0, {L_VX + 2048 * w}', f's_add_u32 s{sT2}, s{sQKVn}, {8192 + 2048 * w}']
    b3chk = []
    if kpv:
        vsetup = [f's_mov_b32 m0, {L_KX + 4096 * w}', f's_add_u32 s{sT2}, s{sQKVn}, {4096 * w}']
        if w == 0:
            b3chk = [f's_cbranch_vccnz {FSL}', FRET + ':', f's_mov_b64 vcc, {sr(sEM, 2)}', f's_cmp_eq_u32 s{sStep}, {NSEG - 1}']
    if not vlate:
        a(vsetup[0])
        a(vsetup[1])
        a(f's_cmp_eq_u32 s{sStep}, {NSEG - 1}')
    stamp()
    VM_ = S_ + 56
    OA = [Q_ + 4 * U for U in range(4)] + [VX_ + 4 * U for U in range(4)]
    WA = [A_ + 4 * t for t in range(8)]
    AP = [Q_ + 8, Q_ + 12]
    s3 = [l for key in S3 for l in stage_reads(('o',) + key)]

    def pvx(U):
        return f'v_mfma_f32_16x16x32_bf16 {vr(OA[U], 4)}, {vr(VX_ + 4 * U, 4)}, {vr(PX, 4)}, 0'

    def pvm(U):
        return f'v_mfma_f32_16x16x16_bf16 {vr(OA[U], 4)}, {vr(VM_ + 2 * (U >> 1), 2)}, {vr(PM + 2 * (U & 1), 2)}, {vr(OA[U], 4)}'

    def dcvt(U):
        return [f'v_cvt_pk_bf16_f32 v{DD[U] + d}, v{OA[U] + 2 * d}, v{OA[U] + 2 * d + 1}' for d in range(2)]

    def apx(U):
        return f'v_cndmask_b32_dpp v{AP[U >> 2] + (U & 3)}, v{DD[U] + 1}, v{DD[U]}, vcc quad_perm:[0,1,0,1] row_mask:0xf bank_mask:0xf'

    def zmov(r):
        return [f'v_mov_b64 {vr(r, 2)}, 0', f'v_mov_b64 {vr(r + 2, 2)}, 0']
    kd = [f'buffer_load_dwordx4 v{vL16}, {WS}, s{sT2} offen offset:{1024 * p} sc1 lds' for p in range(4)]
    vmr = [f'ds_read_b128 {vr(VM_ + 4 * hh, 4)}, v{vL16} offset:{L_VM + 1024 * hh}' for hh in range(2)]
    zz = [l for t in range(8) for l in zmov(WA[t])]
    pv = [(pvx(0), ['s_waitcnt lgkmcnt(0)'] + b3chk + ['s_barrier'] + vmr),
          (pvx(1), zz[0:2]),
          (pvx(2), zz[2:4]),
          (pvx(3), zz[4:6]),
          (pvx(4), zz[6:8]),
          (pvm(0), zz[8:10]),
          (pvm(1), zz[10:12] + (vsetup[:1] if vlate else [])),
          (pvm(2), dcvt(0)),
          (pvm(3), dcvt(1)),
          (pvx(5), dcvt(2)),
          (pvm(4), dcvt(3)),
          (pvx(6), [apx(0), apx(1)]),
          (pvm(5), [apx(2), apx(3)]),
          (pvx(7), dcvt(4)),
          (pvm(6), dcvt(5)),
          (pvm(7), [f's_cbranch_scc1 {LAST}', apx(4), apx(5)])]
    for k, (m, fl) in enumerate(pv):
        a(m)
        if kpv:
            if k >= 1 and (k - 1) % 4 == w and (k - 1) // 4 < 3:
                a(kd[(k - 1) // 4])
            if k == 12 + w:
                a(kd[3])
        else:
            if not vlate and k == 7 + w:
                a(kd[0])
            if not vlate and k == 11 + w:
                a(kd[1])
        for l in fl:
            a(l)
        fstamp(f'pv{k}')
    PD = [ACC + 8, ACC + 12]
    d6, d7 = dcvt(6), dcvt(7)
    za = [[s3[0], s3[1], f's_and_b32 s{sT}, s{sStep}, 1', vsetup[1], d6[0]],
          [s3[2], f's_lshl_b32 s{sT}, s{sT}, 18', d6[1], d7[0]],
          [s3[3], f's_add_u32 s{sP}, s{sPb}, s{sT}', d7[1]],
          [apx(6), apx(7), f's_add_u32 s{sPr}, s{sP}, {4 * 8192}', f's_bfe_u32 s{sTag}, s{sStep}, 0x10001']]
    for t in range(4):
        a(smf(WA[t], AP[0], bop(('o', t, 0))))
        for l in za[t]:
            a(l)
    fstamp('z0a')
    for t in range(4):
        a(smf(WA[t], AP[1], bop(('o', t, 1))))
        a(s3[4 + t])
        if t < 2:
            a(zz[12 + 2 * t])
            a(zz[13 + 2 * t])
        else:
            a(f'v_add_f32 v{WA[0] + t - 2}, v{WA[0] + t - 2}, v{WA[0] + t}')
    fstamp('z1a')
    ep = []
    for t in (1, 2, 3):
        ep += [f'v_add_f32 v{WA[t] + x}, v{WA[t] + x}, v{WA[t] + 2 + x}' for x in range(2)]
    ep += [f'v_cvt_pk_bf16_f32 v{PD[0] + 2 * x + j}, v{WA[2 * j] + x}, v{WA[2 * j + 1] + x}' for x in range(2) for j in range(2)]
    ep += [f'v_and_or_b32 v{PD[0]}, v{PD[0]}, -2, s{sTag}']
    st0 = f'buffer_store_dwordx4 {vr(PD[0], 4)}, v{vPst}, {WS}, s{sP} offen{sc}'
    seq = [(t, 0) for t in range(4, 8)] + [(t, 1) for t in range(4, 8)]
    for k, (t, z) in enumerate(seq):
        a(smf(WA[t], AP[z], bop(('o', t, z))))
        if k < 5:
            for _ in range(2):
                a(ep.pop(0))
        elif k == 5:
            a(ep.pop(0))
        elif k == 6:
            a(st0)
            a(f'v_add_f32 v{WA[4]}, v{WA[4]}, v{WA[4] + 2}')
        elif k == 7:
            a(f'v_add_f32 v{WA[4] + 1}, v{WA[4] + 1}, v{WA[4] + 3}')
    assert not ep
    fstamp('z1b')
    for x in range(2):
        a(f'v_add_f32 v{WA[5] + x}, v{WA[5] + x}, v{WA[5] + 2 + x}')
    for x in range(2):
        a(f'v_add_f32 v{WA[6] + x}, v{WA[6] + x}, v{WA[6] + 2 + x}')
    a(f'v_cvt_pk_bf16_f32 v{PD[1]}, v{WA[4]}, v{WA[5]}')
    a(f'v_pk_add_f32 {vr(WA[7], 2)}, {vr(WA[7], 2)}, {vr(WA[7] + 2, 2)}')
    a(f'v_cvt_pk_bf16_f32 v{PD[1] + 2}, v{WA[4] + 1}, v{WA[5] + 1}')
    a(f'v_and_or_b32 v{PD[1]}, v{PD[1]}, -2, s{sTag}')
    for x in range(2):
        a(f'v_cvt_pk_bf16_f32 v{PD[1] + 2 * x + 1}, v{WA[6] + x}, v{WA[7] + x}')
    a(f'buffer_store_dwordx4 {vr(PD[1], 4)}, v{vPst}, {WS}, s{sPr} offen{sc}')
    stamp()
    R_, SELR, RACC, SEN, vRl, vMs = A_ + 8, X_, A_ + 16, A_ + 20, A_ + 22, A_ + 23
    if vlate:
        a(kd[0])
        a(kd[1])
    a(f's_lshl_b32 s{sT}, s{sH}, 13')
    a(f's_add_u32 s{sP}, s{sP}, s{sT}')
    a(f's_add_u32 s{sP}, s{sP}, {2048 * w}')
    pre = [f'v_and_b32 v{vT0}, 16, v{vL16}', f'v_mov_b32 v{vT1}, 0x3f80', f'v_lshlrev_b32 v{vT0}, v{vT0}, v{vT1}']
    pre += [f'v_cndmask_b32 v{SELR + k}, 0, v{vT0}, {sr(sSEL + 2 * k, 2)}' for k in range(4)]
    pre += [f'v_mov_b64 {vr(SEN, 2)}, -1']
    pre += [f'v_bfe_u32 v{vT0}, v{vL16}, 4, 1', f'v_lshrrev_b32 v{vT1}, 8, v{vL16}', f'v_lshl_add_u32 v{vT0}, v{vT1}, 1, v{vT0}',
            f'v_and_b32 v{vT1}, 32, v{vL16}', f'v_lshl_add_u32 v{vMs}, v{vT0}, 3, v{vT1}']
    pre += [f's_and_b32 s{sT}, s{sStep}, 3', f's_lshl_b32 s{sT}, s{sT}, 13', f's_add_u32 s{sM}, s{sMb}, s{sT}',
            f's_add_u32 s{sMw}, s{sM}, {2048 * w}', f's_xor_b32 s{sT}, s{sT}, {2 << 13}', f's_add_u32 s{sMr}, s{sMb}, s{sT}',
            f's_lshl_b32 s{sT}, s{sH}, 8', f's_add_u32 s{sM}, s{sM}, s{sT}', f's_add_u32 s{sMr}, s{sMr}, s{sT}',
            f's_mov_b32 s{sOXp}, s{sOX}', f's_mov_b32 m0, {L_MEM + 2048 * w if kreal or kpv else L_KX + 2048 * w}']
    pre += [f's_mov_b32 s{sSpin}, 0']
    pre += ox_pack()
    pre += [l for key in S1A for l in stage_reads(('qk',) + key)]
    pre += [l for t in range(4) for l in zmov(ACC + 4 * t)]
    npre = opt.get('npre', 45)
    rl = [f'buffer_load_dwordx4 {vr(R_ + 4 * u, 4)}, v{vL16}, {WS}, s{sP} offen offset:{1024 * u} sc1' for u in range(2)]
    for k, l in enumerate(pre[:npre]):
        if opt.get('dummy1') == k:
            for x in rl:
                a(x.replace(vr(R_, 4), vr(A_ + 24, 4)).replace(vr(R_ + 4, 4), vr(A_ + 28, 4)))
        a(l)
    for _ in range(opt.get('d1', 0)):
        a('s_nop 15')
    if opt.get('a1') is not None:
        a(f's_waitcnt vmcnt({opt["a1"]})')
    for l in rl:
        a(l)
    for l in pre[npre:]:
        a(l)
    RT, ROK = a.newlabel('RT'), a.newlabel('ROK')
    a.label(RT)
    a(f'v_mfma_f32_16x16x32_bf16 {vr(RACC, 4)}, {vr(SELR, 4)}, {vr(R_, 4)}, 0')
    a(f'v_xor_b32 v{vT0}, s{sTag}, v{R_}')
    a(f'v_mfma_f32_16x16x32_bf16 {vr(RACC, 4)}, {vr(SELR, 4)}, {vr(R_ + 4, 4)}, {vr(RACC, 4)}')
    a(f'v_bitop3_b32 v{vT0}, v{vT0}, v{R_ + 4}, s{sTag} bitop3:0xf6')
    a(f'v_and_b32 v{vT0}, 1, v{vT0}')
    a(f'v_cmp_ne_u32 vcc, 0, v{vT0}')
    a(f's_cbranch_vccnz {ROK}')
    RT1 = RT
    for sh in (4, 8):
        for k in range(4):
            a(f'v_add_f32_dpp v{RACC + k}, v{RACC + k}, v{RACC + k} row_ror:{sh} row_mask:0xf bank_mask:0xf')
    a(f'v_cvt_pk_bf16_f32 v{vT0}, v{RACC}, v{RACC + 1}')
    a(f'v_cvt_pk_bf16_f32 v{vT1}, v{RACC + 2}, v{RACC + 3}')
    a('s_mov_b64 exec, 0xf000f')
    a(f'v_min_u32 v{vT0}, -2, v{vT0}')
    a(f'buffer_store_dwordx2 {vr(vT0, 2)}, v{vMs}, {WS}, s{sM} offen offset:{64 * w}{sc}')
    stamp()
    a(f'buffer_store_dwordx2 {vr(SEN, 2)}, v{vMs}, {WS}, s{sMr} offen offset:{64 * w}{sc}')
    a('s_mov_b64 exec, -1')
    a(f's_add_u32 s{sStep}, s{sStep}, 1')
    a(f's_mov_b32 s{sQKV}, s{sQKVn}')
    a(f's_add_u32 s{sOX}, s{sOX}, 8192')
    for l in sal:
        a(l)
    qafter = opt.get('qafter', 0)
    if not qearly and not qafter:
        for l in qld:
            a(l)
    if not kreal and not kpv:
        a(f's_add_u32 s{sT}, s{sQKV}, {2048 * w}')
        for p in range(2):
            a(f'buffer_load_dwordx4 v{vL16}, {WS}, s{sT} offen offset:{1024 * p} sc1 lds')
        a(f's_mov_b32 m0, {L_MEM + 2048 * w}')
    if w == 0 and fhop:
        a(f's_add_u32 s{sT}, s{sStep}, 2')
        a(f's_min_u32 s{sT}, s{sT}, {NSEG}')
        a('s_mov_b64 exec, 0xfff')
        a(f'v_cmp_gt_u32 vcc, s{sT}, v{v9}')
        a('s_mov_b64 exec, -1')
        a(f's_cbranch_vccnz {FSL}')
        a.label(FRET)
    for _ in range(opt.get('d2', 0)):
        a('s_nop 7')
    if opt.get('dummy2'):
        for k in range(2):
            a(f'buffer_load_dwordx4 v{vL16}, {WS}, s{sMw} offen offset:{1024 * k} sc1 lds')
    if opt.get('a2', 0) is not None:
        a(f's_waitcnt vmcnt({opt.get("a2", 0)})')
    md = [f'buffer_load_dwordx4 v{vL16}, {WS}, s{sMw} offen offset:{1024 * k} sc1 lds' for k in range(2)]
    for l in md:
        a(l)
    if qafter:
        for l in qld:
            a(l)
    H2, RT, MRE = a.newlabel('H2'), a.newlabel('MT'), a.newlabel('MRE')
    a(f's_branch {H2}')
    i_h2 = len(a0.items)
    a.label(H2)
    a(f's_waitcnt vmcnt({2 if qafter else 0})')
    a.label(RT)
    a(memrd(0))
    a(memrd(1))
    a(f'v_max_u32 v{vT0}, v{A_}, v{A_ + 2}')
    a(f'v_max3_u32 v{vT0}, v{vT0}, v{A_ + 4}, v{A_ + 6}')
    a(f'v_cmp_eq_u32 vcc, -1, v{vT0}')
    a(f's_cbranch_vccnz {MRE}')
    if prof:
        stamp()
        a('s_waitcnt lgkmcnt(0)')
        a(f's_lshl_b32 s{sT}, s{sL}, 5')
        a(f's_add_u32 s{sT}, s{sT}, s{sH}')
        a(f's_lshl_b32 s{sT}, s{sT}, 2')
        a(f's_add_u32 s{sT}, s{sT}, {w}')
        a(f's_lshl_b32 s{sT}, s{sT}, 6')
        a(f's_add_u32 s{sT}, s{sT}, s{sStep}')
        a(f's_lshl_b32 s{sT}, s{sT}, 6')
        a(f's_add_u32 s{sT}, s{sT}, {PROF_OFF}')
        for k in range(10):
            a(f'v_writelane_b32 v{vT0}, s{sPROF + 2 * k}, {k}')
        a(f'v_writelane_b32 v{vT0}, s{sSpin}, 15')
        a(f'v_lshrrev_b32 v{vT1}, 2, v{vL16}')
        a('s_mov_b64 exec, 0xffff')
        a(f'buffer_store_dword v{vT0}, v{vT1}, {WS}, s{sT} offen')
        a('s_mov_b64 exec, -1')
    tail = a0.items[i_h2:]
    del a0.items[i_h2:]
    a0.items[i_loop:i_loop] = tail
    a.label(ROK)
    a('s_mov_b64 exec, vcc')
    for l in rl:
        a(l)
    a('s_mov_b64 exec, -1')
    spin_guard(a, sSpin, fail)
    a(f's_branch {RT1}')
    a.label(MRE)
    a('s_mov_b64 exec, vcc')
    for l in md:
        a(l)
    a('s_mov_b64 exec, -1')
    spin_guard(a, sSpin, fail)
    if opt.get('mwait'):
        a('s_waitcnt vmcnt(0)')
    a(f's_branch {RT}')
    if w == 0 or fresh:
        a.label(FSL)
        flag_wait(a, sT2 if fresh else sT, fail)
        a(f's_branch {FRET}')
    a.label(LAST)
    for U in range(6, 8):
        for l in dcvt(U):
            a(l)
    for l in ox_pack():
        a(l)
    for u in range(2):
        a(ox_store(u, sOX))
    a(f's_branch {done}')
```

```python
import math
NSEG = 64
KA_X, KA_MEM0, KA_WQ, KA_WK, KA_WV, KA_WO, KA_SEG, KA_BX, KA_WQKV, KA_BWO, KA_OUT, KA_DBG, KA_WS = [8 * i for i in range(13)]
WS_BYTES = 268435456
QKV_BLK = 24576
QKV_OFF = 0
OX_OFF = 96 << 20
XN_OFF = 130 << 20
X2_OFF = 134 << 20
HALO_OFF = 136 << 20
SYNC_OFF = 146 << 20
CPART_OFF = SYNC_OFF
CMEM_OFF = CPART_OFF + (1 << 20)
WBR_OFF = CMEM_OFF + (64 << 10)
WBR_SIZE = (256 + 512 + 64) << 10
SYNC_BYTES = 6 << 20
assert WBR_OFF + 6 * WBR_SIZE <= SYNC_OFF + SYNC_BYTES
FLAG_OFF = SYNC_OFF + SYNC_BYTES
PROF_OFF = 200 << 20
SCALE_A = 128 ** -0.5 * math.log2(math.e)
SCALE_B = 16 ** -0.5 * math.log2(math.e)
NEG = 0xf149f2ca
SPIN_MAX = 1 << 18
WS = 's[12:15]'
sH, sL, sFAST, sW = 16, 17, 18, 19


def f32bits(x):
    import struct
    return struct.unpack('<I', struct.pack('<f', x))[0]


def tq(i):
    return 2 * (i >> 2) + (i & 1)


def hf(i):
    return (i >> 1) & 1


def mask64(fn):
    m = 0
    for l in range(64):
        if fn(l & 15, l >> 4):
            m |= 1 << l
    return m


def smov64(a, s, m):
    a(f's_mov_b32 s{s}, {m & 0xffffffff:#x}')
    a(f's_mov_b32 s{s + 1}, {m >> 32:#x}')


def spin_guard(a, sreg, fail):
    a(f's_add_u32 s{sreg}, s{sreg}, 1')
    a(f's_cmp_gt_u32 s{sreg}, {SPIN_MAX}')
    a(f's_cbranch_scc1 {fail}')
```

```python
from asmlib import *
from layout import *

vL16, vC, vSt, vT0, vT1 = 0, 1, 2, 3, 4
vVw, vVr, vC0 = 52, 53, 54
vD, vF, vF0 = 8, 16, 128
ACC, PK, SEN, FR, ST = 24, 40, 48, 64, 96
(sN0, sN1, sCL, sCS, sNL, sNS, sML, sMS, sSrc, sSrc2, sFl0, sPF, sPV, sSpin, sT, sT2, sLN, sLM,
 sDD, sDC, sDF, sDV, sBC, sBN, sBM, sM0, sM1, sW13, sED, sEC) = range(20, 50)
sQF, sQV, sPL = 54, 55, 56
L_VERD = 98304
HEAD = 17


def emit_proj_setup(a):
    a(f's_load_dwordx4 s[40:43], s[0:1], {KA_WQ}')
    a(f's_load_dwordx2 s[44:45], s[0:1], {KA_WV}')
    a('v_lshrrev_b32 v1, 4, v0')
    a('v_and_b32 v2, 15, v0')
    a('v_lshlrev_b32 v3, 13, v1')
    a('v_lshl_add_u32 v3, v2, 4, v3')
    a('s_waitcnt lgkmcnt(0)')
    a(f's_cmp_eq_u32 s{sL}, 0')
    a('s_cselect_b32 s4, s42, s44')
    a('s_cselect_b32 s5, s43, s45')
    a(f's_cmp_eq_u32 s{sL}, 2')
    a('s_cselect_b32 s4, s40, s4')
    a('s_cselect_b32 s5, s41, s5')
    a('s_mov_b32 s6, 0x400000')
    a('s_mov_b32 s7, 0x20000')
    a(f's_lshl_b32 s20, s{sH}, 8')
    a(f's_lshl_b32 s21, s{sW}, 15')
    a('s_add_u32 s20, s20, s21')
    a(f's_lshl_b32 s21, s{sW}, 10')
    for q in range(32):
        a(f's_add_u32 m0, s21, {q * 4096}')
        a(f's_add_u32 s22, s20, {q * 16 * 8192}')
        a('buffer_load_dwordx4 v3, s[4:7], s22 offen lds')
    a('v_lshrrev_b32 v4, 2, v2')
    a('v_lshrrev_b32 v5, 1, v1')
    a('v_lshl_add_u32 v4, v5, 3, v4')
    a('v_lshlrev_b32 v4, 8, v4')
    a('v_and_b32 v5, 1, v1')
    a('v_and_b32 v6, 3, v2')
    a('v_lshrrev_b32 v7, 1, v6')
    a('v_and_b32 v8, 1, v6')
    a('v_lshl_add_u32 v7, v8, 1, v7')
    a(f's_cmp_eq_u32 s{sL}, 1')
    a('s_cselect_b64 vcc, -1, 0')
    a('v_cndmask_b32 v6, v7, v6, vcc')
    a('v_lshl_add_u32 v4, v6, 3, v4')
    a(f's_lshl_b32 s21, s{sW}, 6')
    a(f's_and_b32 s22, s{sW}, 1')
    a('s_lshl_b32 s22, s22, 6')
    a(f's_lshr_b32 s23, s{sW}, 1')
    a('s_lshl_b32 s23, s23, 5')
    a('s_add_u32 s22, s22, s23')
    a(f's_cmp_eq_u32 s{sL}, 2')
    a('s_cselect_b32 s21, s22, s21')
    a('s_cselect_b32 s22, 7, 5')
    a('v_lshlrev_b32 v5, s22, v5')
    a('v_add3_u32 v4, v4, v5, s21')
    a('v_add_u32 v5, 0x10000, v4')
    a('s_waitcnt vmcnt(0)')
    a('s_barrier')
    for k in range(32):
        for jj in range(2):
            off = (k & 15) * 4096 + jj * 1024
            a(f'ds_read_b64_tr_b16 {ar(4 * k + 2 * jj, 2)}, v{4 + (k >> 4)} offset:{off}')
    a('s_waitcnt lgkmcnt(0)')
    a('s_barrier')
    a('v_mov_b32 v7, v0')
    a(f'v_lshlrev_b32 v{vL16}, 4, v7')
    a(f's_lshl_b32 s21, s{sW}, 13')
    a(f'v_add_u32 v{vC0}, s21, v{vL16}')
    a(f's_and_b32 s21, s{sW}, 1')
    a('s_lshl_b32 s21, s21, 3')
    for j in range(8):
        a(f's_add_u32 s22, s21, {j}')
        a(f'v_xor_b32 v{vD + j}, s22, v7')
        a(f'v_lshlrev_b32 v{vD + j}, 4, v{vD + j}')
    a('v_and_b32 v5, 31, v7')
    a('v_lshrrev_b32 v6, 5, v7')
    a('v_and_b32 v3, 15, v7')
    for b in range(8):
        a(f'v_add_u32 v4, {2 * b}, v6')
        a('v_xor_b32 v4, v4, v3')
        a('v_lshlrev_b32 v4, 4, v4')
        a(f'v_lshl_add_u32 v{vF + b}, v5, 10, v4')
        a(f'v_mov_b32 v{vF0 + b}, v{vF + b}')
    a(f'v_mov_b64 {vr(SEN, 2)}, -1')
    a(f'v_mov_b64 {vr(SEN + 2, 2)}, -1')
    a(f'v_mov_b32 v{vVr}, {L_VERD}')
    a(f's_lshl_b32 s21, s{sW}, 2')
    a(f'v_add_u32 v{vVw}, s21, v{vVr}')


def emit_proj_loop(a, mat, fail, done, opt=None):
    opt = opt or {}
    head = opt.get('head', HEAD)
    if mat == 0:
        a('v_bfe_u32 v3, v5, 3, 1')
        a('v_lshlrev_b32 v3, 12, v3')
        a('v_lshl_add_u32 v3, v6, 8, v3')
        a('v_lshrrev_b32 v4, 4, v5')
        a('v_lshl_add_u32 v3, v4, 7, v3')
        a('v_and_b32 v4, 7, v5')
        a('v_lshl_add_u32 v3, v4, 4, v3')
        a(f's_lshl_b32 s{sT}, s{sW}, 10')
        cstep = 512
    elif mat == 1:
        a('v_and_b32 v3, 1, v5')
        a('v_lshlrev_b32 v3, 10, v3')
        a('v_lshl_add_u32 v3, v6, 8, v3')
        a('v_lshrrev_b32 v4, 1, v5')
        a('v_lshl_add_u32 v3, v4, 4, v3')
        a(f's_lshl_b32 s{sT}, s{sW}, 11')
        a(f's_add_u32 s{sT}, s{sT}, 8192')
        cstep = 512
    else:
        a('v_lshrrev_b32 v3, 3, v5')
        a('v_lshlrev_b32 v3, 11, v3')
        a('v_lshl_add_u32 v3, v6, 8, v3')
        a('v_bfe_u32 v4, v5, 2, 1')
        a('v_lshl_add_u32 v3, v4, 7, v3')
        a('v_and_b32 v4, 3, v5')
        a('v_lshl_add_u32 v3, v4, 4, v3')
        a(f's_and_b32 s{sT}, s{sW}, 1')
        a(f's_lshl_b32 s{sT}, s{sT}, 10')
        a(f's_lshr_b32 s{sT2}, s{sW}, 1')
        a(f's_lshl_b32 s{sT2}, s{sT2}, 9')
        a(f's_add_u32 s{sT}, s{sT}, s{sT2}')
        a(f's_add_u32 s{sT}, s{sT}, 16384')
        a('s_mov_b32 s50, 0x33333333')
        a('s_mov_b32 s51, 0x33333333')
        cstep = 64
    a(f'v_add_u32 v{vSt}, s{sT}, v3')
    a(f's_lshl_b32 s{sFl0}, s{sH}, 8')
    a(f's_lshl_b32 s{sT}, s{sW}, 4')
    a(f's_add_u32 s{sFl0}, s{sFl0}, s{sT}')
    a(f's_add_u32 s{sFl0}, s{sFl0}, {FLAG_OFF + 64 * mat}')
    for r in (sPF, sQF, sED, sEC):
        a(f's_mov_b32 s{r}, {WS_BYTES}')
    a(f's_mov_b32 s{sPV}, 0')
    a(f's_mov_b32 s{sQV}, 0')
    a(f's_mov_b32 s{sPL}, 0')
    a(f's_mov_b32 s{sSpin}, 0')
    a(f's_lshl_b32 s{sW13}, s{sW}, 13')

    def src_addr(l, sg, buf):
        return [f's_lshl_b32 s{sSrc}, s{l}, 6', f's_add_u32 s{sSrc}, s{sSrc}, s{sg}', f's_lshl_b32 s{sSrc}, s{sSrc}, 15',
                f's_add_u32 s{sSrc}, s{sSrc}, s{sW13}', f's_add_u32 s{sSrc}, s{sSrc}, {XN_OFF}', f's_add_u32 s{sSrc2}, s{sSrc}, 4096',
                f's_add_u32 s{sM0}, s{buf}, s{sW13}', f's_add_u32 s{sM1}, s{sM0}, 4096']
    loads = [(f's_mov_b32 m0, s{sM0 if j == 0 else sM1}\n' if j % 4 == 0 else '') +
             f'buffer_load_dwordx4 v{vD + j}, {WS}, s{sSrc if j < 4 else sSrc2} offen offset:{1024 * (j & 3)} sc1 lds' for j in range(8)]

    def flag_store(fa, fv):
        return [f'v_mov_b32 v{vT0}, s{fv}', 's_mov_b64 exec, 1', f'buffer_store_dword v{vT0}, v{vL16}, {WS}, s{fa} offen sc1', 's_mov_b64 exec, -1']
    stores = [f'buffer_store_dwordx4 {vr(PK + 4 * c, 4)}, v{vSt}, {WS}, s{sED} offen offset:{cstep * c} sc1' for c in range(2)]
    if mat < 2:
        stores.append(f'buffer_store_dwordx4 {vr(SEN, 4)}, v{vL16}, {WS}, s{sEC} offen sc1')
    nst = len(stores)

    def fread(k):
        return f'ds_read_b128 {vr(FR + 4 * (k & 7), 4)}, v{vF + (k & 7)} offset:{256 * (k >> 3)}'

    def mfma(k):
        fr, w = vr(FR + 4 * (k & 7), 4), ar(4 * k, 4)
        A, B = (fr, w) if mat == 1 else (w, fr)
        return f'v_mfma_f32_32x32x16_bf16 {vr(ACC, 16)}, {A}, {B}, {0 if k == 0 else vr(ACC, 16)}'
    skip = opt.get('skip', 0)
    smask = sum(1 << j for j in range(1, 64) if not skip or j % skip) | 1
    smov64(a, 58, smask)
    pick = [[f's_bitcmp1_b64 s[58:59], s{sN1}', f's_cselect_b32 s{sT}, s{sNL}, 0', f's_cmp_lt_u32 s{sN0}, {head}', f's_cselect_b32 s{sT}, 1, s{sT}',
             f's_cmp_lt_u32 s{sN0}, {NSEG}', f's_cselect_b32 s{sT}, s{sT}, 0'],
            [f's_cmp_ge_u32 s{sN1}, {NSEG}', f's_cselect_b32 s{sLM}, 1, 0', f's_min_u32 s{sT2}, s{sN1}, {NSEG - 1}'],
            [f's_cmp_eq_u32 s{sT}, 1', f's_cselect_b32 s{sMS}, s{sN0}, s{sT2}', f's_cselect_b32 s{sLM}, 0, s{sLM}', f's_cselect_b32 s{sML}, 0, 1'],
            [f's_add_u32 s{sN0}, s{sN0}, s{sT}', f's_add_u32 s{sN1}, s{sN1}, s{sML}']]
    sa = src_addr(sML, sMS, sBM)
    pick += [sa[:4], sa[4:]]
    misc = [[f's_lshl_b32 s{sT}, s{sCL}, 5', f's_add_u32 s{sT}, s{sT}, s{sH}', f's_lshl_b32 s{sT}, s{sT}, 6', f's_add_u32 s{sT}, s{sT}, s{sCS}'],
            [f's_mul_i32 s{sDD}, s{sT}, {QKV_BLK}', f's_lshl_b32 s{sDC}, s{sT}, 13', f's_lshl_b32 s{sT2}, s{sW}, 10', f's_add_u32 s{sDC}, s{sDC}, s{sT2}'],
            [f's_add_u32 s{sDC}, s{sDC}, {OX_OFF + 3 * 8192 + 4096 * mat}', f's_cmp_ge_u32 s{sCS}, {NSEG - 3}', f's_cselect_b32 s{sDC}, s14, s{sDC}'],
            [f's_lshl_b32 s{sDF}, s{sCL}, 13', f's_add_u32 s{sDF}, s{sDF}, s{sFl0}', f's_add_u32 s{sDV}, s{sCS}, 1']]
    rotate = [f's_mov_b32 s{sCL}, s{sNL}', f's_mov_b32 s{sCS}, s{sNS}', f's_mov_b32 s{sNL}, s{sML}', f's_mov_b32 s{sNS}, s{sMS}',
              f's_mov_b32 s{sT}, s{sBC}', f's_mov_b32 s{sBC}, s{sBN}', f's_mov_b32 s{sBN}, s{sBM}', f's_mov_b32 s{sBM}, s{sT}',
              f's_mov_b32 s{sLN}, s{sLM}']
    rback = [f'ds_read_b128 {vr(ST + 4 * j, 4)}, v{vC} offset:{1024 * j}' for j in range(8)]
    chk = [f'v_max_u32 v{vT1}, v{ST}, v{ST + 2}'] + [f'v_max3_u32 v{vT1}, v{vT1}, v{ST + 4 * j}, v{ST + 4 * j + 2}' for j in range(1, 8)]
    chk.append(f'v_cmp_eq_u32 vcc, -1, v{vT1}')
    for r, v in ((sCL, 0), (sCS, 0), (sNL, 0), (sNS, 1), (sN0, 2), (sN1, 0), (sBC, 0), (sBN, 32768), (sBM, 65536), (sLN, 0)):
        a(f's_mov_b32 s{r}, {v}')
    for l in src_addr(sCL, sCS, sBC) + loads + src_addr(sNL, sNS, sBN) + loads:
        a(l)
    a('s_waitcnt vmcnt(0)')
    LOOP, SLOW, CHK, GO, FIN = [a.newlabel(x) for x in ('PL', 'PS', 'PCHK', 'PGO', 'PFIN')]
    a('s_barrier')
    for k in range(4):
        a(fread(k))
    a.label(LOOP)
    if opt.get('prof') == 1:
        a('s_memrealtime s[70:71]')
        a('s_waitcnt lgkmcnt(0)')
        a(f's_lshl_b32 s72, s{sCL}, 6')
        a(f's_add_u32 s72, s72, s{sCS}')
        a(f's_lshl_b32 s72, s72, 7')
        a(f's_lshl_b32 s73, s{sL}, 5')
        a(f's_add_u32 s73, s73, s{sH}')
        a('s_add_u32 s72, s72, s73')
        a('s_lshl_b32 s72, s72, 2')
        a(f's_add_u32 s72, s72, {PROF_OFF + (9 << 20)}')
        a(f'v_mov_b32 v{vT0}, s70')
        if opt.get('pst') is not None:
            a('s_sub_u32 s74, s78, s76')
            a(f'v_mov_b32 v{vT0}, s74')
        a('s_mov_b64 exec, 1')
        a(f'buffer_store_dword v{vT0}, v{vL16}, {WS}, s72 offen')
        a('s_mov_b64 exec, -1')
        a('s_memtime s[76:77]')
    ps = lambda i: a('s_memtime s[78:79]') if opt.get('pst') == i else None
    kc = opt.get('kc', 8)
    for k in range(32):
        ps(k)
        a(mfma(k))
        if k < 28:
            a(fread(k + 4))
        if k < 6:
            for l in pick[k]:
                a(l)
        if k == 6:
            a(f'v_add_u32 v{vC}, s{sBN}, v{vC0}')
        if k in (1, 3, 5) and (k - 1) // 2 < nst:
            a(stores[(k - 1) // 2])

        def when_handoff(lines):
            L = a.newlabel('PH')
            a(f's_cmp_eq_u32 s{sNL}, 0')
            a(f's_cbranch_scc1 {L}')
            for l in lines:
                a(l)
            a.label(L)
        if k == kc:
            a(f's_waitcnt vmcnt({nst + 1 + (opt.get("prof") == 1)})')
            for l in flag_store(sQF, sQV):
                a(l)
            a(f's_mov_b32 s{sQF}, {WS_BYTES}')
            a('s_mov_b64 vcc, 0')
            when_handoff(rback[:4])
        if k == kc + 1:
            when_handoff(rback[4:])
        if k == kc + 3:
            when_handoff(chk[:5])
        if k == kc + 4:
            when_handoff(chk[5:])
        if k == kc + 5:
            a('s_cmp_lg_u64 vcc, 0')
            a(f's_cselect_b32 s{sT}, 1, 0')
            a(f'v_mov_b32 v{vT0}, s{sT}')
            a(f'ds_write_b32 v{vVw}, v{vT0}')
        if 14 <= k < 30 and k % 2 == 0:
            a(loads[(k - 14) // 2])
        if 19 <= k < 27 and k % 2 == 1:
            for l in misc[(k - 19) // 2]:
                a(l)
        if k >= 24:
            a(f'v_add_u32 v{vF + k - 24}, s{sBN}, v{vF0 + k - 24}')
        if k == 29:
            a('s_waitcnt lgkmcnt(0)')
            a('s_barrier')
            a(f'ds_read_b128 {vr(ST, 4)}, v{vVr}')
        if k == 30:
            a(fread(0))
            a(fread(1))
            L0, L1 = a.newlabel('PF'), a.newlabel('PG')
            a(f's_cmp_eq_u32 s{sPL}, 1')
            a(f's_cbranch_scc1 {L0}')
            a(f's_mov_b32 s{sQF}, s{sPF}')
            a(f's_mov_b32 s{sQV}, s{sPV}')
            a(f's_mov_b32 s{sPF}, {WS_BYTES}')
            a(f's_branch {L1}')
            a.label(L0)
            a('s_waitcnt vmcnt(9)')
            a.label(L1)
            for l in flag_store(sPF, sPV):
                a(l)
        if k == 31:
            a(fread(2))
            a(fread(3))
            a(f'v_or3_b32 v{vT1}, v{ST}, v{ST + 1}, v{ST + 2}')
            a(f'v_or3_b32 v{vT1}, v{vT1}, v{ST + 3}, s{sLN}')
            a(f'v_cmp_ne_u32 vcc, 0, v{vT1}')
            a(f'v_xor_b32 v{vVw}, 16, v{vVw}')
            a(f'v_xor_b32 v{vVr}, 16, v{vVr}')
            for d, r in ((sED, sDD), (sEC, sDC), (sPF, sDF), (sPV, sDV), (sPL, sCL)):
                a(f's_mov_b32 s{d}, s{r}')
    def pack_store(now):
        if mat == 2:
            for j in range(8):
                a(f'v_cvt_pk_bf16_f32 v{ST + j}, v{ACC + 2 * j}, v{ACC + 2 * j + 1}')
            a('s_mov_b64 vcc, s[50:51]')
            for j in range(4):
                a(f'v_cndmask_b32_dpp v{PK + j}, v{ST + j}, v{ST + 4 + j}, vcc quad_perm:[0,1,0,1] row_mask:0xf bank_mask:0xf')
            if now:
                a(stores[0])
            a('s_not_b64 vcc, vcc')
            for j in range(4):
                a(f'v_cndmask_b32_dpp v{PK + 4 + j}, v{ST + 4 + j}, v{ST + j}, vcc quad_perm:[2,3,2,3] row_mask:0xf bank_mask:0xf')
            if now:
                a(stores[1])
        else:
            for c in range(2):
                for j in range(4):
                    a(f'v_cvt_pk_bf16_f32 v{PK + 4 * c + j}, v{ACC + 8 * c + 2 * j}, v{ACC + 8 * c + 2 * j + 1}')
                if now:
                    a(stores[c])
        if now:
            for l in stores[2:]:
                a(l)
            a(f's_mov_b32 s{sED}, {WS_BYTES}')
            a(f's_mov_b32 s{sEC}, {WS_BYTES}')
    ps(32)
    a(f's_cbranch_vccnz {SLOW}')
    for l in rotate:
        a(l)
    pack_store(False)
    ps(33)
    a(f's_branch {LOOP}')
    a.label(SLOW)
    for l in src_addr(sNL, sNS, sBN) + loads:
        a(l)
    pack_store(True)
    a(f's_mov_b32 s{sSpin}, 0')
    a(f's_waitcnt vmcnt({nst})')
    a(f's_cmp_eq_u32 s{sLN}, 1')
    a(f's_cbranch_scc1 {FIN}')
    a.label(CHK)
    for l in rback + chk:
        a(l)
    a(f's_cbranch_vccz {GO}')
    spin_guard(a, sSpin, fail)
    RE = a.newlabel('PRE')
    a(f's_cmp_eq_u32 s{sPF}, s14')
    a(f's_cbranch_scc1 {RE}')
    a('s_waitcnt vmcnt(0)')
    for l in flag_store(sQF, sQV) + flag_store(sPF, sPV):
        a(l)
    a(f's_mov_b32 s{sQF}, {WS_BYTES}')
    a(f's_mov_b32 s{sPF}, {WS_BYTES}')
    a.label(RE)
    if opt.get('pprobe', 0):
        PR = a.newlabel('PP')
        if opt['pprobe'] == 1:
            a(f'v_and_b32 v{vT0}, 48, v{vL16}')
            a(f'v_and_b32 v{vT1}, 192, v{vL16}')
            a(f'v_lshlrev_b32 v{vT0}, 4, v{vT0}')
            a(f'v_lshl_add_u32 v{vT0}, v{vT1}, 5, v{vT0}')
            a('s_mov_b64 exec, 0xffff')
        else:
            a(f'v_lshlrev_b32 v{vT0}, 3, v{vL16}')
        a.label(PR)
        a(f'buffer_load_dword v{vT1}, v{vT0}, {WS}, s{sSrc} offen sc1')
        spin_guard(a, sSpin, fail)
        a(f'v_cmp_eq_u32 vcc, -1, v{vT1}')
        if opt['pprobe'] == 2:
            a('s_mov_b64 exec, vcc')
        a(f's_cbranch_vccnz {PR}')
        a('s_mov_b64 exec, -1')
    for l in loads:
        a(l)
    a('s_waitcnt vmcnt(0)')
    a(f's_branch {CHK}')
    a.label(GO)
    for l in rotate:
        a(l)
    a('s_barrier')
    for k in range(4):
        a(fread(k))
    a(f's_branch {LOOP}')
    a.label(FIN)
    a('s_waitcnt vmcnt(0)')
    for l in flag_store(sQF, sQV) + flag_store(sPF, sPV):
        a(l)
    a(f's_branch {done}')
```

```python
from asmlib import *
from layout import *

L_XT, L_WV, L_OB, L_ST, L_STG = 0, 32768, 65536, 68608, 69632
vL16, vOr, vVr, vP1, vP2, vRl, vRo, vOw, vOrd, vStw, vStr, vC = range(12)
vXr, vD, MSK, SEL, X1 = 12, 16, 20, 28, 32
W0 = 36
WB2, WQ, WK = 96, 128, 192
RES = 's[4:7]'
OUT = 's[8:11]'
(sSeg, sTag, sSpin, sT, sT2, sRb, sP1, sP1r, sP2, sP2r, sXw, sXc, sXr, sO, sRes, sHw, sHr, sLay, sClr, sBuf, sBuf2,
 sC, sC1, sInv, sEps, sTask, sO2) = range(20, 47)
sPROF = 66


def emit_wb_setup(a, hook, st=None, late=1):
    a(f's_load_dwordx2 s[48:49], s[0:1], {KA_WO}')
    a(f's_load_dwordx4 s[52:55], s[0:1], {KA_WQKV}')
    a('v_and_b32 v1, 15, v0')
    a('v_lshrrev_b32 v2, 4, v0')
    a('v_lshlrev_b32 v3, 13, v2')
    a('v_lshl_add_u32 v3, v1, 3, v3')
    a('v_lshrrev_b32 v4, 2, v0')
    a('s_movk_i32 s3, 3072')
    a('v_mul_lo_u32 v4, v4, s3')
    a('v_and_b32 v5, 3, v0')
    a('v_lshl_add_u32 v4, v5, 4, v4')
    a('s_waitcnt lgkmcnt(0)')
    a('s_mov_b32 s50, 0x400000')
    a('s_mov_b32 s51, 0x20000')
    a('s_mov_b32 s56, s54')
    a('s_mov_b32 s57, s55')
    a('s_mov_b32 s58, 0x80000')
    a('s_mov_b32 s59, 0x20000')
    a('s_mov_b32 s54, 0x180000')
    a('s_mov_b32 s55, 0x20000')
    a(f's_lshl_b32 s20, s{sH}, 6')
    a(f's_mul_i32 s21, s{sW}, {128 * 3072}')
    a('s_add_u32 s20, s20, s21')
    a(f's_lshl_b32 s21, s{sW}, 13')
    dma = []
    for mat, base in ((0, L_STG), (1, L_STG + 32768), (2, L_WV)):
        for q in range(8):
            dma.append([f's_add_u32 m0, s21, {base + q * 1024}', f's_add_u32 s22, s20, {q * 16 * 3072 + mat * 1024}',
                        'buffer_load_dwordx4 v4, s[52:55], s22 offen lds'])
    if not late:
        for g in dma:
            for l in g:
                a(l)
    a('s_mov_b32 s26, 0x05040100')
    a('s_mov_b32 s27, 0x07060302')
    a(f's_lshr_b32 s23, s{sH}, 1')
    a('s_lshl_b32 s23, s23, 19')
    a(f's_and_b32 s24, s{sH}, 1')
    a('s_lshl_b32 s24, s24, 9')
    a('s_add_u32 s23, s23, s24')
    a(f's_lshl_b32 s24, s{sW}, 7')
    a('s_add_u32 s23, s23, s24')
    a(f's_lshl_b32 s28, s{sH}, 15')
    a(f's_lshl_b32 s24, s{sW}, 8')
    a('s_add_u32 s28, s28, s24')
    BUF = [128 + 16 * k for k in range(8)]
    D = 7
    TMP = 80
    units = []
    for cg in range(2):
        def ld(B, cg=cg):
            o = []
            for j in range(8):
                o.append(f's_add_u32 s25, s28, {j * 1024 + 128 * cg}')
                o.append(f'buffer_load_dwordx2 {vr(B + 2 * j, 2)}, v3, s[56:59], s25 offen')
            return o

        def pr(B, cg=cg):
            return [f'v_perm_b32 v{WB2 + 16 * cg + 4 * t + jj}, v{B + 2 * (2 * jj + 1) + (t >> 1)}, v{B + 4 * jj + (t >> 1)}, s{26 + (t & 1)}'
                    for t in range(4) for jj in range(4)]
        units.append((ld, pr))
    for ks in range(16):
        def ld(B, ks=ks):
            o = []
            for j in range(8):
                row = 128 * (ks >> 2) + 32 * (ks & 3) + 2 * (j & 3) + (j >> 2)
                o.append(f's_add_u32 s25, s23, {row * 1024}')
                o.append(f'buffer_load_dwordx2 {vr(B + 2 * j, 2)}, v3, s[48:51], s25 offen')
            return o

        def pr(B, ks=ks):
            o = [f'v_perm_b32 v{TMP + 4 * t + jj}, v{B + 2 * (2 * jj + 1) + (t >> 1)}, v{B + 4 * jj + (t >> 1)}, s{26 + (t & 1)}'
                 for t in range(4) for jj in range(4)]
            o += [f'v_accvgpr_write_b32 a{16 * ks + k}, v{TMP + k}' for k in range(16)]
            return o
        units.append((ld, pr))
    if late:
        units = units[2:] + units[:2]
    n = len(units)
    for u in range(n + D):
        if u < n:
            for l in units[u][0](BUF[u % 8]):
                a(l)
        elif late and u < n + 6:
            for g in dma[4 * (u - n):4 * (u - n) + 4]:
                for l in g:
                    a(l)
        hook(u)
        if u >= D:
            for l in units[u - D][1](BUF[(u - D) % 8]):
                a(l)
            if st:
                st(10 + u - D)
    a('v_lshrrev_b32 v4, 2, v1')
    a('v_lshl_add_u32 v4, v2, 3, v4')
    a('v_lshlrev_b32 v4, 6, v4')
    a('v_lshl_add_u32 v4, v5, 3, v4')
    a(f's_lshr_b32 s21, s{sW}, 1')
    a('s_lshl_b32 s21, s21, 5')
    a('v_add_u32 v4, s21, v4')
    a(f'v_add_u32 v6, {L_STG}, v4')
    a('s_waitcnt vmcnt(0)')
    a('s_barrier')
    for mat, base in ((0, WQ), (1, WK)):
        for k in range(16):
            for jj in range(2):
                a(f'ds_read_b64_tr_b16 {vr(base + 4 * k + 2 * jj, 2)}, v6 offset:{mat * 32768 + k * 2048 + jj * 256}')
    a('s_waitcnt lgkmcnt(0)')
    a('v_mov_b32 v40, v0')
    a('v_mov_b32 v41, v1')
    a('v_mov_b32 v42, v2')
    a('v_mov_b32 v43, v4')
    l, n_, g_ = 40, 41, 42
    a(f'v_add_u32 v{vVr}, {L_WV}, v43')
    a(f'v_lshlrev_b32 v{vL16}, 4, v{l}')
    a(f's_lshl_b32 s21, s{sW}, 13')
    a(f'v_add_u32 v{vC}, s21, v{vL16}')
    a(f'v_lshrrev_b32 v44, 3, v{n_}')
    a('v_lshlrev_b32 v44, 11, v44')
    a(f'v_lshl_add_u32 v44, v{g_}, 8, v44')
    a(f'v_bfe_u32 v45, v{n_}, 1, 2')
    a('v_lshl_add_u32 v44, v45, 6, v44')
    a(f'v_and_b32 v45, 1, v{n_}')
    a(f'v_lshl_add_u32 v{vOr}, v45, 4, v44')
    a(f's_lshr_b32 s21, s{sH}, 1')
    a('s_lshl_b32 s21, s21, 11')
    a(f's_and_b32 s22, s{sH}, 1')
    a('s_lshl_b32 s22, s22, 10')
    a('s_add_u32 s21, s21, s22')
    a(f's_lshl_b32 s22, s{sW}, 8')
    a('s_add_u32 s21, s21, s22')
    a(f'v_lshlrev_b32 v44, 15, v{g_}')
    a(f'v_lshl_add_u32 v44, v{n_}, 4, v44')
    a(f'v_add_u32 v{vP1}, s21, v44')
    a(f's_lshl_b32 s21, s{sH}, 11')
    a(f's_lshl_b32 s22, s{sW}, 9')
    a('s_add_u32 s21, s21, s22')
    a(f'v_lshlrev_b32 v44, 16, v{g_}')
    a(f'v_lshl_add_u32 v44, v{n_}, 4, v44')
    a(f'v_add_u32 v{vP2}, s21, v44')
    a(f'v_lshrrev_b32 v44, 1, v{g_}')
    a(f'v_lshl_add_u32 v44, v44, 4, v{n_}')
    a(f's_lshl_b32 s21, s{sW}, 5')
    a('v_add_u32 v44, s21, v44')
    a(f'v_and_b32 v45, 1, v{g_}')
    a('v_lshlrev_b32 v46, 11, v45')
    a(f'v_lshl_add_u32 v{vRl}, v44, 4, v46')
    a('v_lshlrev_b32 v46, 10, v45')
    a(f'v_lshl_add_u32 v{vRo}, v44, 3, v46')
    a(f's_lshl_b32 s21, s{sW}, 3')
    a(f's_add_u32 s21, s21, {L_ST}')
    a('v_lshlrev_b32 v46, 5, v45')
    a(f'v_add_u32 v{vStw}, s21, v46')
    a(f'v_add_u32 v{vStr}, {L_ST}, v46')
    a(f's_and_b32 s21, s{sW}, 1')
    a(f'v_lshl_add_u32 v44, v{n_}, 1, s21')
    a('v_mul_u32_u24 v45, 80, v44')
    a(f'v_lshl_add_u32 v45, v{g_}, 3, v45')
    a(f's_lshr_b32 s22, s{sW}, 1')
    a('s_lshl_b32 s22, s22, 5')
    a(f's_add_u32 s22, s22, {L_OB}')
    a(f'v_add_u32 v{vOw}, s22, v45')
    a(f'v_mul_u32_u24 v45, 80, v{n_}')
    a(f'v_lshl_add_u32 v45, v{g_}, 4, v45')
    a(f'v_add_u32 v{vOrd}, {L_OB}, v45')
    for b in range(4):
        a(f'v_add_u32 v45, {4 * b}, v{g_}')
        a(f'v_xor_b32 v45, v45, v{n_}')
        a('v_lshlrev_b32 v45, 4, v45')
        a(f'v_lshl_add_u32 v{vXr + b}, v44, 10, v45')
    a(f's_lshl_b32 s21, s{sW}, 2')
    for b in range(4):
        a(f's_add_u32 s22, s21, {b}')
        a(f'v_xor_b32 v45, s22, v{l}')
        a(f'v_lshlrev_b32 v{vD + b}, 4, v45')
    a(f'v_mov_b32 v45, {NEG:#x}')
    for T in range(2):
        for rho in range(4):
            if T == 0:
                m = mask64(lambda i, g: not (4 * g + rho >= i + 9))
            else:
                m = mask64(lambda i, g: not (0 <= i - (4 * g + rho) <= 7))
            smov64(a, 22, m)
            a(f'v_cndmask_b32 v{MSK + 4 * T + rho}, 0, v45, s[22:23]')
    a(f'v_and_b32 v45, 1, v{n_}')
    a('v_lshlrev_b32 v45, 4, v45')
    a('v_mov_b32 v46, 0x3f80')
    a('v_lshlrev_b32 v45, v45, v46')
    for k in range(4):
        smov64(a, 22, mask64(lambda i, g: ((i & 7) >> 1) == k and (g >> 1) == (i >> 3)))
        a(f'v_cndmask_b32 v{SEL + k}, 0, v45, s[22:23]')
    a(f's_load_dwordx2 s[4:5], s[0:1], {KA_X}')
    a(f's_load_dwordx2 s[8:9], s[0:1], {KA_OUT}')
    a(f's_and_b32 s{sLay}, s{sL}, 1')
    a(f's_lshr_b32 s{sSeg}, s{sL}, 1')
    a(f's_mov_b32 s{sTask}, 0')
    a(f's_mul_i32 s{sRb}, s{sL}, {WBR_SIZE}')
    a(f's_add_u32 s{sRb}, s{sRb}, {WBR_OFF}')
    a(f's_mov_b32 s{sP1}, s{sRb}')
    a(f's_lshl_b32 s{sT}, s{sH}, 14')
    a(f's_add_u32 s{sP1r}, s{sP1}, s{sT}')
    a(f's_add_u32 s{sP2}, s{sRb}, {256 << 10}')
    a(f's_lshl_b32 s{sT}, s{sH}, 15')
    a(f's_add_u32 s{sP2r}, s{sP2}, s{sT}')
    a(f's_mov_b32 s{sC}, {f32bits(SCALE_B):#x}')
    a(f's_mov_b32 s{sC1}, {f32bits(SCALE_B):#x}')
    a(f's_mov_b32 s{sInv}, {f32bits(1 / 512):#x}')
    a(f's_mov_b32 s{sEps}, {f32bits(1e-5):#x}')
    a(f's_lshl_b32 s{sBuf}, s{sW}, 13')
    a(f's_add_u32 s{sBuf2}, s{sBuf}, 4096')
    a('s_waitcnt lgkmcnt(0)')
    a('s_mov_b32 s6, 0x200000')
    a('s_mov_b32 s7, 0x20000')
    a('s_mov_b32 s10, 0x200000')
    a('s_mov_b32 s11, 0x20000')
    a(f's_cmp_eq_u32 s{sLay}, 1')
    a('s_cselect_b32 s4, s12, s4')
    a('s_cselect_b32 s5, s13, s5')
    a('s_cselect_b32 s6, s14, s6')
    a('s_barrier')


def row_stats(a, Y, t, filler=None):
    s1, s2 = t, t + 1
    a(f'v_add_f32 v{s1}, v{Y}, v{Y + 1}')
    a(f'v_mul_f32 v{s2}, v{Y}, v{Y}')
    a(f'v_add_f32 v{t + 2}, v{Y + 2}, v{Y + 3}')
    a(f'v_fmac_f32 v{s2}, v{Y + 1}, v{Y + 1}')
    a(f'v_add_f32 v{s1}, v{s1}, v{t + 2}')
    a(f'v_fmac_f32 v{s2}, v{Y + 2}, v{Y + 2}')
    a(f'v_fmac_f32 v{s2}, v{Y + 3}, v{Y + 3}')
    for sh in (8, 4, 2, 1):
        for s in (s1, s2):
            a(f'v_add_f32_dpp v{s}, v{s}, v{s} row_ror:{sh} row_mask:0xf bank_mask:0xf')
    a(f'v_mov_b32 v{t + 2}, v{s1}')
    a(f'v_mov_b32 v{t + 3}, v{s2}')
    a(f'v_permlane32_swap_b32 v{s1}, v{t + 2}')
    a(f'v_permlane32_swap_b32 v{s2}, v{t + 3}')
    a(f'v_pk_add_f32 {vr(s1, 2)}, {vr(s1, 2)}, {vr(t + 2, 2)}')
    a('s_mov_b64 exec, 0x10001')
    a(f'ds_write_b64 v{vStw}, {vr(s1, 2)}')
    a('s_mov_b64 exec, -1')
    if filler:
        filler()
    a('s_waitcnt lgkmcnt(0)')
    a('s_barrier')
    a(f'ds_read_b128 {vr(t + 2, 4)}, v{vStr}')
    a(f'ds_read_b128 {vr(t + 6, 4)}, v{vStr} offset:16')
    a(f'v_pk_add_f32 {vr(t + 2, 2)}, {vr(t + 2, 2)}, {vr(t + 4, 2)}')
    a(f'v_pk_add_f32 {vr(t + 6, 2)}, {vr(t + 6, 2)}, {vr(t + 8, 2)}')
    a(f'v_pk_add_f32 {vr(t + 2, 2)}, {vr(t + 2, 2)}, {vr(t + 6, 2)}')
    finish_stats(a, t + 2, t + 3, t, f's{sInv}', f's{sEps}')


def finish_stats(a, s1, s2, t, inv, eps):
    a(f'v_mul_f32 v{s1}, {inv}, v{s1}')
    a(f'v_mul_f32 v{s2}, {inv}, v{s2}')
    a(f'v_fma_f32 v{s2}, -v{s1}, v{s1}, v{s2}')
    a(f'v_max_f32 v{s2}, 0, v{s2}')
    a(f'v_add_f32 v{s2}, {eps}, v{s2}')
    a(f'v_rsq_f32 v{t}, v{s2}')
    a(f'v_mul_f32 v{t + 1}, v{s1}, v{t}')
    a(f'v_sub_f32 v{t + 1}, 0, v{t + 1}')


def emit_wb_loop(a, fast, fail, done, prof=False, opt=None):
    opt = opt or {}
    sc = '' if fast else ' sc1'
    LOOP = a.newlabel('WL')
    npr = [0]

    def stamp():
        if prof:
            a(f'{"s_memrealtime" if opt.get("rt") else "s_memtime"} {sr(sPROF + 2 * npr[0], 2)}')
            npr[0] += 1
    T = W0
    ACC = W0 + 12
    FR = W0 + 44
    SEN = T

    def mf(d, A, B, C):
        return f'v_mfma_f32_16x16x32_bf16 {vr(d, 4)}, {A}, {B}, {C}'

    def tile_check(retry, dwords):
        for j in range(8):
            a(f'ds_read_b128 {vr(ACC + 4 * j, 4)}, v{vC} offset:{1024 * j}')
        regs = [ACC + 4 * j + d for j in range(8) for d in dwords]
        a(f'v_max_u32 v{T}, v{regs[0]}, v{regs[1]}')
        for k in range(2, len(regs), 2):
            a(f'v_max3_u32 v{T}, v{T}, v{regs[k]}, v{regs[k + 1]}')
        a(f'v_cmp_eq_u32 vcc, -1, v{T}')
        ok = a.newlabel('WK')
        a(f's_cbranch_vccz {ok}')
        a('s_mov_b64 exec, vcc')
        a(f's_branch {retry}')
        a.label(ok)

    def reduce(nload, sbase, R, racc):
        RT, RE = a.newlabel('WR'), a.newlabel('WRE')
        a(f's_mov_b32 s{sSpin}, 0')
        if opt.get('wack', 1):
            a('s_waitcnt vmcnt(0)')
        a.label(RT)
        for u in range(nload):
            if u:
                a(f's_add_u32 s{sT}, s{sbase}, {4096 * u}')
            a(f'buffer_load_dwordx4 {vr(R + 4 * u, 4)}, v{vRl}, {WS}, s{sT if u else sbase} offen sc1')
        a('s_mov_b64 exec, -1')
        spin_guard(a, sSpin, fail)
        for u in range(nload):
            a(mf(racc, vr(SEL, 4), vr(R + 4 * u, 4), 0 if u == 0 else vr(racc, 4)))
            if u == 0:
                a(f'v_xor_b32 v{T}, s{sTag}, v{R}')
            else:
                a(f'v_bitop3_b32 v{T}, v{T}, v{R + 4 * u}, s{sTag} bitop3:0xf6')
        a(f'v_and_b32 v{T}, 1, v{T}')
        a(f'v_cmp_ne_u32 vcc, 0, v{T}')
        a(f's_cbranch_vccz {RE}')
        a('s_mov_b64 exec, vcc')
        a(f's_branch {RT}')
        a.label(RE)

    def chunk_store(acc4, y, PK, vaddr, soff, imm):
        for x in range(2):
            for j in range(2):
                a(f'v_cvt_pk_bf16_f32 v{PK + 2 * x + j}, v{acc4[2 * j] + 2 * y + x}, v{acc4[2 * j + 1] + 2 * y + x}')
        a(f'v_and_or_b32 v{PK}, v{PK}, -2, s{sTag}')
        a(f'buffer_store_dwordx4 {vr(PK, 4)}, v{vaddr}, {WS}, s{soff} offen offset:{imm}{sc}')

    def o_fetch():
        for j in range(8):
            if j % 4 == 0:
                a(f's_mov_b32 m0, s{sBuf if j == 0 else sBuf2}')
            a(f'buffer_load_dwordx4 v{vL16}, {WS}, s{sO if j < 4 else sO2} offen offset:{1024 * (j & 3)} sc1 lds')
    a(f's_lshl_b32 s{sO}, s{sLay}, 5')
    a(f's_lshr_b32 s{sT2}, s{sH}, 1')
    a(f's_lshl_b32 s{sT2}, s{sT2}, 2')
    a(f's_add_u32 s{sO}, s{sO}, s{sT2}')
    a(f's_add_u32 s{sO}, s{sO}, s{sW}')
    a(f's_lshl_b32 s{sO}, s{sO}, 6')
    a(f's_add_u32 s{sO}, s{sO}, s{sSeg}')
    a(f's_lshl_b32 s{sO}, s{sO}, 13')
    a(f's_add_u32 s{sO}, s{sO}, {OX_OFF}')
    a(f's_add_u32 s{sO2}, s{sO}, 4096')
    a.label(LOOP)
    stamp()
    o_fetch()
    a(f's_and_b32 s{sTag}, s{sTask}, 1')
    a(f's_lshl_b32 s{sT}, s{sLay}, 6')
    a(f's_add_u32 s{sT}, s{sT}, s{sSeg}')
    a(f's_lshl_b32 s{sHw}, s{sT}, 4')
    a(f's_add_u32 s{sHw}, s{sHw}, s{sH}')
    a(f's_lshl_b32 s{sHw}, s{sHw}, 2')
    a(f's_add_u32 s{sHw}, s{sHw}, s{sW}')
    a(f's_lshl_b32 s{sHw}, s{sHw}, 10')
    a(f's_add_u32 s{sHw}, s{sHw}, {HALO_OFF}')
    a(f's_sub_u32 s{sHr}, s{sHw}, 65536')
    a(f's_lshl_b32 s{sRes}, s{sSeg}, 4')
    a(f's_add_u32 s{sRes}, s{sRes}, s{sH}')
    a(f's_lshl_b32 s{sRes}, s{sRes}, 11')
    a(f's_lshl_b32 s{sT}, s{sTag}, 15')
    a(f's_add_u32 s{sXr}, s{sRb}, s{sT}')
    a(f's_add_u32 s{sXr}, s{sXr}, {768 << 10}')
    a(f's_lshl_b32 s{sT2}, s{sH}, 11')
    a(f's_add_u32 s{sXw}, s{sXr}, s{sT2}')
    a(f's_xor_b32 s{sT}, s{sT}, 0x8000')
    a(f's_add_u32 s{sXc}, s{sRb}, s{sT}')
    a(f's_add_u32 s{sXc}, s{sXc}, {768 << 10}')
    a(f's_add_u32 s{sXc}, s{sXc}, s{sT2}')
    a(f's_add_u32 s{sXr}, s{sXr}, s{sBuf}')
    RT, OK0 = a.newlabel('WO'), a.newlabel('WOK')
    a(f's_mov_b32 s{sSpin}, 0')
    a('s_waitcnt vmcnt(0)')
    a(f's_branch {OK0}')
    a.label(RT)
    a('s_mov_b64 exec, -1')
    if opt.get('probe', 0):
        PR = a.newlabel('WP')
        a(f'v_lshlrev_b32 v{T + 4}, 7, v{vL16}')
        a('s_mov_b64 exec, 15')
        a.label(PR)
        if opt.get('osleep', 1):
            a(f's_sleep {opt.get("osleep", 1)}')
        a(f'buffer_load_dword v{T + 5}, v{T + 4}, {WS}, s{sO} offen offset:1024 sc1')
        spin_guard(a, sSpin, fail)
        a(f'v_cmp_eq_u32 vcc, -1, v{T + 5}')
        a(f's_cbranch_vccnz {PR}')
        a('s_mov_b64 exec, -1')
    o_fetch()
    spin_guard(a, sSpin, fail)
    a('s_waitcnt vmcnt(0)')
    a.label(OK0)
    tile_check(RT, (0,))
    a('s_barrier')
    stamp()
    XR = T + 10

    def ofrag(q):
        mt, ks = q >> 4, q & 15
        return f'ds_read_b128 {vr(FR + 4 * (q & 3), 4)}, v{vOr} offset:{8192 * (ks >> 2) + 4096 * mt + 1024 * (ks & 1) + (0 if ks & 2 else 32)}'
    for q in range(3):
        a(ofrag(q))
    extra = {}
    extra[0] = [f's_mul_i32 s{sT}, s{sLay}, {X2_OFF}', f's_add_u32 s{sClr}, s{sT}, s{sRes}',
                f'buffer_load_dwordx2 {vr(XR, 2)}, v{vRo}, {RES}, s{sClr} offen sc1']
    extra[1] = [f'v_mov_b64 {vr(SEN, 2)}, -1', f'v_mov_b64 {vr(SEN + 2, 2)}, -1']
    extra[2] = [f's_add_u32 s{sT}, s{sHw}, {3 * 65536}', f's_cmp_ge_u32 s{sSeg}, {NSEG - 3}', f's_cselect_b32 s{sT}, s14, s{sT}',
                f'buffer_store_dwordx4 {vr(SEN, 4)}, v{vL16}, {WS}, s{sT} offen sc1']
    extra[3] = [f's_cmp_ge_u32 s{sSeg}, {NSEG - 3}', f's_cselect_b32 s{sT2}, 1, s{sLay}']
    for q, base in ((4, XN_OFF + (2 << 20) + 3 * 32768), (6, X2_OFF + 3 * 32768)):
        extra[q] = [f's_add_u32 s{sT}, s{sRes}, {base}', f's_cmp_eq_u32 s{sT2}, 1', f's_cselect_b32 s{sT}, s14, s{sT}',
                    f'buffer_store_dwordx2 {vr(SEN, 2)}, v{vRo}, {WS}, s{sT} offen sc1']

    def chunk_ops(acc4, y, PK, vaddr, sbase, off, imm):
        o = [f's_add_u32 s{sT}, s{sbase}, {off}']
        for x in range(2):
            for j in range(2):
                o.append(f'v_cvt_pk_bf16_f32 v{PK + 2 * x + j}, v{acc4[2 * j] + 2 * y + x}, v{acc4[2 * j + 1] + 2 * y + x}')
        o.append(f'v_and_or_b32 v{PK}, v{PK}, -2, s{sTag}')
        o.append(f'buffer_store_dwordx4 {vr(PK, 4)}, v{vaddr}, {WS}, s{sT} offen offset:{imm}{sc}')
        return o
    ep0 = [l for y in range(2) for l in chunk_ops([ACC + 4 * t for t in range(4)], y, T + 4 * y, vP1, sP1, y * 16384, 0)]
    for q in range(32):
        mt, ks = q >> 4, q & 15
        for t in range(4):
            d = ACC + 16 * mt + 4 * t
            a(mf(d, vr(FR + 4 * (q & 3), 4), ar(16 * ks + 4 * t, 4), 0 if ks == 0 else vr(d, 4)))
            if t == 0 and q + 3 < 32:
                a(ofrag(q + 3))
            if t == 1:
                for l in extra.get(q, []):
                    a(l)
            if q >= 17 and t >= 2 and ep0:
                a(ep0.pop(0))
    assert not ep0
    for y in range(2):
        for l in chunk_ops([ACC + 16 + 4 * t for t in range(4)], y, T + 4 * y, vP1, sP1, (8 + y) * 16384, 0):
            a(l)
    stamp()
    RA = T + 4
    reduce(4, sP1r, ACC, RA)
    stamp()
    RX, RXOK = a.newlabel('WX'), a.newlabel('WXK')
    a(f's_cmp_eq_u32 s{sLay}, 0')
    a(f's_cbranch_scc1 {RXOK}')
    a.label(RX)
    a(f'v_cmp_eq_u32 vcc, -1, v{XR}')
    a(f's_cbranch_vccz {RXOK}')
    spin_guard(a, sSpin, fail)
    a(f'buffer_load_dwordx2 {vr(XR, 2)}, v{vRo}, {RES}, s{sClr} offen sc1')
    a(f's_branch {RX}')
    a.label(RXOK)

    def add_round(racc, res, packed):
        for k in range(4):
            a(f'v_add_f32 v{racc + k}, v{racc + k}, v{res + k}')
        a(f'v_cvt_pk_bf16_f32 v{packed}, v{racc}, v{racc + 1}')
        a(f'v_cvt_pk_bf16_f32 v{packed + 1}, v{racc + 2}, v{racc + 3}')

    def unpack(dst, packed):
        for k in range(2):
            a(f'v_lshlrev_b32 v{dst + 2 * k}, 16, v{packed + k}')
            a(f'v_and_b32 v{dst + 2 * k + 1}, 0xffff0000, v{packed + k}')

    def normalise(dstp, t):
        for k in range(4):
            a(f'v_fma_f32 v{t + 2 + k}, v{X1 + k}, v{t}, v{t + 1}')
        a(f'v_cvt_pk_bf16_f32 v{dstp}, v{t + 2}, v{t + 3}')
        a(f'v_cvt_pk_bf16_f32 v{dstp + 1}, v{t + 4}, v{t + 5}')
        a(f'v_min_u32 v{dstp}, -2, v{dstp}')
    unpack(X1, XR)
    for k in range(2):
        a(f'v_pk_add_f32 {vr(X1 + 2 * k, 2)}, {vr(X1 + 2 * k, 2)}, {vr(RA + 2 * k, 2)}')

    def rearm():
        a(f'v_mov_b64 {vr(T + 8, 2)}, -1')
        a(f'buffer_store_dwordx2 {vr(T + 8, 2)}, v{vRo}, {WS}, s{sXc} offen{sc}')
    row_stats(a, X1, ACC, rearm)
    normalise(XR, ACC)
    a(f'buffer_store_dwordx2 {vr(XR, 2)}, v{vRo}, {WS}, s{sXw} offen{sc}')
    stamp()
    RT = a.newlabel('WN')
    a(f's_mov_b32 s{sSpin}, 0')
    a(f's_add_u32 s{sT2}, s{sXr}, 4096')
    if opt.get('wack', 1):
        a('s_waitcnt vmcnt(0)')
    a.label(RT)
    for j in range(8):
        if j % 4 == 0:
            a(f's_mov_b32 m0, s{sBuf if j == 0 else sBuf2}')
        a(f'buffer_load_dwordx4 v{vD + (j >> 1)}, {WS}, s{sXr if j < 4 else sT2} offen offset:{1024 * (j & 3)} sc1 lds')
    a('s_mov_b64 exec, -1')
    spin_guard(a, sSpin, fail)
    a('s_waitcnt vmcnt(0)')
    tile_check(RT, (0, 2))
    a('s_barrier')
    stamp()
    HP = T + 8
    NOH = a.newlabel('WNH')
    a(f'v_mov_b64 {vr(HP, 2)}, 0')
    a(f'v_mov_b64 {vr(HP + 2, 2)}, 0')
    a(f's_cmp_eq_u32 s{sSeg}, 0')
    a(f's_cbranch_scc1 {NOH}')
    a(f'buffer_load_dwordx4 {vr(HP, 4)}, v{vL16}, {WS}, s{sHr} offen sc1')
    a.label(NOH)
    QA, KA, VA = ACC, ACC + 4, ACC + 8
    XF, VF = ACC + 16, FR

    def b1rd(k):
        return [f'ds_read_b128 {vr(XF + 4 * (k & 3), 4)}, v{vXr + (k & 3)} offset:{256 * (k >> 2)}',
                f'ds_read_b64_tr_b16 {vr(VF + 4 * (k & 3), 2)}, v{vVr} offset:{2048 * k}',
                f'ds_read_b64_tr_b16 {vr(VF + 4 * (k & 3) + 2, 2)}, v{vVr} offset:{2048 * k + 256}']
    for k in range(3):
        for l in b1rd(k):
            a(l)
    for k in range(16):
        xf = vr(XF + 4 * (k & 3), 4)
        nx = b1rd(k + 3) if k + 3 < 16 else []
        a(mf(KA, vr(WK + 4 * k, 4), xf, 0 if k == 0 else vr(KA, 4)))
        if nx:
            a(nx[0])
        a(mf(VA, xf, vr(VF + 4 * (k & 3), 4), 0 if k == 0 else vr(VA, 4)))
        if nx:
            a(nx[1])
            a(nx[2])
        a(mf(QA, vr(WQ + 4 * k, 4), xf, 0 if k == 0 else vr(QA, 4)))
    HC = T + 4
    QP = T + 2
    for d in range(2):
        a(f'v_cvt_pk_bf16_f32 v{HC + d}, v{KA + 2 * d}, v{KA + 2 * d + 1}')
    for d in range(2):
        a(f'v_cvt_pk_bf16_f32 v{HC + 2 + d}, v{VA + 2 * d}, v{VA + 2 * d + 1}')
    a(f'v_min_u32 v{HC}, -2, v{HC}')
    for d in range(2):
        a(f'v_cvt_pk_bf16_f32 v{QP + d}, v{QA + 2 * d}, v{QA + 2 * d + 1}')
    stamp()
    S0, S1 = ACC + 16, ACC + 20
    HOK, HRT, HZ = a.newlabel('WHK'), a.newlabel('WHR'), a.newlabel('WHZ')
    a(f'v_mfma_f32_16x16x16_bf16 {vr(S1, 4)}, {vr(HC, 2)}, {vr(QP, 2)}, {vr(MSK + 4, 4)}')
    a(f's_cmp_eq_u32 s{sSeg}, 0')
    a(f's_cbranch_scc1 {HZ}')
    a(f's_mov_b32 s{sSpin}, 0')
    a.label(HRT)
    a(f'v_cmp_eq_u32 vcc, -1, v{HP}')
    a(f's_cbranch_vccz {HOK}')
    spin_guard(a, sSpin, fail)
    a(f'buffer_load_dwordx4 {vr(HP, 4)}, v{vL16}, {WS}, s{sHr} offen sc1')
    a(f's_branch {HRT}')
    a.label(HZ)
    for k in range(4):
        a(f'v_mov_b32 v{S0 + k}, {NEG:#x}')
    HDONE = a.newlabel('WHD')
    a(f's_branch {HDONE}')
    a.label(HOK)
    a(f'v_mfma_f32_16x16x16_bf16 {vr(S0, 4)}, {vr(HP, 2)}, {vr(QP, 2)}, {vr(MSK, 4)}')
    a.label(HDONE)
    a(f'buffer_store_dwordx4 {vr(HC, 4)}, v{vL16}, {WS}, s{sHw} offen sc1')
    m0_, m1_ = T, T + 1
    VOP, PP = ACC + 24, ACC + 28
    a(f'v_mov_b32 v{VOP}, v{HP + 2}')
    a(f'v_mov_b32 v{VOP + 1}, v{HP + 3}')
    a(f'v_mov_b32 v{VOP + 2}, v{HC + 2}')
    a(f'v_mov_b32 v{VOP + 3}, v{HC + 3}')
    a(f'v_max3_f32 v{m0_}, v{S1}, v{S1 + 1}, v{S1 + 2}')
    a(f'v_max3_f32 v{m0_}, v{m0_}, v{S1 + 3}, v{S0}')
    a(f'v_max3_f32 v{m0_}, v{m0_}, v{S0 + 1}, v{S0 + 2}')
    a(f'v_max_f32 v{m1_}, v{m0_}, v{S0 + 3}')
    a(f'v_max_f32 v{m0_}, v{m0_}, v{S0 + 3}')
    a(f'v_permlane16_swap_b32 v{m0_}, v{m1_}')
    a(f'v_max_f32 v{m0_}, v{m0_}, v{m1_}')
    a(f'v_mov_b32 v{m1_}, v{m0_}')
    a(f'v_permlane32_swap_b32 v{m0_}, v{m1_}')
    a(f'v_max_f32 v{m0_}, v{m0_}, v{m1_}')
    a(f'v_mul_f32 v{m0_}, s{sC}, v{m0_}')
    for k in range(8):
        a(f'v_fma_f32 v{S0 + k}, v{S0 + k}, s{sC}, -v{m0_}')
    for k in range(8):
        a(f'v_exp_f32 v{S0 + k}, v{S0 + k}')
    a(f'v_pk_add_f32 {vr(m0_, 2)}, {vr(S0, 2)}, {vr(S0 + 2, 2)}')
    a(f'v_pk_add_f32 {vr(PP, 2)}, {vr(S1, 2)}, {vr(S1 + 2, 2)}')
    a(f'v_pk_add_f32 {vr(m0_, 2)}, {vr(m0_, 2)}, {vr(PP, 2)}')
    a(f'v_add_f32 v{PP}, v{m0_}, v{m1_}')
    a(f'v_add_f32 v{m0_}, v{m0_}, v{m1_}')
    a(f'v_permlane16_swap_b32 v{m0_}, v{PP}')
    a(f'v_add_f32 v{m1_}, v{m0_}, v{PP}')
    a(f'v_add_f32 v{m0_}, v{m0_}, v{PP}')
    a(f'v_permlane32_swap_b32 v{m0_}, v{m1_}')
    a(f'v_add_f32 v{m0_}, v{m0_}, v{m1_}')
    a(f'v_rcp_f32 v{m0_}, v{m0_}')
    for k in range(4):
        a(f'v_pk_mul_f32 {vr(S0 + 2 * k, 2)}, {vr(S0 + 2 * k, 2)}, {vr(m0_, 2)} op_sel_hi:[1,0]')
    for k in range(4):
        a(f'v_cvt_pk_bf16_f32 v{PP + k}, v{S0 + 2 * k}, v{S0 + 2 * k + 1}')
    OA = ACC
    a(mf(OA, vr(VOP, 4), vr(PP, 4), 0))
    for d in range(2):
        a(f'v_cvt_pk_bf16_f32 v{QP + d}, v{OA + 2 * d}, v{OA + 2 * d + 1}')
    a(f'ds_write_b64 v{vOw}, {vr(QP, 2)}')
    a('s_waitcnt lgkmcnt(0)')
    a('s_barrier')
    stamp()
    for mt in range(2):
        a(f'ds_read_b128 {vr(FR + 4 * mt, 4)}, v{vOrd} offset:{1280 * mt}')
    groups = [(mt, cg) for mt in range(2) for cg in range(2)]

    def b2m(i):
        mt, cg = groups[i]
        return [mf(ACC + 16 * (i & 1) + 4 * t, vr(FR + 4 * mt, 4), vr(WB2 + 16 * cg + 4 * t, 4), 0) for t in range(4)]
    for l in b2m(0) + b2m(1):
        a(l)
    q = 0
    for i, (mt, cg) in enumerate(groups):
        for y in range(2):
            ops = chunk_ops([ACC + 16 * (i & 1) + 4 * t for t in range(4)], y, T + 4 * (q % 3), vP2, sP2, (8 * mt + y) * 32768, 256 * cg)
            for l in ops[:-1]:
                a(l)
            if y == 1 and i + 2 < 4:
                nx = b2m(i + 2)
                a(nx[0])
                a(ops[-1])
                for l in nx[1:]:
                    a(l)
            else:
                a(ops[-1])
            q += 1
    stamp()
    RA = T + 4
    reduce(8, sP2r, ACC, RA)
    stamp()
    for k in range(2):
        a(f'v_pk_add_f32 {vr(X1 + 2 * k, 2)}, {vr(X1 + 2 * k, 2)}, {vr(RA + 2 * k, 2)}')
    L1, LE = a.newlabel('WF'), a.newlabel('WE')
    a(f's_cmp_eq_u32 s{sLay}, 1')
    a(f's_cbranch_scc1 {L1}')

    def raw_store():
        a(f'v_cvt_pk_bf16_f32 v{T + 8}, v{X1}, v{X1 + 1}')
        a(f'v_cvt_pk_bf16_f32 v{T + 9}, v{X1 + 2}, v{X1 + 3}')
        a(f'v_min_u32 v{T + 8}, -2, v{T + 8}')
        a(f's_add_u32 s{sT}, s{sRes}, {X2_OFF}')
        a(f'buffer_store_dwordx2 {vr(T + 8, 2)}, v{vRo}, {WS}, s{sT} offen sc1')
    row_stats(a, X1, ACC, raw_store)
    normalise(XR, ACC)
    a(f's_add_u32 s{sT}, s{sRes}, {XN_OFF + (2 << 20)}')
    a(f'buffer_store_dwordx2 {vr(XR, 2)}, v{vRo}, {WS}, s{sT} offen sc1')
    a(f's_branch {LE}')
    a.label(L1)
    if opt.get('noise'):
        for k in range(4):
            a(f'v_mul_f32 v{X1 + k}, {f32bits(opt["noise"]):#x}, v{X1 + k}')
    a(f'v_cvt_pk_bf16_f32 v{XR}, v{X1}, v{X1 + 1}')
    a(f'v_cvt_pk_bf16_f32 v{XR + 1}, v{X1 + 2}, v{X1 + 3}')
    a(f'buffer_store_dwordx2 {vr(XR, 2)}, v{vRo}, {OUT}, s{sRes} offen')
    a.label(LE)
    if prof:
        stamp()
        a('s_waitcnt lgkmcnt(0)')
        a(f's_lshl_b32 s{sT}, s{sLay}, 6')
        a(f's_add_u32 s{sT}, s{sT}, s{sSeg}')
        a(f's_lshl_b32 s{sT}, s{sT}, 4')
        a(f's_add_u32 s{sT}, s{sT}, s{sH}')
        a(f's_lshl_b32 s{sT}, s{sT}, 2')
        a(f's_add_u32 s{sT}, s{sT}, s{sW}')
        a(f's_lshl_b32 s{sT}, s{sT}, 6')
        a(f's_add_u32 s{sT}, s{sT}, {PROF_OFF + (4 << 20)}')
        for k in range(npr[0]):
            a(f'v_writelane_b32 v{T}, s{sPROF + 2 * k}, {k}')
        a(f'v_lshrrev_b32 v{T + 1}, 2, v{vL16}')
        a('s_mov_b64 exec, 0xffff')
        a(f'buffer_store_dword v{T}, v{T + 1}, {WS}, s{sT} offen')
        a('s_mov_b64 exec, -1')
    a(f's_add_u32 s{sO}, s{sO}, {3 * 8192}')
    a(f's_add_u32 s{sO2}, s{sO2}, {3 * 8192}')
    a(f's_add_u32 s{sTask}, s{sTask}, 1')
    a(f's_add_u32 s{sSeg}, s{sSeg}, 3')
    a(f's_cmp_lt_u32 s{sSeg}, {NSEG}')
    a(f's_cbranch_scc1 {LOOP}')
    a(f's_branch {done}')
```

```python
import sys
from asmlib import *
from layout import *
import chain, proj, wb

NAME = 'interleave_layers__memory_aug_recurrent_mem_tr__sliding_local_dilated__prompt_kernel'
D_FAIL, D_READY = 16 + 64, 16 + 128


D_READY2, D_READY3 = 16 + 192, 16
L_BC = 32512
sROLE, sXCC, sFINAL = 90, 91, 92
sRANK = 89
vRANK = 126


def role_of(a, opt, idx, dst):
    perm = opt.get('perm', [0, 2, 1, 3, 4, 5, 6, 7])
    a(f's_lshr_b32 s22, s{idx}, 5')
    a('s_lshl_b32 s22, s22, 2')
    a(f's_lshr_b32 s22, {sum(p << (4 * i) for i, p in enumerate(perm)):#x}, s22')
    a('s_and_b32 s22, s22, 7')
    a('s_lshl_b32 s22, s22, 5')
    a(f's_and_b32 s{dst}, s{idx}, 31')
    a(f's_or_b32 s{dst}, s{dst}, s22')


def broadcast(a, src, dst):
    L = a.newlabel('BC')
    a(f'v_mov_b32 v60, {L_BC}')
    a(f's_cmp_lg_u32 s{sW}, 0')
    a(f's_cbranch_scc1 {L}')
    a(f'v_mov_b32 v61, s{src}')
    a('ds_write_b32 v60, v61')
    a('s_waitcnt lgkmcnt(0)')
    a.label(L)
    a('s_barrier')
    a('ds_read_b32 v61, v60')
    a(f'v_readfirstlane_b32 s{dst}, v61')
    a('s_barrier')


def emit_prologue(a, opt):
    a('s_cmp_ge_u32 s2, 256')
    a('s_cbranch_scc1 DONE')
    a(f's_load_dwordx4 s[8:11], s[0:1], {KA_DBG}')
    a(f's_getreg_b32 s{sXCC}, hwreg(HW_REG_XCC_ID, 0, 4)')
    a('v_lshrrev_b32 v1, 6, v0')
    a(f'v_readfirstlane_b32 s{sW}, v1')
    a('v_and_b32 v0, 63, v0')
    a(f's_and_b32 s{sXCC}, s{sXCC}, 7')
    a('s_waitcnt lgkmcnt(0)')
    a('s_mov_b32 s12, s10')
    a('s_mov_b32 s13, s11')
    a(f's_mov_b32 s14, {WS_BYTES}')
    a('s_mov_b32 s15, 0x20000')
    if opt.get('prof'):
        a('s_memrealtime s[94:95]')
    if opt.get('ipf', 0):
        a('s_getpc_b64 s[22:23]')
        a.label('PCREF')
        a(f's_lshl_b32 s21, s{sW}, 13')
        a('v_lshl_add_u32 v2, v0, 7, s21')
        for k in range(3):
            a(f'v_min_u32 v3, CODE_END-PCREF-4, v2')
            a('global_load_dword v125, v3, s[22:23]')
            a('v_add_u32 v2, 0x8000, v2')
    if opt.get('wpf', 0):
        a(f's_load_dwordx8 s[24:31], s[0:1], {KA_WQ}')
        a(f's_load_dwordx4 s[32:35], s[0:1], {KA_WQKV}')
        a('s_lshl_b32 s21, s2, 14')
        a('v_lshl_add_u32 v2, v0, 7, s21')
        a('s_mul_i32 s21, s2, 6144')
        a('v_min_u32 v3, 47, v0')
        a('v_lshl_add_u32 v3, v3, 7, s21')
        a('s_lshl_b32 s21, s2, 11')
        a('v_min_u32 v6, 15, v0')
        a('v_lshl_add_u32 v6, v6, 7, s21')
        a('s_waitcnt lgkmcnt(0)')
        for k in range(1, 4):
            a(f's_cmp_eq_u32 s{sW}, {k}')
            a(f's_cselect_b32 s24, s{24 + 2 * k}, s24')
            a(f's_cselect_b32 s25, s{25 + 2 * k}, s25')
        a('global_load_dword v124, v2, s[24:25]')
        a('v_add_u32 v2, 0x2000, v2')
        a('global_load_dword v124, v2, s[24:25]')
        a(f's_cmp_eq_u32 s{sW}, 1')
        a('s_cselect_b32 s32, s34, s32')
        a('s_cselect_b32 s33, s35, s33')
        a('s_cselect_b64 vcc, -1, 0')
        a('v_cndmask_b32 v3, v3, v6, vcc')
        a(f's_cmp_gt_u32 s{sW}, 1')
        a('s_cbranch_scc1 NOWPF')
        a('global_load_dword v124, v3, s[32:33]')
        a.label('NOWPF')
    a(f'v_mov_b64 {vr(vRANK, 2)}, 0')
    a(f's_cmp_lg_u32 s{sW}, 0')
    a('s_cbranch_scc1 NORANK')
    a(f's_and_b32 s21, s{sXCC}, 3')
    a('s_lshl_b32 s21, s21, 6')
    a(f's_lshr_b32 s22, s{sXCC}, 2')
    a('s_lshl_b32 s22, s22, 3')
    a('s_add_u32 s21, s21, s22')
    a('s_lshr_b32 s22, s2, 3')
    a('s_lshl_b32 s22, 1, s22')
    a('v_mov_b32 v2, s21')
    a('v_mov_b32 v4, s22')
    a('v_mov_b32 v5, 0x100')
    a('s_mov_b64 exec, 1')
    a(f'global_atomic_add_x2 {vr(vRANK, 2)}, v2, v[4:5], s[8:9] sc0')
    a('s_mov_b64 exec, -1')
    a.label('NORANK')
    if opt.get('byrank'):
        a(f'v_readfirstlane_b32 s21, v{vRANK + 1}')
        a('s_lshr_b32 s21, s21, 8')
        broadcast(a, 21, 23)
        a('s_min_u32 s22, s23, 31')
    else:
        a('s_lshr_b32 s22, s2, 3')
    a(f's_lshl_b32 s21, s{sXCC}, 5')
    a('s_add_u32 s21, s21, s22')
    role_of(a, opt, 21, sROLE)
    a(f's_mov_b32 s{sFINAL}, 0')
    a('s_branch DISPATCH')


def save_rank(a):
    L = a.newlabel('SR')
    a(f's_cmp_eq_u32 s{sFINAL}, 1')
    a(f's_cbranch_scc1 {L}')
    a(f'v_readfirstlane_b32 s{sRANK}, v{vRANK + 1}')
    a.label(L)


def census_load(a, dst):
    a(f's_load_dwordx2 s[62:63], s[0:1], {KA_DBG}')
    a(f'v_mbcnt_lo_u32_b32 v{dst}, -1, 0')
    a(f'v_and_b32 v{dst + 1}, 3, v{dst}')
    a(f'v_lshrrev_b32 v{dst}, 2, v{dst}')
    a(f'v_lshlrev_b32 v{dst}, 3, v{dst}')
    a(f'v_lshl_add_u32 v{dst}, v{dst + 1}, 6, v{dst}')
    a('s_mov_b64 exec, 0xff')
    a('s_waitcnt lgkmcnt(0)')
    a(f'global_load_dwordx2 {vr(dst, 2)}, v{dst}, s[62:63] sc1')
    a('s_mov_b64 exec, -1')


def census_eval(a, src):
    a('s_mov_b32 s64, 0')
    a('s_mov_b32 s65, 0')
    a('s_mov_b32 s66, 1')
    a('s_mov_b32 s67, 1')
    for k in range(8):
        a(f'v_readlane_b32 s68, v{src + 1}, {k}')
        a(f'v_readlane_b32 s69, v{src}, {k}')
        a('s_cmp_eq_u32 s68, 0x2000')
        a('s_cselect_b32 s67, s67, 0')
        a('s_cmp_eq_u32 s69, -1')
        a('s_cselect_b32 s67, s67, 0')
        a('s_lshr_b32 s68, s68, 8')
        a('s_add_u32 s64, s64, s68')
        a(f's_cmp_gt_u32 s{sXCC}, {k}')
        a('s_cselect_b32 s69, s68, 0')
        a('s_add_u32 s65, s65, s69')
        a('s_cmp_eq_u32 s68, 32')
        a('s_cselect_b32 s66, s66, 0')


def verify(a, opt, preloaded=None):
    L, E, OK = a.newlabel('VW'), a.newlabel('VE'), a.newlabel('VK')
    src = preloaded or 60
    a(f's_cmp_eq_u32 s{sFINAL}, 1')
    a(f's_cbranch_scc1 {OK}')
    a('s_mov_b32 s61, 0')
    if preloaded:
        a(f's_branch {E}')
    a.label(L)
    spin_guard(a, 61, 'FAIL')
    a(f's_sleep {opt.get("vsleep", 16)}')
    census_load(a, src)
    a.label(E)
    if not (opt.get('slow') or opt.get('rerank')):
        G = a.newlabel('VG')
        a('s_mov_b64 exec, 0xff')
        if opt.get('byrank'):
            a(f'v_lshrrev_b32 v{src}, 8, v{src + 1}')
            a(f'v_cmp_eq_u32 vcc, 32, v{src}')
        else:
            a(f'v_cmp_eq_u32 vcc, -1, v{src}')
            a('s_mov_b64 exec, vcc')
            a(f'v_cmp_eq_u32 vcc, 0x2000, v{src + 1}')
        a('s_mov_b64 exec, -1')
        a('s_cmp_eq_u32 vcc_lo, 0xff')
        a(f's_cbranch_scc1 {G}')
    census_eval(a, src)
    a('s_cmp_lt_u32 s64, 256')
    a(f's_cbranch_scc1 {L}')
    a('s_cmp_gt_u32 s64, 256')
    a('s_cbranch_scc1 FAIL')
    if opt.get('byrank'):
        a('s_mov_b32 s67, s66')
    if opt.get('slow') or opt.get('rerank'):
        a('s_mov_b32 s67, 0')
    a('s_cmp_eq_u32 s67, 0')
    a('s_cbranch_scc1 REROLE')
    if not (opt.get('slow') or opt.get('rerank')):
        a.label(G)
    a(f's_mov_b32 s{sFAST}, 1')
    a(f's_mov_b32 s{sFINAL}, 1')
    a.label(OK)


def emit_rerole(a, opt):
    a.label('REROLE')
    a('s_waitcnt vmcnt(0) lgkmcnt(0)')
    a('s_barrier')
    a(f's_lshr_b32 s21, s{sRANK}, 8')
    broadcast(a, 21, 21)
    a('s_add_u32 s65, s65, s21')
    if opt.get('slow'):
        a('s_mov_b32 s66, 0')
        a('s_mov_b32 s65, s2')
    role_of(a, opt, 65, sROLE)
    a(f's_mov_b32 s{sFAST}, s66')
    a(f's_mov_b32 s{sFINAL}, 1')
    a('v_mbcnt_lo_u32_b32 v0, -1, 0')
    a('v_mbcnt_hi_u32_b32 v0, -1, v0')


def signal(a, off, by_layer=False, drain=True):
    L = a.newlabel('SG')
    if drain:
        a('s_waitcnt vmcnt(0)')
    a('s_barrier')
    a(f's_cmp_lg_u32 s{sW}, 0')
    a(f's_cbranch_scc1 {L}')
    a(f's_load_dwordx2 s[62:63], s[0:1], {KA_DBG}')
    a(f'v_mov_b32 v60, {off}')
    if by_layer:
        a(f's_and_b32 s61, s{sL}, 1')
        a('v_lshl_add_u32 v60, s61, 2, v60')
    a('v_mov_b32 v61, 1')
    a('s_mov_b64 exec, 1')
    a('s_waitcnt lgkmcnt(0)')
    a('global_atomic_add v60, v61, s[62:63]')
    a('s_mov_b64 exec, -1')
    a.label(L)


def wait_count(a, off, n, by_layer=False):
    L, S = a.newlabel('RW'), a.newlabel('RS')
    a(f's_cmp_lg_u32 s{sW}, 0')
    a(f's_cbranch_scc1 {S}')
    a(f's_load_dwordx2 s[62:63], s[0:1], {KA_DBG}')
    a(f'v_mov_b32 v60, {off}')
    if by_layer:
        a(f's_and_b32 s61, s{sL}, 1')
        a('v_lshl_add_u32 v60, s61, 2, v60')
    a('s_mov_b32 s61, 0')
    a('s_mov_b64 exec, 1')
    a('s_waitcnt lgkmcnt(0)')
    a.label(L)
    spin_guard(a, 61, 'FAIL')
    a('s_sleep 8')
    a('global_load_dword v61, v60, s[62:63] sc1')
    a(f'v_cmp_gt_u32 vcc, {n}, v61')
    a(f's_cbranch_vccnz {L}')
    a('s_mov_b64 exec, -1')
    a.label(S)
    a('s_barrier')


def wait_two(a):
    L, S = a.newlabel('RW'), a.newlabel('RS')
    a(f's_cmp_lg_u32 s{sW}, 0')
    a(f's_cbranch_scc1 {S}')
    a(f's_load_dwordx2 s[62:63], s[0:1], {KA_DBG}')
    a(f's_and_b32 s61, s{sL}, 1')
    a('s_lshl_b32 s61, s61, 2')
    a(f's_add_u32 s61, s61, {D_READY3}')
    a(f'v_mov_b32 v60, {D_READY2}')
    a('v_writelane_b32 v60, s61, 1')
    a('s_mov_b32 s61, 0')
    a('s_mov_b64 exec, 3')
    a('s_waitcnt lgkmcnt(0)')
    a.label(L)
    spin_guard(a, 61, 'FAIL')
    a('global_load_dword v61, v60, s[62:63] sc1')
    a('v_cmp_gt_u32 vcc, 48, v61')
    a(f's_cbranch_vccnz {L}')
    a('s_mov_b64 exec, -1')
    a.label(S)
    a('s_barrier')


def wait_progress(a, n):
    L, S = a.newlabel('PW'), a.newlabel('PS')
    wait_count(a, D_READY, 48)
    a(f's_cmp_lg_u32 s{sW}, 0')
    a(f's_cbranch_scc1 {S}')
    a(f's_lshl_b32 s60, s{sH}, 8')
    a(f's_add_u32 s60, s60, {FLAG_OFF}')
    a('v_mov_b32 v60, 0')
    a('s_mov_b32 s61, 0')
    a('s_mov_b64 exec, 1')
    a.label(L)
    spin_guard(a, 61, 'FAIL')
    a('s_sleep 8')
    a(f'buffer_load_dword v61, v60, {WS}, s60 offen sc1')
    a(f'v_cmp_gt_u32 vcc, {n}, v61')
    a(f's_cbranch_vccnz {L}')
    a('s_mov_b64 exec, -1')
    a.label(S)
    a('s_barrier')


def emit_init_work(a):
    a(f's_load_dwordx2 s[4:5], s[0:1], {KA_X}')
    a('s_mov_b32 s6, 0x200000')
    a('s_mov_b32 s7, 0x20000')
    a('v_lshlrev_b32 v1, 4, v0')
    a('s_lshl_b32 s21, s21, 2')
    a(f's_add_u32 s21, s21, s{sW}')
    a('s_lshl_b32 s22, s21, 10')
    a('s_waitcnt lgkmcnt(0)')
    for r in range(11):
        a(f's_add_u32 s23, s22, {r * 192 * 1024}')
        a(f'buffer_load_dwordx4 {vr(64 + 4 * r, 4)}, v1, s[4:7], s23 offen')
    a('v_mov_b64 v[4:5], 0')
    a('v_mov_b64 v[6:7], 0')
    a(f's_add_u32 s23, s22, {FLAG_OFF}')
    a('s_cmp_lt_u32 s21, 16')
    a('s_cselect_b32 s23, s23, s14')
    a(f'buffer_store_dwordx4 v[4:7], v1, {WS}, s23 offen sc1')
    a(f's_mov_b32 s26, {f32bits(1 / 512):#x}')
    a(f's_mov_b32 s27, {f32bits(1e-5):#x}')
    for r in range(11):
        X, Y, t = 64 + 4 * r, 32, 40
        for k in range(4):
            a(f'v_lshlrev_b32 v{Y + 2 * k}, 16, v{X + k}')
            a(f'v_and_b32 v{Y + 2 * k + 1}, 0xffff0000, v{X + k}')
        a(f'v_add_f32 v{t}, v{Y}, v{Y + 1}')
        a(f'v_mul_f32 v{t + 1}, v{Y}, v{Y}')
        a(f'v_fmac_f32 v{t + 1}, v{Y + 1}, v{Y + 1}')
        for k in range(2, 8):
            a(f'v_add_f32 v{t}, v{t}, v{Y + k}')
            a(f'v_fmac_f32 v{t + 1}, v{Y + k}, v{Y + k}')
        for sh in (8, 4, 2, 1):
            for s in (t, t + 1):
                a(f'v_add_f32_dpp v{s}, v{s}, v{s} row_ror:{sh} row_mask:0xf bank_mask:0xf')
        for op in ('v_permlane16_swap_b32', 'v_permlane32_swap_b32'):
            a(f'v_mov_b32 v{t + 2}, v{t}')
            a(f'v_mov_b32 v{t + 3}, v{t + 1}')
            a(f'{op} v{t}, v{t + 2}')
            a(f'{op} v{t + 1}, v{t + 3}')
            a(f'v_pk_add_f32 {vr(t, 2)}, {vr(t, 2)}, {vr(t + 2, 2)}')
        wb.finish_stats(a, t, t + 1, t + 2, 's26', 's27')
        for k in range(8):
            a(f'v_fma_f32 v{Y + k}, v{Y + k}, v{t + 2}, v{t + 3}')
        for k in range(4):
            a(f'v_cvt_pk_bf16_f32 v{X + k}, v{Y + 2 * k}, v{Y + 2 * k + 1}')
        a(f's_add_u32 s23, s22, {XN_OFF + r * 192 * 1024}')
        if r == 10:
            a('s_cmp_lt_u32 s21, 128')
            a('s_cselect_b32 s23, s23, s14')
        a(f'buffer_store_dwordx4 {vr(X, 4)}, v1, {WS}, s23 offen sc1')
    signal(a, D_READY)
    a('v_mov_b64 v[4:5], -1')
    a('v_mov_b64 v[6:7], -1')
    a('s_lshl_b32 s23, s21, 13')
    a(f's_add_u32 s23, s23, {CPART_OFF}')
    a('s_cmp_lt_u32 s21, 136')
    a('s_cselect_b32 s23, s23, s14')
    fill4k(a, 8)
    a('s_mul_i32 s24, s21, 21846')
    a('s_lshr_b32 s24, s24, 16')
    a('s_mul_i32 s25, s24, 3')
    a('s_sub_u32 s25, s21, s25')
    a('s_lshl_b32 s24, s24, 19')
    a('s_lshl_b32 s25, s25, 13')
    a('s_add_u32 s23, s24, s25')
    a(f's_add_u32 s23, s23, {OX_OFF}')
    fill4k(a, 8)
    for base in (HALO_OFF, HALO_OFF + (4 << 20), XN_OFF + (2 << 20), X2_OFF):
        a(f's_add_u32 s23, s22, {base}')
        fill4k(a, 1)


def fill4k(a, n, sc=' sc1', d='v[4:7]', ad='v1', so=23):
    for k in range(n):
        if k and k % 4 == 0:
            a(f's_add_u32 s{so}, s{so}, 4096')
        a(f'buffer_store_dwordx4 {d}, {ad}, {WS}, s{so} offen offset:{1024 * (k % 4)}{sc}')


def arm_own_rings(a):
    LS, LD = a.newlabel('IA'), a.newlabel('IB')
    a('v_lshlrev_b32 v62, 4, v0')
    a('v_mov_b64 v[64:65], -1')
    a('v_mov_b64 v[66:67], -1')
    a(f's_mul_i32 s64, s{sL}, {WBR_SIZE}')
    a(f's_add_u32 s64, s64, {WBR_OFF}')
    a(f's_lshl_b32 s65, s{sH}, 2')
    a(f's_add_u32 s65, s65, s{sW}')
    a(f's_cmp_eq_u32 s{sFAST}, 0')
    a(f's_cbranch_scc1 {LS}')
    for lab, sc in ((None, ''), (LS, ' sc1')):
        if lab:
            a(f's_branch {LD}')
            a.label(lab)
        for base, sh, n in ((0, 12, 4), (256 << 10, 13, 8), (768 << 10, 10, 1)):
            a(f's_lshl_b32 s66, s65, {sh}')
            a('s_add_u32 s66, s66, s64')
            a(f's_add_u32 s66, s66, {base}')
            fill4k(a, n, sc, 'v[64:67]', 'v62', 66)
    a.label(LD)


def exp_delay(a, us):
    if us:
        L = a.newlabel('DL')
        a('s_memrealtime s[60:61]')
        a('s_waitcnt lgkmcnt(0)')
        a.label(L)
        a('s_sleep 4')
        a('s_memrealtime s[62:63]')
        a('s_waitcnt lgkmcnt(0)')
        a('s_sub_u32 s62, s62, s60')
        a(f's_cmp_lt_u32 s62, {int(us * 100)}')
        a(f's_cbranch_scc1 {L}')


def tstamp(a, opt, reg):
    if opt.get('prof'):
        a(f's_memrealtime s[{reg}:{reg + 1}]')
        a('s_waitcnt lgkmcnt(0)')


def build(opt=None):
    opt = opt or {}
    import importlib
    chain = importlib.import_module(opt.get('chain', 'chain'))
    wb_ = importlib.import_module(opt.get('wb', 'wb'))
    proj = importlib.import_module(opt.get('proj', 'proj'))
    prof = opt.get('prof', False) == 1
    a = Asm()
    a.label('ENTRY')
    emit_prologue(a, opt)
    emit_rerole(a, opt)
    a.label('DISPATCH')
    tstamp(a, opt, 96)
    a(f's_mov_b32 s21, s{sROLE}')
    a('s_cmp_ge_u32 s21, 160')
    a('s_cbranch_scc1 ROLE_P')
    a('s_cmp_ge_u32 s21, 64')
    a('s_cbranch_scc1 ROLE_WB')
    a(f's_and_b32 s{sH}, s21, 31')
    a(f's_lshr_b32 s{sL}, s21, 5')

    def hook(u):
        if opt.get('sprof'):
            a('s_memrealtime s[80:81]')
            a('s_waitcnt lgkmcnt(0)')
            a(f'v_writelane_b32 v125, s80, {u}')
            if u == 17:
                a(f's_lshl_b32 s80, s{sROLE}, 2')
                a(f's_add_u32 s80, s80, s{sW}')
                a('s_lshl_b32 s80, s80, 8')
                a(f's_add_u32 s80, s80, {PROF_OFF + (10 << 20)}')
                a('v_lshlrev_b32 v115, 2, v0')
                a(f'buffer_store_dword v125, v115, {WS}, s80 offen')
        if u == 1:
            save_rank(a)
        if u == opt.get('cu', 12):
            census_load(a, 120)
        if u == opt.get('cu', 12) + 3:
            verify(a, opt, 120)
    if opt.get('c1n', 0):
        a(f's_cmp_eq_u32 s{sL}, 0')
        a('s_cbranch_scc1 C0GO')
        save_rank(a)
        verify(a, opt)
        wait_progress(a, opt.get('c1n', 0))
        a.label('C0GO')
    if opt.get('dC'):
        a(f's_cmp_eq_u32 s{sL}, 0')
        a('s_cbranch_scc1 C0GO3')
        exp_delay(a, opt.get('dC'))
        a.label('C0GO3')
    chain.emit_chain_setup(a, hook, D_READY2, opt)
    for w in range(1, 4):
        a(f's_cmp_eq_u32 s{sW}, {w}')
        a(f's_cbranch_scc1 CW{w}')
    for w in range(4):
        a.label(f'CW{w}')
        chain.emit_chain_consts(a, w)
        chain.emit_chain_first(a, w, 'FAIL', D_READY2)
        tstamp(a, opt, 98)
        if opt.get('prof') == 2:
            a('s_memtime s[86:87]')
            a('s_waitcnt lgkmcnt(0)')
        a(f's_cmp_eq_u32 s{sFAST}, 0')
        a(f's_cbranch_scc1 CS{w}')
        chain.emit_chain_loop(a, w, True, 'FAIL', 'FIN', prof, opt)
        a.label(f'CS{w}')
        chain.emit_chain_loop(a, w, False, 'FAIL', 'FIN', prof, opt)
    a.label('ROLE_WB')
    a('s_sub_u32 s21, s21, 64')
    a(f's_and_b32 s{sH}, s21, 15')
    a(f's_lshr_b32 s{sL}, s21, 4')
    a(f's_bitcmp0_b32 s{sL}, 0')
    a('s_cbranch_scc1 W0GO')
    save_rank(a)
    verify(a, opt)
    a(f's_lshr_b32 s21, s{sL}, 1')
    a('s_lshl_b32 s21, s21, 4')
    a(f's_add_u32 s21, s21, s{sH}')
    emit_init_work(a)
    signal(a, D_READY2)
    a.label('W0GO')

    ws_ = lambda k: tstamp(a, opt, 96) if opt.get('wbst') == k else None
    ws_(0)

    if opt.get('w1n', 5):
        a(f's_bitcmp0_b32 s{sL}, 0')
        a('s_cbranch_scc1 W0GO2')
        wait_progress(a, opt.get('w1n', 5))
        a.label('W0GO2')

    exp_delay(a, opt.get('dW'))

    def wb_hook(u):
        if u == 6:
            save_rank(a)
            census_load(a, 16)
        if u == 9:
            verify(a, opt, 16)
            arm_own_rings(a)
        if u == 18:
            signal(a, D_READY3, True, drain=False)
    wb_.emit_wb_setup(a, wb_hook, ws_, opt.get('late', 0))
    ws_(4)
    wait_two(a)
    ws_(5)
    tstamp(a, opt, 98)
    a(f's_cmp_eq_u32 s{sFAST}, 0')
    a('s_cbranch_scc1 WBS')
    wb_.emit_wb_loop(a, True, 'FAIL', 'FIN', prof, opt)
    a.label('WBS')
    wb_.emit_wb_loop(a, False, 'FAIL', 'FIN', prof, opt)
    a.label('ROLE_P')
    a('s_sub_u32 s21, s21, 160')
    a(f's_and_b32 s{sH}, s21, 31')
    a(f's_lshr_b32 s{sL}, s21, 5')
    exp_delay(a, opt.get('dP'))
    proj.emit_proj_setup(a)
    save_rank(a)
    verify(a, opt)
    wait_count(a, D_READY, 48)
    tstamp(a, opt, 98)
    for m in (1, 2):
        a(f's_cmp_eq_u32 s{sL}, {m}')
        a(f's_cbranch_scc1 PM{m}')
    for m in range(3):
        a.label(f'PM{m}')
        proj.emit_proj_loop(a, m, 'FAIL', 'FIN', opt)
    a.label('FAIL')
    a(f's_load_dwordx2 s[8:9], s[0:1], {KA_DBG}')
    a('s_mov_b64 exec, 1')
    a(f'v_mov_b32 v2, {D_FAIL}')
    a('v_mov_b32 v3, 1')
    a('s_waitcnt lgkmcnt(0)')
    a('global_atomic_add v2, v3, s[8:9]')
    a('s_waitcnt vmcnt(0)')
    a('s_endpgm')
    a.label('FIN')
    if opt.get('dbgt'):
        a('s_waitcnt vmcnt(0)')
        tstamp(a, opt, 100)
        a(f's_and_b32 s3, s{sROLE}, 15')
        a(f's_or_b32 s3, s3, s{sW}')
        a('s_cbranch_scc1 DONE')
        a(f's_load_dwordx2 s[8:9], s[0:1], {KA_DBG}')
        a('s_mov_b64 exec, 1')
        a('s_waitcnt lgkmcnt(0)')
        a('s_not_b32 s94, s94')
        a(f's_lshr_b32 s3, s{sROLE}, 5')
        a('s_min_u32 s3, s3, 2')
        a('s_lshl_b32 s3, s3, 2')
        for off, reg, byrole in ((32, 94, 0), (36, 100, 1), (48, 98, 1)):
            a(f'v_mov_b32 v2, {off}')
            if byrole:
                a('v_add_u32 v2, s3, v2')
            a(f'v_mov_b32 v3, s{reg}')
            a('global_atomic_umax v2, v3, s[8:9]')
        a('s_waitcnt vmcnt(0)')
        a('s_endpgm')
    if opt.get('prof'):
        a('s_waitcnt vmcnt(0)')
        tstamp(a, opt, 100)
        a('s_mov_b64 exec, 1')
        a(f's_lshl_b32 s93, s{sROLE}, 4')
        a(f's_add_u32 s93, s93, {PROF_OFF + (8 << 20)}')
        for k in range(4):
            a(f'v_mov_b32 v{4 + k}, s{94 + 2 * k}')
        a('v_mov_b32 v2, 0')
        a(f'buffer_store_dwordx4 v[4:7], v2, {WS}, s93 offen')
        if opt.get('prof') == 2:
            a('s_memtime s[84:85]')
            a('s_waitcnt lgkmcnt(0)')
            a('s_sub_u32 s84, s84, s86')
            a('v_mov_b32 v4, s84')
            a('s_add_u32 s93, s93, 4096')
            a(f'buffer_store_dword v4, v2, {WS}, s93 offen')
    a.label('DONE')
    a.label('CODE_END')
    body = a.finalize(entries=('ENTRY',))
    return body


HEADER = open('interleave_layers__memory_aug_recurrent_mem_tr__sliding_local_dilated__prompt.s.ref').read().split('; Override launch')[0] if False else ''


def full_text(opt=None):
    body = build(opt)
    return f'''; @launch grid=(256,1,1) block=(256,1,1) lds=163840
.amdgcn_target "amdgcn-amd-amdhsa--gfx950"
.text
.globl {NAME}
.p2align 8
.type {NAME},@function
{NAME}:
{body}s_endpgm
.section .rodata,"a"
.p2align 6
.amdhsa_kernel {NAME}
  .amdhsa_next_free_vgpr 512
  .amdhsa_next_free_sgpr 102
  .amdhsa_accum_offset 256
  .amdhsa_group_segment_fixed_size 0
  .amdhsa_kernarg_size 104
  .amdhsa_user_sgpr_count 2
  .amdhsa_user_sgpr_kernarg_segment_ptr 1
  .amdhsa_system_sgpr_workgroup_id_x 1
  .amdhsa_float_denorm_mode_32 3
.end_amdhsa_kernel
'''


if __name__ == '__main__':
    opt = eval(sys.argv[2]) if len(sys.argv) > 2 else {}
    t = full_text(opt)
    open(sys.argv[1], 'w').write(t)
    print(len(t), 'bytes', t.count('\n'), 'lines')
```

```python
import re
from asmlib import *
from layout import *

L_MEM, L_KX, L_VX = 0, 8192, 16384
L_QM = 24576
L_KM = L_QM + 2304
L_VM = L_KM + 2304
L_ZERO = L_VM + 2048
L_WST = 32768
vL16, vW16, vXw, vQr, vKr, vIdx, vPst, vOx, v8, v9, vT0, vT1 = range(12)
A_, ACC, S_, X_ = 12, 44, 60, 124
sStep, sQKV, sQKVn, sOX, sOX2, sP, sPr, sM, sMr, sMw, sSpin, sFlag, sT, sT2, sPb, sMb, sQx, sQx2 = range(20, 38)
sC = 38
sMASK = 40
sEM, sEX = 56, 58
sSEL = 60
sOXp, sTag = 68, 69
sPROF = 70
SPIN_MAX = 1 << 22

S1A = [(t, 0) for t in range(4)] + [(0, 1), (1, 1)]
S1B = [(t, 5) for t in range(4)]
S1C = [(0, 4), (1, 4)]
S3 = [(t, 1) for t in range(4, 8)]


def resident_map():
    staged = S1A + S1B + S1C
    ops = [('qk', t, kt) for kt in range(8) for t in range(4) if (t, kt) not in staged]
    ops += [('v', t, kt) for kt in range(8) for t in range(2)]
    ops += [('o', t, z) for z in range(2) for t in range(8) if (t, z) not in S3]
    assert len(ops) == 48
    m = {}
    for i, o in enumerate(ops):
        m[o] = ('a', 8 * i) if i < 32 else ('v', 128 + 8 * (i - 32))
    for i, (t, kt) in enumerate(S1A):
        m[('qk', t, kt)] = ('lds', i, S_ + 8 * i)
    for i, (t, kt) in enumerate(S1B):
        m[('qk', t, kt)] = ('lds', 6 + i, S_ + 8 * i)
    for i, (t, kt) in enumerate(S1C):
        m[('qk', t, kt)] = ('lds', 10 + i, S_ + 32 + 8 * i)
    for i, (t, z) in enumerate(S3):
        m[('o', t, z)] = ('lds', 12 + i, [ACC, S_ + 32, S_ + 16, S_ + 24][i])
    return m


RM = resident_map()


def bop(key):
    e = RM[key]
    if e[0] == 'a':
        return ar(e[1], 8)
    if e[0] == 'v':
        return vr(e[1], 8)
    return vr(e[2], 8)


def stage_reads(key):
    e = RM[key]
    return [f'ds_read_b128 {vr(e[2] + 4 * hh, 4)}, v{vW16} offset:{e[1] * 2048 + hh * 1024}' for hh in range(2)]


def zfill(reg):
    return f'ds_read_b128 {vr(reg, 4)}, v{vL16} offset:{L_ZERO}'


XW = 0
vCNT, vFLG = 124, 7


sOKF = 78


def count_load(a, d_ready):
    a(f's_load_dwordx2 s[70:71], s[0:1], {KA_DBG}')
    a(f'v_mov_b32 v114, {d_ready}')
    a('s_waitcnt lgkmcnt(0)')
    a('s_mov_b64 exec, 1')
    a(f'global_load_dword v{vCNT}, v114, s[70:71] sc1')
    a('s_mov_b64 exec, -1')


def flag_load(a, dst):
    a(f'v_readlane_b32 s79, v{vCNT}, 0')
    a('v_mbcnt_lo_u32_b32 v113, -1, 0')
    a('v_lshlrev_b32 v112, 4, v113')
    a(f's_lshl_b32 s3, s{sL}, 5')
    a(f's_add_u32 s3, s3, s{sH}')
    a('s_lshl_b32 s76, s3, 8')
    a(f's_add_u32 s76, s76, {FLAG_OFF}')
    a('s_mov_b64 exec, 0xfff')
    a(f'buffer_load_dword v{dst}, v112, {WS}, s76 offen sc1')
    a('s_mov_b64 exec, -1')


def check_eval(a, src, need):
    a('s_mov_b64 exec, 0xfff')
    a(f'v_cmp_gt_u32 vcc, {need}, v{src}')
    a('s_mov_b64 exec, -1')
    a('s_cmp_eq_u64 vcc, 0')
    a('s_cselect_b32 s76, s79, 0')
    a('s_cmp_ge_u32 s76, 48')


def first_loads(a):
    a(f's_load_dwordx2 s[72:73], s[0:1], {KA_MEM0}')
    a('s_mov_b32 s74, 8192')
    a('s_mov_b32 s75, 0x20000')
    a('v_mbcnt_lo_u32_b32 v113, -1, 0')
    a('v_mbcnt_hi_u32_b32 v113, -1, v113')
    a('v_lshlrev_b32 v112, 4, v113')
    a(f's_lshl_b32 s3, s{sL}, 5')
    a(f's_add_u32 s3, s3, s{sH}')
    a('s_lshl_b32 s3, s3, 6')
    a(f's_mul_i32 s77, s3, {QKV_BLK}')
    a(f's_lshl_b32 s3, s{sW}, 12')
    a(f's_add_u32 m0, s3, {L_KX}')
    a('s_add_u32 s3, s3, s77')
    for p in range(4):
        a(f'buffer_load_dwordx4 v112, {WS}, s3 offen offset:{1024 * p} sc1 lds')
    a('v_and_b32 v114, 1, v113')
    a('v_bfe_u32 v115, v113, 2, 2')
    a('v_lshl_add_u32 v114, v115, 1, v114')
    a('v_lshrrev_b32 v115, 4, v113')
    a('v_bfe_u32 v113, v113, 1, 1')
    a('v_lshlrev_b32 v114, 10, v114')
    a('v_lshl_add_u32 v114, v115, 5, v114')
    a('v_lshl_add_u32 v114, v113, 4, v114')
    a(f's_lshl_b32 s3, s{sW}, 11')
    a('s_add_u32 s3, s3, s77')
    a('s_add_u32 s3, s3, 16384')
    a(f'buffer_load_dwordx4 v[116:119], v112, {WS}, s3 offen sc1')
    a(f'buffer_load_dwordx4 v[120:123], v112, {WS}, s3 offen offset:1024 sc1')
    a(f's_lshl_b32 s3, s{sL}, 19')
    a(f's_lshl_b32 s76, s{sH}, 13')
    a('s_add_u32 s3, s3, s76')
    a(f's_and_b32 s76, s{sW}, 1')
    a('s_lshl_b32 s76, s76, 18')
    a('s_add_u32 s3, s3, s76')
    a(f's_add_u32 s3, s3, {CPART_OFF}')
    a(f's_lshl_b32 s76, s{sL}, 15')
    a(f's_lshl_b32 s77, s{sH}, 10')
    a('s_add_u32 s76, s76, s77')
    a(f's_add_u32 s76, s76, {CMEM_OFF}')
    a(f's_cmp_lt_u32 s{sW}, 2')
    a('s_cselect_b32 s3, s3, s76')
    a('s_cselect_b32 s76, 3, 0')
    a('v_lshlrev_b32 v115, s76, v112')
    a(f'buffer_load_dword v115, v115, {WS}, s3 offen sc1')
    a('s_waitcnt lgkmcnt(0)')
    for k in range(2):
        a(f's_lshl_b32 s3, s{sW}, 11')
        a(f's_add_u32 m0, s3, {L_MEM + 1024 * k}')
        a(f's_lshl_b32 s3, s{sW}, 8')
        a(f's_add_u32 s3, s3, {128 * k}')
        a('buffer_load_dwordx4 v114, s[72:75], s3 offen lds')


def emit_chain_setup(a, hook=None, d_ready=None, opt=None):
    lane, vn, vgb, vAq, vAv, vAo = 0, 1, 2, 3, 4, 5
    a(f'v_and_b32 v{vn}, 15, v{lane}')
    a(f'v_lshrrev_b32 v{vgb}, 4, v{lane}')
    a(f'v_lshrrev_b32 v6, 1, v{vgb}')
    a(f'v_and_b32 v7, 1, v{vgb}')
    a(f'v_lshlrev_b32 v8, 17, v6')
    a(f'v_lshl_add_u32 v8, v7, 15, v8')
    a(f'v_lshl_add_u32 v{vAq}, v{vn}, 3, v8')
    a(f'v_and_b32 v9, 14, v{vn}')
    a(f'v_lshl_add_u32 v{vAv}, v9, 2, v8')
    a(f'v_and_b32 v9, 1, v{vn}')
    a(f'v_lshl_add_u32 v{vAv}, v9, 18, v{vAv}')
    a(f'v_lshlrev_b32 v8, 15, v7')
    a(f'v_lshl_add_u32 v8, v6, 13, v8')
    a(f'v_lshl_add_u32 v{vAo}, v{vn}, 3, v8')
    a(f's_lshl_b32 s3, s{sW}, 15')
    a(f's_add_u32 s3, s3, {L_WST}')
    a(f'v_lshl_add_u32 v6, v{lane}, 4, s3')
    vSt = 6
    a(f's_load_dwordx4 s[40:43], s[0:1], {KA_WQ}')
    a(f's_load_dwordx4 s[44:47], s[0:1], {KA_WV}')
    a('s_waitcnt lgkmcnt(0)')
    a(f's_cmp_lt_u32 s{sW}, 2')
    a('s_cselect_b32 s4, s40, s42')
    a('s_cselect_b32 s5, s41, s43')
    a('s_mov_b32 s6, 0x400000')
    a('s_mov_b32 s7, 0x20000')
    a('s_mov_b32 s8, s44')
    a('s_mov_b32 s9, s45')
    a('s_mov_b32 s10, 0x400000')
    a('s_mov_b32 s11, 0x20000')
    a('s_mov_b32 s48, s46')
    a('s_mov_b32 s49, s47')
    a('s_mov_b32 s50, 0x400000')
    a('s_mov_b32 s51, 0x20000')
    a(f's_lshl_b32 s20, s{sH}, 8')
    a(f's_and_b32 s21, s{sW}, 1')
    a('s_lshl_b32 s21, s21, 7')
    a('s_add_u32 s21, s21, s20')
    a(f's_lshl_b32 s22, s{sW}, 6')
    a('s_add_u32 s22, s22, s20')
    a(f's_lshl_b32 s23, s{sH}, 17')
    a(f's_lshl_b32 s24, s{sW}, 8')
    a('s_add_u32 s23, s23, s24')
    a(f's_and_b32 s24, s{sW}, {XW}')
    a('s_lshl_b32 s24, s24, 7')
    a('s_add_u32 s23, s23, s24')
    a('s_xor_b32 s29, s23, 128')
    a('s_mov_b32 s26, 0x05040100')
    a('s_mov_b32 s27, 0x07060302')
    a('s_mov_b32 s30, 0x55555555')
    a('s_mov_b32 s31, 0x55555555')
    SEL = (26, 27)
    rowqk = lambda jb: 32 * (jb >> 3) + 8 * ((jb >> 1) & 1) + 2 * ((jb >> 2) & 1) + (jb & 1)
    rowo = lambda jb: 16 * (jb >> 3) + 2 * (jb & 3) + ((jb >> 2) & 1)
    BUF = [16, 48, 80]
    TMP = 8
    units = []

    def put(key, j0, n, srcs):
        out = []
        e = RM[key]
        for k, (hi, lo, sel) in enumerate(srcs):
            if e[0] == 'v':
                out.append(f'v_perm_b32 v{e[1] + j0 + k}, v{hi}, v{lo}, s{SEL[sel]}')
            else:
                out.append(f'v_perm_b32 v{TMP + k}, v{hi}, v{lo}, s{SEL[sel]}')
        if e[0] == 'a':
            out += [f'v_accvgpr_write_b32 a{e[1] + j0 + k}, v{TMP + k}' for k in range(n)]
        elif e[0] == 'lds':
            for hh in range(n // 4):
                out.append(f'ds_write_b128 v{vSt}, {vr(TMP + 4 * hh, 4)} offset:{e[1] * 2048 + (j0 // 4 + hh) * 1024}')
        return out

    def rot(kt, base):
        return [f's_lshl_b32 s28, s{sW}, 1', f's_add_u32 s28, s28, {kt}', 's_and_b32 s28, s28, 7', 's_lshl_b32 s28, s28, 19', f's_add_u32 s28, s28, s{base}']

    for kt in range(8):
        def ld(B, kt=kt):
            o = rot(kt, 21)
            for jb in range(16):
                o.append(f's_add_u32 s25, s28, {rowqk(jb) * 8192}')
                o.append(f'buffer_load_dwordx2 {vr(B + 2 * jb, 2)}, v{vAq}, s[4:7], s25 offen')
            return o

        def pr(B, kt=kt):
            o = []
            for t in range(4):
                o += put(('qk', t, kt), 0, 8, [(B + 2 * (2 * jj + 1) + (t >> 1), B + 2 * (2 * jj) + (t >> 1), t & 1) for jj in range(8)])
            return o
        units.append((ld, pr))
    for kp in range(4):
        def ld(B, kp=kp):
            o = []
            for kk in range(2):
                for jb in range(8):
                    o.append(f's_add_u32 s25, s22, {(64 * (2 * kp + kk) + rowqk(jb)) * 8192}')
                    o.append(f'buffer_load_dwordx2 {vr(B + 16 * kk + 2 * jb, 2)}, v{vAv}, s[8:11], s25 offen')
            return o

        def pr(B, kp=kp):
            o = []
            for kk in range(2):
                R = B + 16 * kk
                o.append('s_mov_b64 vcc, s[30:31]')
                o += [f'v_cndmask_b32_dpp v{112 + j}, v{R + 2 * j + 1}, v{R + 2 * j}, vcc quad_perm:[0,0,2,2] row_mask:0xf bank_mask:0xf' for j in range(8)]
                o.append('s_not_b64 vcc, vcc')
                o += [f'v_cndmask_b32_dpp v{R + 2 * j + 1}, v{R + 2 * j}, v{R + 2 * j + 1}, vcc quad_perm:[1,1,3,3] row_mask:0xf bank_mask:0xf' for j in range(8)]
                row = lambda jb: 112 + jb if jb < 8 else R + 2 * (jb - 8) + 1
                for t in range(2):
                    o += put(('v', t, 2 * kp + kk), 0, 8, [(row(2 * jj + 1), row(2 * jj), t) for jj in range(8)])
            return o
        units.append((ld, pr))
    for z in range(2):
        for hb in range(2):
            def ld(B, z=z, hb=hb):
                o = []
                for jb in range(16):
                    o.append(f's_add_u32 s25, s{23 if hb == 0 else 29}, {(64 * z + rowo(jb)) * 1024}')
                    o.append(f'buffer_load_dwordx2 {vr(B + 2 * jb, 2)}, v{vAo}, s[48:51], s25 offen')
                return o

            def pr(B, z=z, hb=hb):
                o = []
                for t in range(4):
                    o += put(('o', 4 * hb + t, z), 0, 8, [(B + 2 * (2 * jj + 1) + (t >> 1), B + 2 * (2 * jj) + (t >> 1), t & 1) for jj in range(8)])
                return o
            units.append((ld, pr))
    opt = opt or {}
    if opt.get('wofirst', 0):
        units = units[12:] + units[8:12] + units[:8]
    D = opt.get('depth', 2)
    n = len(units)
    for u in range(n + 2):
        if hook:
            if u == n - 6:
                count_load(a, d_ready)
            if u == n - 3:
                flag_load(a, vFLG)
            if u == n:
                NL = a.newlabel('CNL')
                check_eval(a, vFLG, 2)
                a(f's_cselect_b32 s{sOKF}, 1, 0')
                a(f's_cbranch_scc0 {NL}')
                first_loads(a)
                a.label(NL)
        if u < n:
            for l in units[u][0](BUF[u % 3]):
                a(l)
        if hook:
            hook(u)
        if D <= u < n + D:
            for l in units[u - D][1](BUF[(u - D) % 3]):
                a(l)
    a('v_mov_b64 v[12:13], 0')
    a('v_mov_b64 v[14:15], 0')
    a(f'v_lshlrev_b32 v8, 4, v{lane}')
    a(f'ds_write_b128 v8, v[12:15] offset:{L_ZERO}')
    a(f'v_mov_b32 v125, v{vFLG}')
    a('s_waitcnt lgkmcnt(0)')


def emit_chain_consts(a, w, par=0):
    i, g, t1, t2, vtq, vhf = 20, 21, 22, 23, 24, 25
    a(f'v_and_b32 v{i}, 15, v0')
    a(f'v_lshrrev_b32 v{g}, 4, v0')
    a(f'v_lshrrev_b32 v{t1}, 2, v{i}')
    a(f'v_and_b32 v{t2}, 1, v{i}')
    a(f'v_lshl_add_u32 v{vtq}, v{t1}, 1, v{t2}')
    a(f'v_bfe_u32 v{vhf}, v{i}, 1, 1')
    a(f'v_mov_b32 v26, v0')
    a(f'v_lshlrev_b32 v{vL16}, 4, v26')
    a(f'v_add_u32 v{vW16}, {L_WST + w * 32768}, v{vL16}')
    a('s_movk_i32 s3, 144')
    if w < 2:
        a(f'v_lshrrev_b32 v27, 1, v{i}')
        a(f'v_mul_lo_u32 v27, v27, s3')
        a(f'v_lshl_add_u32 v27, v{g}, 5, v27')
        a(f'v_lshl_add_u32 v27, v{t2}, 3, v27')
        a(f'v_add_u32 v{vXw}, {L_QM + 8 * w * 144}, v27')
    else:
        a(f'v_lshlrev_b32 v27, 1, v{t1}')
        a(f'v_mul_lo_u32 v27, v27, s3')
        a(f'v_lshl_add_u32 v27, v{g}, 5, v27')
        a(f'v_and_b32 v28, 3, v{i}')
        a(f'v_lshl_add_u32 v27, v28, 2, v27')
        a(f'v_add_u32 v{vXw}, {L_KM + 8 * (w - 2) * 144}, v27')
    a(f'v_mul_lo_u32 v27, v{g}, s3')
    a(f'v_lshl_add_u32 v27, v{vtq}, 4, v27')
    a(f'v_add_u32 v{vQr}, {L_QM}, v27')
    a(f'v_lshl_add_u32 v27, v{g}, 1, v{vhf}')
    a(f'v_mul_lo_u32 v27, v27, s3')
    a(f'v_lshl_add_u32 v27, v{vtq}, 4, v27')
    a(f'v_add_u32 v{vKr}, {L_KM}, v27')
    a(f'v_mul_u32_u24 v27, 0xaaaa, v{vhf}')
    a(f'v_add_u32 v{vIdx}, 0x4444, v27')
    a(f'v_lshlrev_b32 v27, 13, v{t1}')
    a(f'v_lshl_add_u32 v27, v{g}, 11, v27')
    a(f'v_and_b32 v28, 3, v{i}')
    a(f'v_lshl_add_u32 v27, v28, 4, v27')
    a(f's_lshl_b32 s3, s{sH}, 6')
    a(f's_add_u32 s3, s3, {8 * w * 8192}')
    a(f'v_add_u32 v{vPst}, s3, v27')
    for k in range(4):
        smov64(a, sSEL + 2 * k, mask64(lambda i, g: (i >> 1) == k))
    a(f'v_lshlrev_b32 v28, 10, v{vtq}')
    a(f'v_lshl_add_u32 v28, v{g}, 5, v28')
    a(f'v_lshl_add_u32 v28, v{vhf}, 4, v28')
    for T in range(2):
        for rho in range(4):
            m = mask64(lambda i, g: hf(i) == 1 and 16 * (g >> 1) + 8 * T + 4 * (g & 1) + rho > (16 * (w & 1) + 2 * tq(i) + (w >> 1) if par else 8 * w + tq(i)))
            smov64(a, sMASK + 2 * (4 * T + rho), m)
    smov64(a, sEM, 0x3333333333333333)
    smov64(a, sEX, 0xcccccccccccccccc)
    a(f's_mov_b32 s{sC}, {f32bits(SCALE_A):#x}')
    a(f's_mov_b32 s{sC + 1}, {f32bits(SCALE_A):#x}')
    a(f's_mov_b32 s{sStep}, 0')
    a(f's_lshl_b32 s3, s{sL}, 5')
    a(f's_add_u32 s3, s3, s{sH}')
    a('s_lshl_b32 s3, s3, 6')
    a(f's_mul_i32 s{sQKV}, s3, {QKV_BLK}')
    a(f's_lshl_b32 s{sOX}, s3, 13')
    a(f's_add_u32 s{sOX}, s{sOX}, {OX_OFF + 2048 * w}')
    a(f's_lshl_b32 s{sPb}, s{sL}, 19')
    a(f's_add_u32 s{sPb}, s{sPb}, {CPART_OFF}')
    a(f's_lshl_b32 s{sMb}, s{sL}, 15')
    a(f's_add_u32 s{sMb}, s{sMb}, {CMEM_OFF}')
    a(f's_lshl_b32 s3, s{sL}, 5')
    a(f's_add_u32 s3, s3, s{sH}')
    a('s_lshl_b32 s3, s3, 8')
    a(f's_add_u32 s{sFlag}, s3, {FLAG_OFF}')


def flag_wait(a, need_sreg, fail, preloaded=False):
    L, Lok = a.newlabel('FW'), a.newlabel('FOK')
    a('s_mov_b64 exec, 0xfff')
    if preloaded:
        a(f'v_cmp_gt_u32 vcc, s{need_sreg}, v{v9}')
        a(f's_cbranch_vccz {Lok}')
    a.label(L)
    spin_guard(a, sSpin, fail)
    a(f'buffer_load_dword v{v9}, v{vL16}, {WS}, s{sFlag} offen sc1')
    a(f'v_cmp_gt_u32 vcc, s{need_sreg}, v{v9}')
    a(f's_cbranch_vccnz {L}')
    a.label(Lok)
    a('s_mov_b64 exec, -1')


def prefetch_next(a):
    for key in S1A:
        for l in stage_reads(('qk',) + key):
            a(l)
    for t in range(4):
        a(f'v_mov_b64 {vr(ACC + 4 * t, 2)}, 0')
        a(f'v_mov_b64 {vr(ACC + 4 * t + 2, 2)}, 0')


def emit_chain_first(a, w, fail, d_ready):
    RE, OK = a.newlabel('CF'), a.newlabel('CK')
    a(f's_mov_b32 s{sSpin}, 0')
    a(f's_cmp_eq_u32 s{sOKF}, 1')
    a(f's_cbranch_scc1 {OK}')
    a.label(RE)
    spin_guard(a, sSpin, fail)
    RF = a.newlabel('CG')
    a('s_cmp_ge_u32 s79, 48')
    a(f's_cbranch_scc1 {RF}')
    count_load(a, d_ready)
    a.label(RF)
    flag_load(a, 125)
    check_eval(a, 125, 1)
    a(f's_cbranch_scc0 {RE}')
    first_loads(a)
    if w == 0:
        a(f's_mov_b32 s{sT}, 2')
        flag_wait(a, sT, fail)
        a(f'v_mov_b32 v125, v{v9}')
    a.label(OK)
    a(f'v_mov_b32 v{v9}, v125')
    a('s_waitcnt vmcnt(0)')
    for k in range(2):
        a(f'ds_read_b128 {vr(A_ + 4 * k, 4)}, v{vL16} offset:{L_MEM + 1024 * (2 * w + k)}')
    prefetch_next(a)
    a(f's_mov_b32 s{sOXp}, {WS_BYTES}')
    a('s_waitcnt lgkmcnt(0)')


def emit_chain_loop(a0, w, fast, fail, done, prof=False, opt=None):
    opt = opt or {}
    drop = opt.get('drop', [])

    class Filt:
        def __call__(self, text):
            for line in text.split('\n'):
                if not any(re.search(p, line) for p in drop):
                    a0(line)

        def __getattr__(self, n):
            return getattr(a0, n)
    a = Filt()
    sc = '' if fast else ' sc1'
    LOOP = a.newlabel('CL')
    LAST = a.newlabel('CLAST')
    npr = [0]

    fine = opt.get('fine')

    def fstamp(name):
        if prof and fine and name in fine:
            a(f's_memtime {sr(sPROF + 16 + 2 * fine.index(name), 2)}')

    def stamp():
        if prof:
            a(f'{"s_memrealtime" if opt.get("rt") else "s_memtime"} {sr(sPROF + 2 * npr[0], 2)}')
            npr[0] += 1

    def smf(d, A, B):
        return f'v_smfmac_f32_16x16x64_bf16 {vr(d, 4)}, {vr(A, 4)}, {B}, v{vIdx}'

    Q_, VACC = S_ + 32, S_ + 48
    QA, QB, KM_ = S_ + 56, S_ + 40, S_ + 32
    QE = [QA, QA + 4, QB, QB + 4]
    T0, T1, TM = ACC, ACC + 4, X_
    DD = [S_ + 48 + 2 * U for U in range(8)]

    def ox_store(u, s0):
        return f'buffer_store_dwordx4 {vr(DD[2 * u], 4)}, v{vL16}, {WS}, s{s0} offen offset:{1024 * u} sc1'

    def ox_pack():
        o = [f's_mov_b64 vcc, {sr(sEX, 2)}']
        o += [f'v_cndmask_b32_dpp v{DD[0] + k}, v{DD[4] + k}, v{DD[0] + k}, vcc quad_perm:[2,3,2,3] row_mask:0xf bank_mask:0xf' for k in range(8)]
        o += [f'v_min_u32 v{DD[2 * u]}, -2, v{DD[2 * u]}' for u in range(2)]
        return o

    def memrd(k):
        return f'ds_read_b128 {vr(A_ + 4 * k, 4)}, v{vL16} offset:{L_MEM + 1024 * ((2 * w + k) & 7)}'
    sal = [f's_add_u32 s{sQx}, s{sQKV}, {16384 + 2048 * w}',
           f's_add_u32 s{sQKVn}, s{sQKV}, {0 if opt.get("samekv") else QKV_BLK}', f's_add_u32 s{sQx2}, s{sQKVn}, {8192 * max(w - 1, 0)}']
    for l in sal:
        a(l)
    a(f'v_lshlrev_b32 v{vOx}, 3, v{vL16}')
    a(f's_branch {LOOP}')
    i_loop = len(a0.items)
    a.label(LOOP)
    mreg = opt.get('mreg', 3)
    if not mreg:
        a('s_barrier')
    stamp()
    order = [(t, kt) for kt in range(6) for t in range(4)] + [(t, kt) for t in range(4) for kt in (6, 7)]
    mem = [[] for _ in range(32)]
    alu = [[] for _ in range(32)]
    qearly = opt.get('qearly', 0)
    qld = [f'buffer_load_dwordx4 {vr(QA + 4 * p, 4)}, v{vL16}, {WS}, s{sQx} offen offset:{1024 * p} sc1' for p in range(2)]
    vm = ['\n'.join(qld)] if qearly else []
    kpv = opt.get('kpv', 0)
    kreal = 0 if kpv else opt.get('kreal', 1)
    vlate = opt.get('vlate', 0)
    if w > (1 if kreal else 0) and opt.get('warm', 1):
        vm.append(f'buffer_load_dword v{v8}, v{vOx}, {WS}, s{sQx2} offen sc1')
    flag_ld = f's_mov_b64 exec, 0xfff\nbuffer_load_dword v{v9}, v{vL16}, {WS}, s{sFlag} offen sc1\ns_mov_b64 exec, -1'
    fresh = opt.get('fresh', 0)
    if kpv and w == 0:
        vm = [flag_ld] + vm
    if fresh:
        vm = [flag_ld + ''.join('\n' + x for x in vm)]
    vm += [ox_store(0, sOXp), ox_store(1, sOXp)]
    for k, l in enumerate(vm):
        mem[4 * k + w].append(l)
    rd = [memrd(k) for k in range(2, 8)]
    rd += [l for key in S1C + S1B for l in stage_reads(('qk',) + key)]
    if mreg:
        kb = mreg - 1
        mem[kb] += ['s_waitcnt lgkmcnt(0)', 's_barrier', rd[0], rd[1]]
        mem[kb + 1] += [rd[2], rd[3]]
        mem[kb + 2] += [rd[4], rd[5]]
        for k, l in enumerate(rd[6:]):
            mem[max(6 + k, kb + 3 + k // 2 if k < 4 else 0)].append(l)
        for k in range(32):
            far = [l for l in mem[k] if l.startswith('buffer')]
            if far and k <= kb:
                mem[k] = [l for l in mem[k] if not l.startswith('buffer')]
                mem[kb + 1 + k] += far
    else:
        for k, l in enumerate(rd):
            mem[k].append(l)
    for j in range(8):
        mem[21 + j].append(f'ds_read_b128 {vr(S_ + 4 * j, 4)}, v{vL16} offset:{L_KX + j * 1024}')
    qmv = [f'v_mov_b32_dpp v{QB + k}, v{QA + k} quad_perm:[0,1,0,1] row_mask:0xf bank_mask:0xf' for k in range(8)]
    if qearly:
        for k in range(4):
            alu[17 + k].append(f'v_mov_b64 {vr(VACC + 2 * k, 2)}, 0')
        alu[21].append(f'v_mov_b32 v{vT1}, {NEG:#x}')
        for k in range(5):
            alu[22 + k].append(qmv[k])
        qrest = qmv[5:]
    else:
        for k in range(4):
            alu[13 + k].append(f'v_mov_b64 {vr(VACC + 2 * k, 2)}, 0')
        for k in range(8):
            alu[18 + k].append(qmv[k])
        alu[26].append(f'v_mov_b32 v{vT1}, {NEG:#x}')
        qrest = []
    for k, (tt, x) in zip((27, 28, 29, 30, 31, 31), ((0, 0), (0, 1), (1, 0), (1, 1), (2, 0), (2, 1))):
        alu[k].append(f'v_add_f32 v{ACC + 4 * tt + x}, v{ACC + 4 * tt + x}, v{ACC + 4 * tt + 2 + x}')
    FSL, FRET = a.newlabel('FSL'), a.newlabel('FRET')
    fhop = opt.get('fhop', 1)
    if w == 0 and not fhop:
        mem[6] += [f's_add_u32 s{sT}, s{sStep}, 2', f's_min_u32 s{sT}, s{sT}, {NSEG}']
        alu[7] += ['s_mov_b64 exec, 0xfff', f'v_cmp_gt_u32 vcc, s{sT}, v{v9}', 's_mov_b64 exec, -1']
        mem[10] += [f's_cbranch_vccnz {FSL}', FRET + ':']
    for k, (t, kt) in enumerate(order):
        a(smf(ACC + 4 * t, A_ + 4 * kt, bop(('qk', t, kt))))
        for l in mem[k] + alu[k]:
            a(l)
    stamp()
    for x in range(2):
        a(f'v_cvt_pk_bf16_f32 v{X_ + 2 * x}, v{ACC + x}, v{ACC + 4 + x}')
    masks = [f'v_cndmask_b32 v{T0 + k}, 0, v{vT1}, {sr(sMASK + 2 * k, 2)}' for k in range(8)]
    pend = qrest + masks
    a(pend.pop(0))
    a(pend.pop(0))
    for x in range(2):
        a(f'v_add_f32 v{ACC + 12 + x}, v{ACC + 12 + x}, v{ACC + 14 + x}')
    for x in range(2):
        a(f'v_cvt_pk_bf16_f32 v{X_ + 2 * x + 1}, v{ACC + 8 + x}, v{ACC + 12 + x}')
    for x in range(2):
        if w < 2:
            a(f'ds_write_b64 v{vXw}, {vr(X_ + 2 * x, 2)} offset:{16 * x}')
        else:
            a(f'ds_write2_b32 v{vXw}, v{X_ + 2 * x}, v{X_ + 2 * x + 1} offset0:{4 * x} offset1:{36 + 4 * x}')
    vlist = [(t, kt) for kt in range(8) for t in range(2)]
    vi = [0]

    def vmf(n, fillers=()):
        fillers = list(fillers)
        for _ in range(n):
            t, kt = vlist[vi[0]]
            vi[0] += 1
            a(smf(VACC + 4 * t, A_ + 4 * ((kt - 2 * w) & 7), bop(('v', t, kt))))
            if fillers:
                a(fillers.pop(0))
        for l in fillers:
            a(l)
    PX, PM = ACC + 12, ACC + 8
    n1, n2 = opt.get('nv1', 5), opt.get('nv2', 5)
    todo = pend + [f'v_mov_b32 v{PM + 1}, 0', f'v_mov_b32 v{PM + 2}, 0']
    f1 = todo[:n1]
    f1[0] = f's_mov_b32 m0, {L_KX + 2048 * w}\ns_add_u32 s{sT}, s{sQKVn}, {2048 * w}\n' + f1[0]
    vmf(n1, f1)
    todo = todo[n1:]
    a('s_waitcnt lgkmcnt(0)')
    a('s_barrier')
    stamp()
    a(f's_mov_b64 exec, {sr(sEM, 2)}')
    for E in range(4):
        a(f'ds_read_b128 {vr(QE[E], 4)}, v{vQr} offset:{576 * E}')
    a('s_mov_b64 exec, -1')
    for z in range(2):
        a(f'ds_read_b128 {vr(KM_ + 4 * z, 4)}, v{vKr} offset:{1152 * z}')
    fstamp('rd')
    kk = [f'buffer_load_dwordx4 v{vL16}, {WS}, s{sT} offen offset:{1024 * p} sc1 lds' if kreal else '' for p in range(2)]
    kkf = kk
    klate = opt.get('klate', 'sm')
    if fresh or klate is not None:
        kk = ['', '']
    todo += [f'v_mov_b64 {vr(TM, 2)}, 0', f'v_mov_b64 {vr(TM + 2, 2)}, 0']
    fl = [kk[0] if k == w else '' for k in range(n2)]
    for k, l in enumerate(todo):
        fl[k % n2] += '\n' + l
    vmf(n2, fl)
    fstamp('v2')
    VX_ = S_
    vxr = [f'ds_read_b128 {vr(VX_ + 4 * U, 4)}, v{vL16} offset:{L_VX + 1024 * U}' for U in range(8)]

    def sc_(E, T):
        return f'v_mfma_f32_16x16x32_bf16 {vr(T0 + 4 * T, 4)}, {vr(S_ + 16 * T + 4 * E, 4)}, {vr(QE[E], 4)}, {vr(T0 + 4 * T, 4)}'
    seq = [sc_(0, 0), sc_(0, 1), sc_(1, 0), sc_(1, 1), smf(TM, KM_, vr(QE[0], 8)), sc_(2, 0), sc_(2, 1),
           smf(TM, KM_ + 4, vr(QE[2], 8)), sc_(3, 0), sc_(3, 1)]
    after = {1: [vxr[0]], 2: [vxr[4]], 3: [vxr[1]], 4: [vxr[5]], 6: [vxr[2]], 7: [vxr[6]], 9: [vxr[3], vxr[7]]}
    for k, l in enumerate(seq):
        a(l)
        if k == w:
            a(kk[1])
        if w == 0 and k == 5 and not fresh and not kpv and opt.get('fpos', -5) < 0:
            a(flag_ld)
        if fresh:
            kp = opt.get('kp', 5)
            if k == kp - 3:
                a(f's_add_u32 s{sT2}, s{sStep}, 2')
                a(f's_min_u32 s{sT2}, s{sT2}, {NSEG}')
                a('s_mov_b64 exec, 0xfff')
                a(f'v_cmp_gt_u32 vcc, s{sT2}, v{v9}')
                a('s_mov_b64 exec, -1')
            if k == kp:
                a(f's_cbranch_vccnz {FSL}')
                a.label(FRET)
                a(kkf[0])
            if k == kp + 2:
                a(kkf[1])
        for x in after.get(k, []):
            a(x)
        fstamp(f'sc{k}')
    stamp()
    a(f'v_add_f32 v{TM}, v{TM}, v{TM + 2}')
    a(f'v_add_f32 v{TM + 1}, v{TM + 1}, v{TM + 3}')
    a(f'v_max3_f32 v{vT0}, v{TM}, v{TM + 1}, v{T0}')
    a(f'v_max3_f32 v{vT0}, v{vT0}, v{T0 + 1}, v{T0 + 2}')
    if opt.get('m7', 1):
        vmf(1)
    a(f'v_max3_f32 v{vT0}, v{vT0}, v{T0 + 3}, v{T1}')
    a(f'v_max3_f32 v{vT0}, v{vT0}, v{T1 + 1}, v{T1 + 2}')
    a(f'v_max_f32 v{vT1}, v{vT0}, v{T1 + 3}')
    a(f'v_max_f32 v{vT0}, v{vT0}, v{T1 + 3}')
    vmf(1)
    a(f'v_permlane16_swap_b32 v{vT0}, v{vT1}')
    a(f'v_max_f32 v{vT0}, v{vT0}, v{vT1}')
    a(f'v_mov_b32 v{vT1}, v{vT0}')
    vmf(1)
    a(f'v_permlane32_swap_b32 v{vT0}, v{vT1}')
    a(f'v_max_f32 v{vT0}, v{vT0}, v{vT1}')
    a(f'v_mul_f32 v{vT0}, s{sC}, v{vT0}')
    sc_regs = [T0 + k for k in range(8)] + [TM, TM + 1]
    a(f'v_fma_f32 v{TM}, v{TM}, s{sC}, -v{vT0}')
    a(f'v_fma_f32 v{TM + 1}, v{TM + 1}, s{sC}, -v{vT0}')
    for k in range(4):
        a(f'v_pk_fma_f32 {vr(T0 + 2 * k, 2)}, {vr(T0 + 2 * k, 2)}, {sr(sC, 2)}, {vr(vT0, 2)} op_sel_hi:[1,1,0] neg_lo:[0,0,1] neg_hi:[0,0,1]')
    for ir, r in enumerate(sc_regs):
        if vi[0] < 16:
            vmf(1)
            if klate == 'sm' and ir in (0, 2):
                a(kkf[ir // 2])
        a(f'v_exp_f32 v{r}, v{r}')
    assert vi[0] == 16
    vx_ = [f'v_pk_add_f32 {vr(VACC + 4 * t, 2)}, {vr(VACC + 4 * t, 2)}, {vr(VACC + 4 * t + 2, 2)}' for t in range(2)]
    vx_ += [f'v_cvt_pk_bf16_f32 v{VACC + t}, v{VACC + 4 * t}, v{VACC + 4 * t + 1}' for t in range(2)]
    vx_ += [f'ds_write_b64 v{vL16}, {vr(VACC, 2)} offset:{L_VM + (w >> 1) * 1024 + (w & 1) * 8}']
    a(vx_[0])
    a(f'v_pk_add_f32 {vr(vT0, 2)}, {vr(T0, 2)}, {vr(T0 + 2, 2)}')
    a(f'v_pk_add_f32 {vr(TM + 2, 2)}, {vr(T1, 2)}, {vr(T1 + 2, 2)}')
    a(f'v_pk_add_f32 {vr(vT0, 2)}, {vr(vT0, 2)}, {vr(TM, 2)}')
    a(f'v_pk_add_f32 {vr(vT0, 2)}, {vr(vT0, 2)}, {vr(TM + 2, 2)}')
    a(vx_[1])
    a(f'v_add_f32 v{TM + 2}, v{vT0}, v{vT1}')
    a(f'v_add_f32 v{vT0}, v{vT0}, v{vT1}')
    a(vx_[2])
    a(vx_[3])
    a(f'v_permlane16_swap_b32 v{vT0}, v{TM + 2}')
    a(f'v_add_f32 v{vT1}, v{vT0}, v{TM + 2}')
    a(f'v_add_f32 v{vT0}, v{vT0}, v{TM + 2}')
    a(vx_[4])
    if kpv and w == 0:
        a(f's_add_u32 s{sT}, s{sStep}, 2')
        a(f's_min_u32 s{sT}, s{sT}, {NSEG}')
        a('s_mov_b64 exec, 0xfff')
        a(f'v_cmp_gt_u32 vcc, s{sT}, v{v9}')
        a('s_mov_b64 exec, -1')
    else:
        a(f's_mov_b64 vcc, {sr(sEM, 2)}')
    a(f'v_permlane32_swap_b32 v{vT0}, v{vT1}')
    a(f'v_add_f32 v{vT0}, v{vT0}, v{vT1}')
    a(f'v_rcp_f32 v{vT0}, v{vT0}')
    a(f's_mov_b32 m0, {L_VX + 2048 * w}')
    for k in range(5):
        r = sc_regs[2 * k]
        a(f'v_pk_mul_f32 {vr(r, 2)}, {vr(r, 2)}, {vr(vT0, 2)} op_sel_hi:[1,0]')
    for k in range(4):
        a(f'v_cvt_pk_bf16_f32 v{PX + k}, v{T0 + 2 * k}, v{T0 + 2 * k + 1}')
    a(f'v_cvt_pk_bf16_f32 v{PM}, v{TM}, v{TM + 1}')
    a(f'v_cvt_pk_bf16_f32 v{PM + 3}, v{TM}, v{TM + 1}')
    vsetup = [f's_mov_b32 m0, {L_VX + 2048 * w}', f's_add_u32 s{sT2}, s{sQKVn}, {8192 + 2048 * w}']
    b3chk = []
    if kpv:
        vsetup = [f's_mov_b32 m0, {L_KX + 4096 * w}', f's_add_u32 s{sT2}, s{sQKVn}, {4096 * w}']
        if w == 0:
            b3chk = [f's_cbranch_vccnz {FSL}', FRET + ':', f's_mov_b64 vcc, {sr(sEM, 2)}', f's_cmp_eq_u32 s{sStep}, {NSEG - 1}']
    stamp()
    VM_ = S_ + 56
    OA = [Q_ + 4 * U for U in range(4)] + [VX_ + 4 * U for U in range(4)]
    WA = [A_ + 4 * t for t in range(8)]
    AP = [Q_ + 8, Q_ + 12]
    s3 = [l for key in S3 for l in stage_reads(('o',) + key)]

    def pvx(U):
        return f'v_mfma_f32_16x16x32_bf16 {vr(OA[U], 4)}, {vr(VX_ + 4 * U, 4)}, {vr(PX, 4)}, 0'

    def pvm(U):
        return f'v_mfma_f32_16x16x16_bf16 {vr(OA[U], 4)}, {vr(VM_ + 2 * (U >> 1), 2)}, {vr(PM + 2 * (U & 1), 2)}, {vr(OA[U], 4)}'

    def dcvt(U):
        return [f'v_cvt_pk_bf16_f32 v{DD[U] + d}, v{OA[U] + 2 * d}, v{OA[U] + 2 * d + 1}' for d in range(2)]

    def apx(U):
        return f'v_cndmask_b32_dpp v{AP[U >> 2] + (U & 3)}, v{DD[U] + 1}, v{DD[U]}, vcc quad_perm:[0,1,0,1] row_mask:0xf bank_mask:0xf'

    def zmov(r):
        return [f'v_mov_b64 {vr(r, 2)}, 0', f'v_mov_b64 {vr(r + 2, 2)}, 0']
    kd = [f'buffer_load_dwordx4 v{vL16}, {WS}, s{sT2} offen offset:{1024 * p} sc1 lds' for p in range(4)]
    vmr = [f'ds_read_b128 {vr(VM_ + 4 * hh, 4)}, v{vL16} offset:{L_VM + 1024 * hh}' for hh in range(2)]
    zz = [l for t in range(8) for l in zmov(WA[t])]
    z4 = opt.get('z4', 0)
    pv = [(pvx(0), (zz[12:14] if z4 else []) + ['s_waitcnt lgkmcnt(0)', 's_barrier'] + vmr),
          (pvx(1), [vsetup[1], f's_cmp_eq_u32 s{sStep}, {NSEG - 1}'] + zz[0:2]),
          (pvx(2), zz[2:4]),
          (pvx(3), zz[4:6]),
          (pvx(4), zz[6:8]),
          (pvm(0), zz[8:10]),
          (pvm(1), zz[10:12] + (vsetup[:1] if vlate else [])),
          (pvm(2), dcvt(0)),
          (pvm(3), dcvt(1)),
          (pvx(5), dcvt(2)),
          (pvm(4), dcvt(3)),
          (pvx(6), [apx(0), apx(1)]),
          (pvm(5), [apx(2), apx(3)]),
          (pvx(7), dcvt(4)),
          (pvm(6), dcvt(5)),
          (pvm(7), [f's_cbranch_scc1 {LAST}', apx(4), apx(5)])]
    for k, (m, fl) in enumerate(pv):
        a(m)
        if w == 0 and k == opt.get('fpos', -5) + 1:
            a(flag_ld)
        if klate == 'pv':
            if k == 0:
                a(kkf[0])
            if k == 2 + (w >> 1):
                a(kkf[1])
            if k == 5:
                a(vsetup[0])
        if kpv:
            if k >= 1 and (k - 1) % 4 == w and (k - 1) // 4 < 3:
                a(kd[(k - 1) // 4])
            if k == 12 + w:
                a(kd[3])
        else:
            if not vlate and k == 7 + w:
                a(kd[0])
            if not vlate and k == 11 + w:
                a(kd[1])
        for l in fl:
            a(l)
        fstamp(f'pv{k}')
    PD = [ACC + 8, ACC + 12]
    d6, d7 = dcvt(6), dcvt(7)
    za = [[s3[0], s3[1], f's_and_b32 s{sT}, s{sStep}, 1', d6[0]],
          [s3[2], f's_lshl_b32 s{sT}, s{sT}, 18', d6[1], d7[0]],
          [s3[3], f's_add_u32 s{sP}, s{sPb}, s{sT}', d7[1]],
          [apx(6), apx(7), f's_add_u32 s{sPr}, s{sP}, {4 * 8192}', f's_bfe_u32 s{sTag}, s{sStep}, 0x10001']]
    for t in range(4):
        a(smf(WA[t], AP[0], bop(('o', t, 0))))
        for l in za[t]:
            a(l)
    fstamp('z0a')
    for t in range(4):
        a(smf(WA[t], AP[1], bop(('o', t, 1))))
        a(s3[4 + t])
        if t < 2:
            if not z4:
                a(zz[12 + t])
            a(zz[14 + t])
        else:
            a(f'v_add_f32 v{WA[0] + t - 2}, v{WA[0] + t - 2}, v{WA[0] + t}')
    fstamp('z1a')
    ep = []
    for t in (1, 2, 3):
        ep += [f'v_add_f32 v{WA[t] + x}, v{WA[t] + x}, v{WA[t] + 2 + x}' for x in range(2)]
    ep += [f'v_cvt_pk_bf16_f32 v{PD[0] + 2 * x + j}, v{WA[2 * j] + x}, v{WA[2 * j + 1] + x}' for x in range(2) for j in range(2)]
    ep += [f'v_and_or_b32 v{PD[0]}, v{PD[0]}, -2, s{sTag}']
    swp = w & XW
    st0 = f'buffer_store_dwordx4 {vr(PD[0], 4)}, v{vPst}, {WS}, s{sPr if swp else sP} offen{sc}'
    seq = [(t, 0) for t in range(4, 8)] + [(t, 1) for t in range(4, 8)]
    for k, (t, z) in enumerate(seq):
        a(smf(WA[t], AP[z], bop(('o', t, z))))
        if k < 5:
            for _ in range(2):
                a(ep.pop(0))
        elif k == 5:
            a(ep.pop(0))
        elif k == 6:
            a(st0)
            a(f'v_add_f32 v{WA[4]}, v{WA[4]}, v{WA[4] + 2}')
        elif k == 7:
            a(f'v_add_f32 v{WA[4] + 1}, v{WA[4] + 1}, v{WA[4] + 3}')
    assert not ep
    fstamp('z1b')
    for x in range(2):
        a(f'v_add_f32 v{WA[5] + x}, v{WA[5] + x}, v{WA[5] + 2 + x}')
    a(f'v_cvt_pk_bf16_f32 v{PD[1]}, v{WA[4]}, v{WA[5]}')
    for x in range(2):
        a(f'v_add_f32 v{WA[6] + x}, v{WA[6] + x}, v{WA[6] + 2 + x}')
    a(f'v_cvt_pk_bf16_f32 v{PD[1] + 2}, v{WA[4] + 1}, v{WA[5] + 1}')
    a(f'v_and_or_b32 v{PD[1]}, v{PD[1]}, -2, s{sTag}')
    a(f'v_pk_add_f32 {vr(WA[7], 2)}, {vr(WA[7], 2)}, {vr(WA[7] + 2, 2)}')
    for x in range(2):
        a(f'v_cvt_pk_bf16_f32 v{PD[1] + 2 * x + 1}, v{WA[6] + x}, v{WA[7] + x}')
    a(f'buffer_store_dwordx4 {vr(PD[1], 4)}, v{vPst}, {WS}, s{sP if swp else sPr} offen{sc}')
    stamp()
    R_, SELR, RACC, SEN, vRl, vMs = A_ + 8, X_, A_ + 16, A_ + 20, A_ + 22, A_ + 23
    if vlate:
        a(kd[0])
        a(kd[1])
    a(f's_lshl_b32 s{sT}, s{sH}, 13')
    a(f's_add_u32 s{sP}, s{sP}, s{sT}')
    a(f's_add_u32 s{sP}, s{sP}, {2048 * w}')
    pre = [f'v_and_b32 v{vT0}, 16, v{vL16}', f'v_mov_b32 v{vT1}, 0x3f80', f'v_lshlrev_b32 v{vT0}, v{vT0}, v{vT1}']
    pre += [f'v_cndmask_b32 v{SELR + k}, 0, v{vT0}, {sr(sSEL + 2 * k, 2)}' for k in range(4)]
    pre += [f'v_mov_b64 {vr(SEN, 2)}, -1']
    pre += [f'v_bfe_u32 v{vT0}, v{vL16}, 4, 1', f'v_lshrrev_b32 v{vT1}, 8, v{vL16}', f'v_lshl_add_u32 v{vT0}, v{vT1}, 1, v{vT0}',
            f'v_and_b32 v{vT1}, 32, v{vL16}', f'v_lshl_add_u32 v{vMs}, v{vT0}, 3, v{vT1}']
    pre += [f's_and_b32 s{sT}, s{sStep}, 3', f's_lshl_b32 s{sT}, s{sT}, 13', f's_add_u32 s{sM}, s{sMb}, s{sT}',
            f's_add_u32 s{sMw}, s{sM}, {2048 * w}', f's_xor_b32 s{sT}, s{sT}, {2 << 13}', f's_add_u32 s{sMr}, s{sMb}, s{sT}',
            f's_lshl_b32 s{sT}, s{sH}, 8', f's_add_u32 s{sM}, s{sM}, s{sT}', f's_add_u32 s{sMr}, s{sMr}, s{sT}',
            f's_mov_b32 s{sOXp}, s{sOX}', f's_mov_b32 m0, {L_MEM + 2048 * w if kreal or kpv else L_KX + 2048 * w}']
    pre += [f's_mov_b32 s{sSpin}, 0']
    pre += ox_pack()
    pre += [l for key in S1A for l in stage_reads(('qk',) + key)]
    pre += [l for t in range(4) for l in zmov(ACC + 4 * t)]
    npre = opt.get('npre', 52)
    rl = [f'buffer_load_dwordx4 {vr(R_ + 4 * u, 4)}, v{vL16}, {WS}, s{sP} offen offset:{1024 * u} sc1' for u in range(2)]
    h1lds = opt.get('h1lds', 0)
    if h1lds:
        rl = [f'buffer_load_dwordx4 v{vL16}, {WS}, s{sP} offen offset:{1024 * u} sc1 lds' for u in range(2)]
    for k, l in enumerate(pre[:npre]):
        if opt.get('dummy1') == k:
            for x in rl:
                a(x.replace(vr(R_, 4), vr(A_ + 24, 4)).replace(vr(R_ + 4, 4), vr(A_ + 28, 4)))
        a(l)
    for _ in range(opt.get('d1', 0)):
        a('s_nop 15')
    if opt.get('a1') is not None:
        a(f's_waitcnt vmcnt({opt["a1"]})')
    for l in rl:
        a(l)
    for l in pre[npre:]:
        a(l)
    RT, ROK = a.newlabel('RT'), a.newlabel('ROK')
    if h1lds:
        a('s_waitcnt vmcnt(0)')
    a.label(RT)
    if h1lds:
        for u in range(2):
            a(f'ds_read_b128 {vr(R_ + 4 * u, 4)}, v{vL16} offset:{L_MEM + 2048 * w + 1024 * u}')
    rm_ = [f'v_mfma_f32_16x16x32_bf16 {vr(RACC, 4)}, {vr(SELR, 4)}, {vr(R_, 4)}, 0',
           f'v_mfma_f32_16x16x32_bf16 {vr(RACC, 4)}, {vr(SELR, 4)}, {vr(R_ + 4, 4)}, {vr(RACC, 4)}']
    rc_ = [f'v_xor_b32 v{vT0}, s{sTag}, v{R_}', f'v_bitop3_b32 v{vT0}, v{vT0}, v{R_ + 4}, s{sTag} bitop3:0xf6',
           f'v_and_b32 v{vT0}, 1, v{vT0}', f'v_cmp_ne_u32 vcc, 0, v{vT0}']
    if opt.get('r3', 2) == 1:
        seq_ = rc_ + rm_
    elif opt.get('r3', 2) == 2:
        seq_ = [rm_[0]] + rc_ + [rm_[1]]
    else:
        seq_ = [rm_[0], rc_[0], rm_[1]] + rc_[1:]
    for l in seq_:
        a(l)
    if opt.get('r4', 1):
        GOOD = a.newlabel('RG')
        a(f's_cbranch_vccz {GOOD}')
        a('s_mov_b64 exec, vcc')
        for l in rl:
            a(l)
        a('s_mov_b64 exec, -1')
        spin_guard(a, sSpin, fail)
        a(f's_branch {RT}')
        a.label(GOOD)
    elif not opt.get('r2', 0):
        a(f's_cbranch_vccnz {ROK}')
    RT1 = RT
    for sh in (4, 8):
        for k in range(4):
            a(f'v_add_f32_dpp v{RACC + k}, v{RACC + k}, v{RACC + k} row_ror:{sh} row_mask:0xf bank_mask:0xf')
    a(f'v_cvt_pk_bf16_f32 v{vT0}, v{RACC}, v{RACC + 1}')
    a(f'v_cvt_pk_bf16_f32 v{vT1}, v{RACC + 2}, v{RACC + 3}')
    a(f'v_min_u32 v{vT0}, -2, v{vT0}')
    a('s_mov_b64 exec, 0xf000f')
    if opt.get('r2', 0):
        a(f's_cbranch_vccnz {ROK}')
    a(f'buffer_store_dwordx2 {vr(vT0, 2)}, v{vMs}, {WS}, s{sM} offen offset:{64 * w}{sc}')
    stamp()
    a(f'buffer_store_dwordx2 {vr(SEN, 2)}, v{vMs}, {WS}, s{sMr} offen offset:{64 * w}{sc}')
    a('s_mov_b64 exec, -1')
    a(f's_add_u32 s{sStep}, s{sStep}, 1')
    a(f's_mov_b32 s{sQKV}, s{sQKVn}')
    a(f's_add_u32 s{sOX}, s{sOX}, 8192')
    for l in sal:
        a(l)
    qafter = opt.get('qafter', 0)
    if not qearly and not qafter:
        for l in qld:
            a(l)
    if not kreal and not kpv:
        a(f's_add_u32 s{sT}, s{sQKV}, {2048 * w}')
        for p in range(2):
            a(f'buffer_load_dwordx4 v{vL16}, {WS}, s{sT} offen offset:{1024 * p} sc1 lds')
        a(f's_mov_b32 m0, {L_MEM + 2048 * w}')
    if w == 0 and fhop:
        a(f's_add_u32 s{sT}, s{sStep}, 2')
        a(f's_min_u32 s{sT}, s{sT}, {NSEG}')
        a('s_mov_b64 exec, 0xfff')
        a(f'v_cmp_gt_u32 vcc, s{sT}, v{v9}')
        a('s_mov_b64 exec, -1')
        a(f's_cbranch_vccnz {FSL}')
        a.label(FRET)
    for _ in range(opt.get('d2', 0)):
        a('s_nop 7')
    if opt.get('dummy2'):
        for k in range(2):
            a(f'buffer_load_dwordx4 v{vL16}, {WS}, s{sMw} offen offset:{1024 * k} sc1 lds')
    if opt.get('a2', 0) is not None:
        a(f's_waitcnt vmcnt({opt.get("a2", 0)})')
    md = [f'buffer_load_dwordx4 v{vL16}, {WS}, s{sMw} offen offset:{1024 * k} sc1 lds' for k in range(2)]
    if mreg:
        md = [f'buffer_load_dwordx4 {vr(A_ + 4 * k, 4)}, v{vL16}, {WS}, s{sMw} offen offset:{1024 * k} sc1' for k in range(2)]
    for l in md:
        a(l)
    if qafter:
        for l in qld:
            a(l)
    H2, RT, MRE = a.newlabel('H2'), a.newlabel('MT'), a.newlabel('MRE')
    a(f's_branch {H2}')
    i_h2 = len(a0.items)
    a.label(H2)
    if not mreg:
        a(f's_waitcnt vmcnt({2 if qafter else 0})')
    a.label(RT)
    if not mreg:
        a(memrd(0))
        a(memrd(1))
    a(f'v_max_u32 v{vT0}, v{A_}, v{A_ + 2}')
    a(f'v_max3_u32 v{vT0}, v{vT0}, v{A_ + 4}, v{A_ + 6}')
    a(f'v_cmp_eq_u32 vcc, -1, v{vT0}')
    if mreg:
        for k in range(2):
            a(f'ds_write_b128 v{vL16}, {vr(A_ + 4 * k, 4)} offset:{L_MEM + 2048 * w + 1024 * k}')
    a(f's_cbranch_vccnz {MRE}')
    if prof:
        stamp()
        a('s_waitcnt lgkmcnt(0)')
        a(f's_lshl_b32 s{sT}, s{sL}, 5')
        a(f's_add_u32 s{sT}, s{sT}, s{sH}')
        a(f's_lshl_b32 s{sT}, s{sT}, 2')
        a(f's_add_u32 s{sT}, s{sT}, {w}')
        a(f's_lshl_b32 s{sT}, s{sT}, 6')
        a(f's_add_u32 s{sT}, s{sT}, s{sStep}')
        a(f's_lshl_b32 s{sT}, s{sT}, 6')
        a(f's_add_u32 s{sT}, s{sT}, {PROF_OFF}')
        for k in range(10):
            a(f'v_writelane_b32 v{vT0}, s{sPROF + 2 * k}, {k}')
        a(f'v_writelane_b32 v{vT0}, s{sSpin}, 15')
        a(f'v_lshrrev_b32 v{vT1}, 2, v{vL16}')
        a('s_mov_b64 exec, 0xffff')
        a(f'buffer_store_dword v{vT0}, v{vT1}, {WS}, s{sT} offen')
        a('s_mov_b64 exec, -1')
    tail = a0.items[i_h2:]
    del a0.items[i_h2:]
    a0.items[i_loop:i_loop] = tail
    a.label(ROK)
    a('s_mov_b64 exec, vcc')
    for l in rl:
        a(l)
    a('s_mov_b64 exec, -1')
    spin_guard(a, sSpin, fail)
    a(f's_branch {RT1}')
    a.label(MRE)
    a('s_mov_b64 exec, vcc')
    for l in md:
        a(l)
    a('s_mov_b64 exec, -1')
    spin_guard(a, sSpin, fail)
    if opt.get('mwait'):
        a('s_waitcnt vmcnt(0)')
    a(f's_branch {RT}')
    if w == 0 or fresh:
        a.label(FSL)
        flag_wait(a, sT2 if fresh else sT, fail)
        a(f's_branch {FRET}')
    a.label(LAST)
    for U in range(6, 8):
        for l in dcvt(U):
            a(l)
    for l in ox_pack():
        a(l)
    for u in range(2):
        a(ox_store(u, sOX))
    a(f's_branch {done}')
```

```python
from asmlib import *
from layout import *

vL16, vC, vSt, vT0, vT1 = 0, 1, 2, 3, 4
vVw, vVr, vC0 = 52, 53, 54
vD, vF, vF0 = 8, 16, 128
ACC, PK, SEN, FR, ST = 24, 40, 48, 64, 96
(sN0, sN1, sCL, sCS, sNL, sNS, sML, sMS, sSrc, sSrc2, sFl0, sPF, sPV, sSpin, sT, sT2, sLN, sLM,
 sDD, sDC, sDF, sDV, sBC, sBN, sBM, sM0, sM1, sW13, sED, sEC) = range(20, 50)
sQF, sQV, sPL = 54, 55, 56
L_VERD = 98304
HEAD = 17


def emit_proj_setup(a, meanwhile, par=False):
    a(f's_load_dwordx4 s[40:43], s[0:1], {KA_WQ}')
    a(f's_load_dwordx2 s[44:45], s[0:1], {KA_WV}')
    a('v_lshrrev_b32 v1, 4, v0')
    a('v_and_b32 v2, 15, v0')
    a('v_lshlrev_b32 v3, 13, v1')
    a('v_lshl_add_u32 v3, v2, 4, v3')
    a('s_waitcnt lgkmcnt(0)')
    a(f's_cmp_eq_u32 s{sL}, 0')
    a('s_cselect_b32 s4, s42, s44')
    a('s_cselect_b32 s5, s43, s45')
    a(f's_cmp_eq_u32 s{sL}, 2')
    a('s_cselect_b32 s4, s40, s4')
    a('s_cselect_b32 s5, s41, s5')
    a('s_mov_b32 s6, 0x400000')
    a('s_mov_b32 s7, 0x20000')
    a(f's_lshl_b32 s20, s{sH}, 8')
    a(f's_lshl_b32 s21, s{sW}, 15')
    a('s_add_u32 s20, s20, s21')
    a(f's_lshl_b32 s21, s{sW}, 10')
    for q in range(32):
        a(f's_add_u32 m0, s21, {q * 4096}')
        a(f's_add_u32 s22, s20, {q * 16 * 8192}')
        a('buffer_load_dwordx4 v3, s[4:7], s22 offen lds')
    meanwhile()
    a('v_lshrrev_b32 v4, 2, v2')
    a('v_lshrrev_b32 v5, 1, v1')
    a('v_lshl_add_u32 v4, v5, 3, v4')
    a('v_lshlrev_b32 v4, 8, v4')
    a('v_and_b32 v5, 1, v1')
    a('v_and_b32 v6, 3, v2')
    a('v_lshrrev_b32 v7, 1, v6')
    a('v_and_b32 v8, 1, v6')
    a('v_lshl_add_u32 v7, v8, 1, v7')
    a(f's_cmp_eq_u32 s{sL}, 1')
    a('s_cselect_b64 vcc, -1, 0')
    a('v_cndmask_b32 v6, v7, v6, vcc')
    a('v_lshl_add_u32 v4, v6, 3, v4')
    a(f's_lshl_b32 s21, s{sW}, 6')
    a(f's_and_b32 s22, s{sW}, 1')
    a('s_lshl_b32 s22, s22, 6')
    a(f's_lshr_b32 s23, s{sW}, 1')
    a('s_lshl_b32 s23, s23, 5')
    a('s_add_u32 s22, s22, s23')
    a(f's_cmp_eq_u32 s{sL}, 2')
    a('s_cselect_b32 s21, s22, s21')
    a('s_cselect_b32 s22, 7, 5')
    a('v_lshlrev_b32 v5, s22, v5')
    a('v_add3_u32 v4, v4, v5, s21')
    a('v_add_u32 v5, 0x10000, v4')
    a('s_waitcnt vmcnt(0)')
    a('s_barrier')
    for k in range(32):
        for jj in range(2):
            off = (k & 15) * 4096 + jj * 1024
            a(f'ds_read_b64_tr_b16 {ar(4 * k + 2 * jj, 2)}, v{4 + (k >> 4)} offset:{off}')
    a('s_waitcnt lgkmcnt(0)')
    a('s_barrier')
    a('v_mov_b32 v7, v0')
    a(f'v_lshlrev_b32 v{vL16}, 4, v7')
    a(f's_lshl_b32 s21, s{sW}, 13')
    a(f'v_add_u32 v{vC0}, s21, v{vL16}')
    a(f's_and_b32 s21, s{sW}, 1')
    a('s_lshl_b32 s21, s21, 3')
    for j in range(8):
        a(f's_add_u32 s22, s21, {j}')
        a(f'v_xor_b32 v{vD + j}, s22, v7')
        a(f'v_lshlrev_b32 v{vD + j}, 4, v{vD + j}')
    a('v_and_b32 v5, 31, v7')
    a('v_lshrrev_b32 v6, 5, v7')
    a('v_mov_b32 v55, v5')
    if par:
        a('v_bfe_u32 v3, v5, 3, 1')
        a('v_and_b32 v4, 7, v5')
        a('v_lshlrev_b32 v4, 1, v4')
        a('v_lshl_add_u32 v3, v3, 4, v4')
        a('v_lshrrev_b32 v4, 4, v5')
        a('v_add_u32 v3, v3, v4')
        a(f's_cmp_eq_u32 s{sL}, 2')
        a('s_cselect_b64 vcc, -1, 0')
        a('v_cndmask_b32 v55, v5, v3, vcc')
    a('v_and_b32 v3, 15, v55')
    for b in range(8):
        a(f'v_add_u32 v4, {2 * b}, v6')
        a('v_xor_b32 v4, v4, v3')
        a('v_lshlrev_b32 v4, 4, v4')
        a(f'v_lshl_add_u32 v{vF + b}, v55, 10, v4')
        a(f'v_mov_b32 v{vF0 + b}, v{vF + b}')
    a(f'v_mov_b64 {vr(SEN, 2)}, -1')
    a(f'v_mov_b64 {vr(SEN + 2, 2)}, -1')
    a(f'v_mov_b32 v{vVr}, {L_VERD}')
    a(f's_lshl_b32 s21, s{sW}, 2')
    a(f'v_add_u32 v{vVw}, s21, v{vVr}')


def emit_proj_loop(a, mat, fail, done, opt=None):
    opt = opt or {}
    head = opt.get('head', HEAD)
    if mat == 0:
        a('v_bfe_u32 v3, v5, 3, 1')
        a('v_lshlrev_b32 v3, 12, v3')
        a('v_lshl_add_u32 v3, v6, 8, v3')
        a('v_lshrrev_b32 v4, 4, v5')
        a('v_lshl_add_u32 v3, v4, 7, v3')
        a('v_and_b32 v4, 7, v5')
        a('v_lshl_add_u32 v3, v4, 4, v3')
        a(f's_lshl_b32 s{sT}, s{sW}, 10')
        cstep = 512
    elif mat == 1:
        a('v_and_b32 v3, 1, v5')
        a('v_lshlrev_b32 v3, 10, v3')
        a('v_lshl_add_u32 v3, v6, 8, v3')
        a('v_lshrrev_b32 v4, 1, v5')
        a('v_lshl_add_u32 v3, v4, 4, v3')
        a(f's_lshl_b32 s{sT}, s{sW}, 11')
        a(f's_add_u32 s{sT}, s{sT}, 8192')
        cstep = 512
    else:
        a('v_lshrrev_b32 v3, 3, v5')
        a('v_lshlrev_b32 v3, 11, v3')
        a('v_lshl_add_u32 v3, v6, 8, v3')
        a('v_bfe_u32 v4, v5, 2, 1')
        a('v_lshl_add_u32 v3, v4, 7, v3')
        a('v_and_b32 v4, 3, v5')
        a('v_lshl_add_u32 v3, v4, 4, v3')
        a(f's_and_b32 s{sT}, s{sW}, 1')
        a(f's_lshl_b32 s{sT}, s{sT}, 10')
        a(f's_lshr_b32 s{sT2}, s{sW}, 1')
        a(f's_lshl_b32 s{sT2}, s{sT2}, 9')
        a(f's_add_u32 s{sT}, s{sT}, s{sT2}')
        a(f's_add_u32 s{sT}, s{sT}, 16384')
        a('s_mov_b32 s50, 0x33333333')
        a('s_mov_b32 s51, 0x33333333')
        cstep = 64
    a(f'v_add_u32 v{vSt}, s{sT}, v3')
    a(f's_lshl_b32 s{sFl0}, s{sH}, 8')
    a(f's_lshl_b32 s{sT}, s{sW}, 4')
    a(f's_add_u32 s{sFl0}, s{sFl0}, s{sT}')
    a(f's_add_u32 s{sFl0}, s{sFl0}, {FLAG_OFF + 64 * mat}')
    for r in (sPF, sQF, sED, sEC):
        a(f's_mov_b32 s{r}, {WS_BYTES}')
    a(f's_mov_b32 s{sPV}, 0')
    a(f's_mov_b32 s{sQV}, 0')
    a(f's_mov_b32 s{sPL}, 0')
    a(f's_mov_b32 s{sSpin}, 0')
    a(f's_lshl_b32 s{sW13}, s{sW}, 13')

    def src_addr(l, sg, buf):
        return [f's_lshl_b32 s{sSrc}, s{l}, 6', f's_add_u32 s{sSrc}, s{sSrc}, s{sg}', f's_lshl_b32 s{sSrc}, s{sSrc}, 15',
                f's_add_u32 s{sSrc}, s{sSrc}, s{sW13}', f's_add_u32 s{sSrc}, s{sSrc}, {XN_OFF}', f's_add_u32 s{sSrc2}, s{sSrc}, 4096',
                f's_add_u32 s{sM0}, s{buf}, s{sW13}', f's_add_u32 s{sM1}, s{sM0}, 4096']
    loads = [(f's_mov_b32 m0, s{sM0 if j == 0 else sM1}\n' if j % 4 == 0 else '') +
             f'buffer_load_dwordx4 v{vD + j}, {WS}, s{sSrc if j < 4 else sSrc2} offen offset:{1024 * (j & 3)} sc1 lds' for j in range(8)]

    def flag_store(fa, fv):
        return [f'v_mov_b32 v{vT0}, s{fv}', 's_mov_b64 exec, 1', f'buffer_store_dword v{vT0}, v{vL16}, {WS}, s{fa} offen sc1', 's_mov_b64 exec, -1']
    stores = [f'buffer_store_dwordx4 {vr(PK + 4 * c, 4)}, v{vSt}, {WS}, s{sED} offen offset:{cstep * c} sc1' for c in range(2)]
    if mat < 2:
        stores.append(f'buffer_store_dwordx4 {vr(SEN, 4)}, v{vL16}, {WS}, s{sEC} offen sc1')
    nst = len(stores)

    def fread(k):
        return f'ds_read_b128 {vr(FR + 4 * (k & 7), 4)}, v{vF + (k & 7)} offset:{256 * (k >> 3)}'

    def mfma(k):
        fr, w = vr(FR + 4 * (k & 7), 4), ar(4 * k, 4)
        A, B = (fr, w) if mat == 1 else (w, fr)
        return f'v_mfma_f32_32x32x16_bf16 {vr(ACC, 16)}, {A}, {B}, {0 if k == 0 else vr(ACC, 16)}'
    skip = opt.get('skip', 0)
    smask = sum(1 << j for j in range(1, 64) if not skip or j % skip) | 1
    smov64(a, 58, smask)
    pick = [[f's_bitcmp1_b64 s[58:59], s{sN1}', f's_cselect_b32 s{sT}, s{sNL}, 0', f's_cmp_lt_u32 s{sN0}, {head}', f's_cselect_b32 s{sT}, 1, s{sT}',
             f's_cmp_lt_u32 s{sN0}, {NSEG}', f's_cselect_b32 s{sT}, s{sT}, 0'],
            [f's_cmp_ge_u32 s{sN1}, {NSEG}', f's_cselect_b32 s{sLM}, 1, 0', f's_min_u32 s{sT2}, s{sN1}, {NSEG - 1}'],
            [f's_cmp_eq_u32 s{sT}, 1', f's_cselect_b32 s{sMS}, s{sN0}, s{sT2}', f's_cselect_b32 s{sLM}, 0, s{sLM}', f's_cselect_b32 s{sML}, 0, 1'],
            [f's_add_u32 s{sN0}, s{sN0}, s{sT}', f's_add_u32 s{sN1}, s{sN1}, s{sML}']]
    sa = src_addr(sML, sMS, sBM)
    pick += [sa[:4], sa[4:]]
    misc = [[f's_lshl_b32 s{sT}, s{sCL}, 5', f's_add_u32 s{sT}, s{sT}, s{sH}', f's_lshl_b32 s{sT}, s{sT}, 6', f's_add_u32 s{sT}, s{sT}, s{sCS}'],
            [f's_mul_i32 s{sDD}, s{sT}, {QKV_BLK}', f's_lshl_b32 s{sDC}, s{sT}, 13', f's_lshl_b32 s{sT2}, s{sW}, 10', f's_add_u32 s{sDC}, s{sDC}, s{sT2}'],
            [f's_add_u32 s{sDC}, s{sDC}, {OX_OFF + 3 * 8192 + 4096 * mat}', f's_cmp_ge_u32 s{sCS}, {NSEG - 3}', f's_cselect_b32 s{sDC}, s14, s{sDC}'],
            [f's_lshl_b32 s{sDF}, s{sCL}, 13', f's_add_u32 s{sDF}, s{sDF}, s{sFl0}', f's_add_u32 s{sDV}, s{sCS}, 1']]
    rotate = [f's_mov_b32 s{sCL}, s{sNL}', f's_mov_b32 s{sCS}, s{sNS}', f's_mov_b32 s{sNL}, s{sML}', f's_mov_b32 s{sNS}, s{sMS}',
              f's_mov_b32 s{sT}, s{sBC}', f's_mov_b32 s{sBC}, s{sBN}', f's_mov_b32 s{sBN}, s{sBM}', f's_mov_b32 s{sBM}, s{sT}',
              f's_mov_b32 s{sLN}, s{sLM}']
    rback = [f'ds_read_b128 {vr(ST + 4 * j, 4)}, v{vC} offset:{1024 * j}' for j in range(8)]
    chk = [f'v_max_u32 v{vT1}, v{ST}, v{ST + 2}'] + [f'v_max3_u32 v{vT1}, v{vT1}, v{ST + 4 * j}, v{ST + 4 * j + 2}' for j in range(1, 8)]
    chk.append(f'v_cmp_eq_u32 vcc, -1, v{vT1}')
    for r, v in ((sCL, 0), (sCS, 0), (sNL, 0), (sNS, 1), (sN0, 2), (sN1, 0), (sBC, 0), (sBN, 32768), (sBM, 65536), (sLN, 0)):
        a(f's_mov_b32 s{r}, {v}')
    for l in src_addr(sCL, sCS, sBC) + loads + src_addr(sNL, sNS, sBN) + loads:
        a(l)
    a('s_waitcnt vmcnt(0)')
    LOOP, SLOW, CHK, GO, FIN = [a.newlabel(x) for x in ('PL', 'PS', 'PCHK', 'PGO', 'PFIN')]
    a('s_barrier')
    for k in range(4):
        a(fread(k))
    a.label(LOOP)
    if opt.get('prof') == 1:
        a('s_memrealtime s[70:71]')
        a('s_waitcnt lgkmcnt(0)')
        a(f's_lshl_b32 s72, s{sCL}, 6')
        a(f's_add_u32 s72, s72, s{sCS}')
        a(f's_lshl_b32 s72, s72, 7')
        a(f's_lshl_b32 s73, s{sL}, 5')
        a(f's_add_u32 s73, s73, s{sH}')
        a('s_add_u32 s72, s72, s73')
        a('s_lshl_b32 s72, s72, 2')
        a(f's_add_u32 s72, s72, {PROF_OFF + (9 << 20)}')
        a(f'v_mov_b32 v{vT0}, s70')
        if opt.get('pst') is not None:
            a('s_sub_u32 s74, s78, s76')
            a(f'v_mov_b32 v{vT0}, s74')
        a('s_mov_b64 exec, 1')
        a(f'buffer_store_dword v{vT0}, v{vL16}, {WS}, s72 offen')
        a('s_mov_b64 exec, -1')
        a('s_memtime s[76:77]')
    ps = lambda i: a('s_memtime s[78:79]') if opt.get('pst') == i else None
    kc = opt.get('kc', 8)
    for k in range(32):
        ps(k)
        a(mfma(k))
        if k < 28:
            a(fread(k + 4))
        if k < 6:
            for l in pick[k]:
                a(l)
        if k == 6:
            a(f'v_add_u32 v{vC}, s{sBN}, v{vC0}')
        sk = opt.get('sk', (1, 3, 5))
        if k in sk and sk.index(k) < nst:
            a(stores[sk.index(k)])

        def when_handoff(lines):
            L = a.newlabel('PH')
            a(f's_cmp_eq_u32 s{sNL}, 0')
            a(f's_cbranch_scc1 {L}')
            for l in lines:
                a(l)
            a.label(L)
        if k == kc:
            a(f's_waitcnt vmcnt({nst + (opt.get("kf", 30) >= 28) + (opt.get("prof") == 1)})')
            for l in flag_store(sQF, sQV):
                a(l)
            a(f's_mov_b32 s{sQF}, {WS_BYTES}')
            a('s_mov_b64 vcc, 0')
            when_handoff(rback[:4])
        if k == kc + 1:
            when_handoff(rback[4:])
        if k == kc + 3:
            when_handoff(chk[:5])
        if k == kc + 4:
            when_handoff(chk[5:])
        if k == kc + 5:
            a('s_cmp_lg_u64 vcc, 0')
            a(f's_cselect_b32 s{sT}, 1, 0')
            a(f'v_mov_b32 v{vT0}, s{sT}')
            a(f'ds_write_b32 v{vVw}, v{vT0}')
        if 14 <= k < 30 and k % 2 == 0:
            a(loads[(k - 14) // 2])
        if 19 <= k < 27 and k % 2 == 1:
            for l in misc[(k - 19) // 2]:
                a(l)
        if k >= 24:
            a(f'v_add_u32 v{vF + k - 24}, s{sBN}, v{vF0 + k - 24}')
        if k == 29:
            a('s_waitcnt lgkmcnt(0)')
            a('s_barrier')
            a(f'ds_read_b128 {vr(ST, 4)}, v{vVr}')
        if k == 30:
            a(fread(0))
            a(fread(1))
        kf = opt.get('kf', 30)
        if k == kf:
            L0, L1 = a.newlabel('PF'), a.newlabel('PG')
            a(f's_cmp_eq_u32 s{sPL}, 1')
            a(f's_cbranch_scc1 {L0}')
            a(f's_mov_b32 s{sQF}, s{sPF}')
            a(f's_mov_b32 s{sQV}, s{sPV}')
            a(f's_mov_b32 s{sPF}, {WS_BYTES}')
            a(f's_branch {L1}')
            a.label(L0)
            a(f's_waitcnt vmcnt({1 + min(8, (kf - 14) // 2 + 1)})')
            a.label(L1)
            for l in flag_store(sPF, sPV):
                a(l)
        if k == 31:
            a(fread(2))
            a(fread(3))
            a(f'v_or3_b32 v{vT1}, v{ST}, v{ST + 1}, v{ST + 2}')
            a(f'v_or3_b32 v{vT1}, v{vT1}, v{ST + 3}, s{sLN}')
            a(f'v_cmp_ne_u32 vcc, 0, v{vT1}')
            a(f'v_xor_b32 v{vVw}, 16, v{vVw}')
            a(f'v_xor_b32 v{vVr}, 16, v{vVr}')
            for d, r in ((sED, sDD), (sEC, sDC), (sPF, sDF), (sPV, sDV)):
                a(f's_mov_b32 s{d}, s{r}')
            a(f's_cmp_lt_u32 s{sCS}, 2')
            a(f's_cselect_b32 s{sPL}, 1, s{sCL}')
    def pack_store(now):
        if mat == 2:
            for j in range(8):
                a(f'v_cvt_pk_bf16_f32 v{ST + j}, v{ACC + 2 * j}, v{ACC + 2 * j + 1}')
            a('s_mov_b64 vcc, s[50:51]')
            for j in range(4):
                a(f'v_cndmask_b32_dpp v{PK + j}, v{ST + j}, v{ST + 4 + j}, vcc quad_perm:[0,1,0,1] row_mask:0xf bank_mask:0xf')
            if now:
                a(stores[0])
            a('s_not_b64 vcc, vcc')
            for j in range(4):
                a(f'v_cndmask_b32_dpp v{PK + 4 + j}, v{ST + 4 + j}, v{ST + j}, vcc quad_perm:[2,3,2,3] row_mask:0xf bank_mask:0xf')
            if now:
                a(stores[1])
        else:
            for c in range(2):
                for j in range(4):
                    a(f'v_cvt_pk_bf16_f32 v{PK + 4 * c + j}, v{ACC + 8 * c + 2 * j}, v{ACC + 8 * c + 2 * j + 1}')
                if now:
                    a(stores[c])
        if now:
            for l in stores[2:]:
                a(l)
            a(f's_mov_b32 s{sED}, {WS_BYTES}')
            a(f's_mov_b32 s{sEC}, {WS_BYTES}')
    ps(32)
    a(f's_cbranch_vccnz {SLOW}')
    for l in rotate:
        a(l)
    pack_store(False)
    ps(33)
    a(f's_branch {LOOP}')
    a.label(SLOW)
    for l in src_addr(sNL, sNS, sBN) + loads:
        a(l)
    pack_store(True)
    a(f's_mov_b32 s{sSpin}, 0')
    a(f's_waitcnt vmcnt({nst})')
    a(f's_cmp_eq_u32 s{sLN}, 1')
    a(f's_cbranch_scc1 {FIN}')
    a.label(CHK)
    for l in rback + chk:
        a(l)
    a(f's_cbranch_vccz {GO}')
    spin_guard(a, sSpin, fail)
    RE = a.newlabel('PRE')
    a(f's_cmp_eq_u32 s{sPF}, s14')
    a(f's_cbranch_scc1 {RE}')
    a('s_waitcnt vmcnt(0)')
    for l in flag_store(sQF, sQV) + flag_store(sPF, sPV):
        a(l)
    a(f's_mov_b32 s{sQF}, {WS_BYTES}')
    a(f's_mov_b32 s{sPF}, {WS_BYTES}')
    a.label(RE)
    if opt.get('pprobe', 0):
        PR = a.newlabel('PP')
        if opt['pprobe'] == 1:
            a(f'v_and_b32 v{vT0}, 48, v{vL16}')
            a(f'v_and_b32 v{vT1}, 192, v{vL16}')
            a(f'v_lshlrev_b32 v{vT0}, 4, v{vT0}')
            a(f'v_lshl_add_u32 v{vT0}, v{vT1}, 5, v{vT0}')
            a('s_mov_b64 exec, 0xffff')
        else:
            a(f'v_lshlrev_b32 v{vT0}, 3, v{vL16}')
        a.label(PR)
        a(f'buffer_load_dword v{vT1}, v{vT0}, {WS}, s{sSrc} offen sc1')
        spin_guard(a, sSpin, fail)
        a(f'v_cmp_eq_u32 vcc, -1, v{vT1}')
        if opt['pprobe'] == 2:
            a('s_mov_b64 exec, vcc')
        a(f's_cbranch_vccnz {PR}')
        a('s_mov_b64 exec, -1')
    for l in loads:
        a(l)
    a('s_waitcnt vmcnt(0)')
    a(f's_branch {CHK}')
    a.label(GO)
    for l in rotate:
        a(l)
    a('s_barrier')
    for k in range(4):
        a(fread(k))
    a(f's_branch {LOOP}')
    a.label(FIN)
    a('s_waitcnt vmcnt(0)')
    for l in flag_store(sQF, sQV) + flag_store(sPF, sPV):
        a(l)
    a(f's_branch {done}')
```

```python
from asmlib import *
from layout import *

L_XT, L_WV, L_OB, L_ST, L_STG = 0, 32768, 65536, 68608, 69632
vL16, vOr, vVr, vP1, vP2, vRl, vRo, vOw, vOrd, vStw, vStr, vC = range(12)
vXr, vD, MSK, SEL, X1 = 12, 16, 20, 28, 32
W0 = 36
WB2, WQ, WK = 96, 128, 192
RES = 's[4:7]'
OUT = 's[8:11]'
(sSeg, sTag, sSpin, sT, sT2, sRb, sP1, sP1r, sP2, sP2r, sXw, sXc, sXr, sO, sRes, sHw, sHr, sLay, sClr, sBuf, sBuf2,
 sC, sC1, sInv, sEps, sTask, sO2) = range(20, 47)
sPROF = 66


def emit_wb_setup(a, hook, st=None, late=1):
    a(f's_load_dwordx2 s[48:49], s[0:1], {KA_WO}')
    a(f's_load_dwordx4 s[52:55], s[0:1], {KA_WQKV}')
    a('v_and_b32 v1, 15, v0')
    a('v_lshrrev_b32 v2, 4, v0')
    a('v_lshlrev_b32 v3, 13, v2')
    a('v_lshl_add_u32 v3, v1, 3, v3')
    a('v_lshrrev_b32 v4, 2, v0')
    a('s_movk_i32 s3, 3072')
    a('v_mul_lo_u32 v4, v4, s3')
    a('v_and_b32 v5, 3, v0')
    a('v_lshl_add_u32 v4, v5, 4, v4')
    a('s_waitcnt lgkmcnt(0)')
    a('s_mov_b32 s50, 0x400000')
    a('s_mov_b32 s51, 0x20000')
    a('s_mov_b32 s56, s54')
    a('s_mov_b32 s57, s55')
    a('s_mov_b32 s58, 0x80000')
    a('s_mov_b32 s59, 0x20000')
    a('s_mov_b32 s54, 0x180000')
    a('s_mov_b32 s55, 0x20000')
    a(f's_lshl_b32 s20, s{sH}, 6')
    a(f's_mul_i32 s21, s{sW}, {128 * 3072}')
    a('s_add_u32 s20, s20, s21')
    a(f's_lshl_b32 s21, s{sW}, 13')
    dma = []
    for mat, base in ((0, L_STG), (1, L_STG + 32768), (2, L_WV)):
        for q in range(8):
            dma.append([f's_add_u32 m0, s21, {base + q * 1024}', f's_add_u32 s22, s20, {q * 16 * 3072 + mat * 1024}',
                        'buffer_load_dwordx4 v4, s[52:55], s22 offen lds'])
    if not late:
        for g in dma:
            for l in g:
                a(l)
    a('s_mov_b32 s26, 0x05040100')
    a('s_mov_b32 s27, 0x07060302')
    a(f's_lshr_b32 s23, s{sH}, 1')
    a('s_lshl_b32 s23, s23, 19')
    a(f's_and_b32 s24, s{sH}, 1')
    a('s_lshl_b32 s24, s24, 9')
    a('s_add_u32 s23, s23, s24')
    a(f's_lshl_b32 s24, s{sW}, 7')
    a('s_add_u32 s23, s23, s24')
    a(f's_lshl_b32 s28, s{sH}, 15')
    a(f's_lshl_b32 s24, s{sW}, 8')
    a('s_add_u32 s28, s28, s24')
    BUF = [128 + 16 * k for k in range(8)]
    D = 7
    TMP = 80
    units = []
    for cg in range(2):
        def ld(B, cg=cg):
            o = []
            for j in range(8):
                o.append(f's_add_u32 s25, s28, {j * 1024 + 128 * cg}')
                o.append(f'buffer_load_dwordx2 {vr(B + 2 * j, 2)}, v3, s[56:59], s25 offen')
            return o

        def pr(B, cg=cg):
            return [f'v_perm_b32 v{WB2 + 16 * cg + 4 * t + jj}, v{B + 2 * (2 * jj + 1) + (t >> 1)}, v{B + 4 * jj + (t >> 1)}, s{26 + (t & 1)}'
                    for t in range(4) for jj in range(4)]
        units.append((ld, pr))
    for ks in range(16):
        def ld(B, ks=ks):
            o = []
            for j in range(8):
                row = 128 * (ks >> 2) + 32 * (ks & 3) + 2 * (j & 3) + (j >> 2)
                o.append(f's_add_u32 s25, s23, {row * 1024}')
                o.append(f'buffer_load_dwordx2 {vr(B + 2 * j, 2)}, v3, s[48:51], s25 offen')
            return o

        def pr(B, ks=ks):
            o = [f'v_perm_b32 v{TMP + 4 * t + jj}, v{B + 2 * (2 * jj + 1) + (t >> 1)}, v{B + 4 * jj + (t >> 1)}, s{26 + (t & 1)}'
                 for t in range(4) for jj in range(4)]
            o += [f'v_accvgpr_write_b32 a{16 * ks + k}, v{TMP + k}' for k in range(16)]
            return o
        units.append((ld, pr))
    if late:
        units = units[2:] + units[:2]
    n = len(units)
    for u in range(n + D):
        if u < n:
            for l in units[u][0](BUF[u % 8]):
                a(l)
        elif late and u < n + 6:
            for g in dma[4 * (u - n):4 * (u - n) + 4]:
                for l in g:
                    a(l)
        hook(u)
        if u >= D:
            for l in units[u - D][1](BUF[(u - D) % 8]):
                a(l)
            if st:
                st(10 + u - D)
    a('v_lshrrev_b32 v4, 2, v1')
    a('v_lshl_add_u32 v4, v2, 3, v4')
    a('v_lshlrev_b32 v4, 6, v4')
    a('v_lshl_add_u32 v4, v5, 3, v4')
    a(f's_lshr_b32 s21, s{sW}, 1')
    a('s_lshl_b32 s21, s21, 5')
    a('v_add_u32 v4, s21, v4')
    a(f'v_add_u32 v6, {L_STG}, v4')
    a('s_waitcnt vmcnt(0)')
    a('s_barrier')
    for mat, base in ((0, WQ), (1, WK)):
        for k in range(16):
            for jj in range(2):
                a(f'ds_read_b64_tr_b16 {vr(base + 4 * k + 2 * jj, 2)}, v6 offset:{mat * 32768 + k * 2048 + jj * 256}')
    a('s_waitcnt lgkmcnt(0)')
    a('v_mov_b32 v40, v0')
    a('v_mov_b32 v41, v1')
    a('v_mov_b32 v42, v2')
    a('v_mov_b32 v43, v4')
    l, n_, g_ = 40, 41, 42
    a(f'v_add_u32 v{vVr}, {L_WV}, v43')
    a(f'v_lshlrev_b32 v{vL16}, 4, v{l}')
    a(f's_lshl_b32 s21, s{sW}, 13')
    a(f'v_add_u32 v{vC}, s21, v{vL16}')
    a(f'v_lshrrev_b32 v44, 3, v{n_}')
    a('v_lshlrev_b32 v44, 11, v44')
    a(f'v_lshl_add_u32 v44, v{g_}, 8, v44')
    a(f'v_bfe_u32 v45, v{n_}, 1, 2')
    a('v_lshl_add_u32 v44, v45, 6, v44')
    a(f'v_and_b32 v45, 1, v{n_}')
    a(f'v_lshl_add_u32 v{vOr}, v45, 4, v44')
    a(f's_lshr_b32 s21, s{sH}, 1')
    a('s_lshl_b32 s21, s21, 11')
    a(f's_and_b32 s22, s{sH}, 1')
    a('s_lshl_b32 s22, s22, 10')
    a('s_add_u32 s21, s21, s22')
    a(f's_lshl_b32 s22, s{sW}, 8')
    a('s_add_u32 s21, s21, s22')
    a(f'v_lshlrev_b32 v44, 15, v{g_}')
    a(f'v_lshl_add_u32 v44, v{n_}, 4, v44')
    a(f'v_add_u32 v{vP1}, s21, v44')
    a(f's_lshl_b32 s21, s{sH}, 11')
    a(f's_lshl_b32 s22, s{sW}, 9')
    a('s_add_u32 s21, s21, s22')
    a(f'v_lshlrev_b32 v44, 16, v{g_}')
    a(f'v_lshl_add_u32 v44, v{n_}, 4, v44')
    a(f'v_add_u32 v{vP2}, s21, v44')
    a(f'v_lshrrev_b32 v44, 1, v{g_}')
    a(f'v_lshl_add_u32 v44, v44, 4, v{n_}')
    a(f's_lshl_b32 s21, s{sW}, 5')
    a('v_add_u32 v44, s21, v44')
    a(f'v_and_b32 v45, 1, v{g_}')
    a('v_lshlrev_b32 v46, 11, v45')
    a(f'v_lshl_add_u32 v{vRl}, v44, 4, v46')
    a('v_lshlrev_b32 v46, 10, v45')
    a(f'v_lshl_add_u32 v{vRo}, v44, 3, v46')
    a(f's_lshl_b32 s21, s{sW}, 3')
    a(f's_add_u32 s21, s21, {L_ST}')
    a('v_lshlrev_b32 v46, 5, v45')
    a(f'v_add_u32 v{vStw}, s21, v46')
    a(f'v_add_u32 v{vStr}, {L_ST}, v46')
    a(f's_and_b32 s21, s{sW}, 1')
    a(f'v_lshl_add_u32 v44, v{n_}, 1, s21')
    a('v_mul_u32_u24 v45, 80, v44')
    a(f'v_lshl_add_u32 v45, v{g_}, 3, v45')
    a(f's_lshr_b32 s22, s{sW}, 1')
    a('s_lshl_b32 s22, s22, 5')
    a(f's_add_u32 s22, s22, {L_OB}')
    a(f'v_add_u32 v{vOw}, s22, v45')
    a(f'v_mul_u32_u24 v45, 80, v{n_}')
    a(f'v_lshl_add_u32 v45, v{g_}, 4, v45')
    a(f'v_add_u32 v{vOrd}, {L_OB}, v45')
    for b in range(4):
        a(f'v_add_u32 v45, {4 * b}, v{g_}')
        a(f'v_xor_b32 v45, v45, v{n_}')
        a('v_lshlrev_b32 v45, 4, v45')
        a(f'v_lshl_add_u32 v{vXr + b}, v44, 10, v45')
    a(f's_lshl_b32 s21, s{sW}, 2')
    for b in range(4):
        a(f's_add_u32 s22, s21, {b}')
        a(f'v_xor_b32 v45, s22, v{l}')
        a(f'v_lshlrev_b32 v{vD + b}, 4, v45')
    a(f'v_mov_b32 v45, {NEG:#x}')
    for T in range(2):
        for rho in range(4):
            if T == 0:
                m = mask64(lambda i, g: not (4 * g + rho >= i + 9))
            else:
                m = mask64(lambda i, g: not (0 <= i - (4 * g + rho) <= 7))
            smov64(a, 22, m)
            a(f'v_cndmask_b32 v{MSK + 4 * T + rho}, 0, v45, s[22:23]')
    a(f'v_and_b32 v45, 1, v{n_}')
    a('v_lshlrev_b32 v45, 4, v45')
    a('v_mov_b32 v46, 0x3f80')
    a('v_lshlrev_b32 v45, v45, v46')
    for k in range(4):
        smov64(a, 22, mask64(lambda i, g: ((i & 7) >> 1) == k and (g >> 1) == (i >> 3)))
        a(f'v_cndmask_b32 v{SEL + k}, 0, v45, s[22:23]')
    a(f's_load_dwordx2 s[4:5], s[0:1], {KA_X}')
    a(f's_load_dwordx2 s[8:9], s[0:1], {KA_OUT}')
    a(f's_and_b32 s{sLay}, s{sL}, 1')
    a(f's_lshr_b32 s{sSeg}, s{sL}, 1')
    a(f's_mov_b32 s{sTask}, 0')
    a(f's_mul_i32 s{sRb}, s{sL}, {WBR_SIZE}')
    a(f's_add_u32 s{sRb}, s{sRb}, {WBR_OFF}')
    a(f's_mov_b32 s{sP1}, s{sRb}')
    a(f's_lshl_b32 s{sT}, s{sH}, 14')
    a(f's_add_u32 s{sP1r}, s{sP1}, s{sT}')
    a(f's_add_u32 s{sP2}, s{sRb}, {256 << 10}')
    a(f's_lshl_b32 s{sT}, s{sH}, 15')
    a(f's_add_u32 s{sP2r}, s{sP2}, s{sT}')
    a(f's_mov_b32 s{sC}, {f32bits(SCALE_B):#x}')
    a(f's_mov_b32 s{sC1}, {f32bits(SCALE_B):#x}')
    a(f's_mov_b32 s{sInv}, {f32bits(1 / 512):#x}')
    a(f's_mov_b32 s{sEps}, {f32bits(1e-5):#x}')
    a(f's_lshl_b32 s{sBuf}, s{sW}, 13')
    a(f's_add_u32 s{sBuf2}, s{sBuf}, 4096')
    a('s_waitcnt lgkmcnt(0)')
    a('s_mov_b32 s6, 0x200000')
    a('s_mov_b32 s7, 0x20000')
    a('s_mov_b32 s10, 0x200000')
    a('s_mov_b32 s11, 0x20000')
    a(f's_cmp_eq_u32 s{sLay}, 1')
    a('s_cselect_b32 s4, s12, s4')
    a('s_cselect_b32 s5, s13, s5')
    a('s_cselect_b32 s6, s14, s6')
    a('s_barrier')


def row_stats(a, Y, t, filler=None):
    s1, s2 = t, t + 1
    a(f'v_add_f32 v{s1}, v{Y}, v{Y + 1}')
    a(f'v_mul_f32 v{s2}, v{Y}, v{Y}')
    a(f'v_add_f32 v{t + 2}, v{Y + 2}, v{Y + 3}')
    a(f'v_fmac_f32 v{s2}, v{Y + 1}, v{Y + 1}')
    a(f'v_add_f32 v{s1}, v{s1}, v{t + 2}')
    a(f'v_fmac_f32 v{s2}, v{Y + 2}, v{Y + 2}')
    a(f'v_fmac_f32 v{s2}, v{Y + 3}, v{Y + 3}')
    for sh in (8, 4, 2, 1):
        for s in (s1, s2):
            a(f'v_add_f32_dpp v{s}, v{s}, v{s} row_ror:{sh} row_mask:0xf bank_mask:0xf')
    a(f'v_mov_b32 v{t + 2}, v{s1}')
    a(f'v_mov_b32 v{t + 3}, v{s2}')
    a(f'v_permlane32_swap_b32 v{s1}, v{t + 2}')
    a(f'v_permlane32_swap_b32 v{s2}, v{t + 3}')
    a(f'v_pk_add_f32 {vr(s1, 2)}, {vr(s1, 2)}, {vr(t + 2, 2)}')
    a('s_mov_b64 exec, 0x10001')
    a(f'ds_write_b64 v{vStw}, {vr(s1, 2)}')
    a('s_mov_b64 exec, -1')
    if filler:
        filler()
    a('s_waitcnt lgkmcnt(0)')
    a('s_barrier')
    a(f'ds_read_b128 {vr(t + 2, 4)}, v{vStr}')
    a(f'ds_read_b128 {vr(t + 6, 4)}, v{vStr} offset:16')
    a(f'v_pk_add_f32 {vr(t + 2, 2)}, {vr(t + 2, 2)}, {vr(t + 4, 2)}')
    a(f'v_pk_add_f32 {vr(t + 6, 2)}, {vr(t + 6, 2)}, {vr(t + 8, 2)}')
    a(f'v_pk_add_f32 {vr(t + 2, 2)}, {vr(t + 2, 2)}, {vr(t + 6, 2)}')
    finish_stats(a, t + 2, t + 3, t, f's{sInv}', f's{sEps}')


def finish_stats(a, s1, s2, t, inv, eps):
    a(f'v_mul_f32 v{s1}, {inv}, v{s1}')
    a(f'v_mul_f32 v{s2}, {inv}, v{s2}')
    a(f'v_fma_f32 v{s2}, -v{s1}, v{s1}, v{s2}')
    a(f'v_max_f32 v{s2}, 0, v{s2}')
    a(f'v_add_f32 v{s2}, {eps}, v{s2}')
    a(f'v_rsq_f32 v{t}, v{s2}')
    a(f'v_mul_f32 v{t + 1}, v{s1}, v{t}')
    a(f'v_sub_f32 v{t + 1}, 0, v{t + 1}')


def emit_wb_loop(a, fast, fail, done, prof=False, opt=None):
    opt = opt or {}
    sc = '' if fast else ' sc1'
    LOOP = a.newlabel('WL')
    npr = [0]

    def stamp():
        if prof and npr[0] in (1, 3, 5, 9):
            a(f's_mov_b32 s{60 + (1, 3, 5, 9).index(npr[0])}, s{sSpin}')
        if prof:
            a(f'{"s_memrealtime" if opt.get("rt") else "s_memtime"} {sr(sPROF + 2 * npr[0], 2)}')
            npr[0] += 1
    T = W0
    ACC = W0 + 12
    FR = W0 + 44
    SEN = T

    def mf(d, A, B, C):
        return f'v_mfma_f32_16x16x32_bf16 {vr(d, 4)}, {A}, {B}, {C}'

    def tile_check(retry, dwords):
        for j in range(8):
            a(f'ds_read_b128 {vr(ACC + 4 * j, 4)}, v{vC} offset:{1024 * j}')
        regs = [ACC + 4 * j + d for j in range(8) for d in dwords]
        a(f'v_max_u32 v{T}, v{regs[0]}, v{regs[1]}')
        for k in range(2, len(regs), 2):
            a(f'v_max3_u32 v{T}, v{T}, v{regs[k]}, v{regs[k + 1]}')
        a(f'v_cmp_eq_u32 vcc, -1, v{T}')
        ok = a.newlabel('WK')
        a(f's_cbranch_vccz {ok}')
        a('s_mov_b64 exec, vcc')
        a(f's_branch {retry}')
        a.label(ok)

    def reduce(nload, sbase, R, racc):
        RT, RE = a.newlabel('WR'), a.newlabel('WRE')
        a(f's_mov_b32 s{sSpin}, 0')
        if opt.get('wack', 1):
            a('s_waitcnt vmcnt(0)')
        a.label(RT)
        for u in range(nload):
            if u:
                a(f's_add_u32 s{sT}, s{sbase}, {4096 * u}')
            a(f'buffer_load_dwordx4 {vr(R + 4 * u, 4)}, v{vRl}, {WS}, s{sT if u else sbase} offen sc1')
        a('s_mov_b64 exec, -1')
        spin_guard(a, sSpin, fail)
        for u in range(nload):
            a(mf(racc, vr(SEL, 4), vr(R + 4 * u, 4), 0 if u == 0 else vr(racc, 4)))
            if u == 0:
                a(f'v_xor_b32 v{T}, s{sTag}, v{R}')
            else:
                a(f'v_bitop3_b32 v{T}, v{T}, v{R + 4 * u}, s{sTag} bitop3:0xf6')
        a(f'v_and_b32 v{T}, 1, v{T}')
        a(f'v_cmp_ne_u32 vcc, 0, v{T}')
        a(f's_cbranch_vccz {RE}')
        a('s_mov_b64 exec, vcc')
        a(f's_branch {RT}')
        a.label(RE)

    def chunk_store(acc4, y, PK, vaddr, soff, imm):
        for x in range(2):
            for j in range(2):
                a(f'v_cvt_pk_bf16_f32 v{PK + 2 * x + j}, v{acc4[2 * j] + 2 * y + x}, v{acc4[2 * j + 1] + 2 * y + x}')
        a(f'v_and_or_b32 v{PK}, v{PK}, -2, s{sTag}')
        a(f'buffer_store_dwordx4 {vr(PK, 4)}, v{vaddr}, {WS}, s{soff} offen offset:{imm}{sc}')

    def o_fetch():
        for j in range(8):
            if j % 4 == 0:
                a(f's_mov_b32 m0, s{sBuf if j == 0 else sBuf2}')
            a(f'buffer_load_dwordx4 v{vL16}, {WS}, s{sO if j < 4 else sO2} offen offset:{1024 * (j & 3)} sc1 lds')
    a(f's_lshl_b32 s{sO}, s{sLay}, 5')
    a(f's_lshr_b32 s{sT2}, s{sH}, 1')
    a(f's_lshl_b32 s{sT2}, s{sT2}, 2')
    a(f's_add_u32 s{sO}, s{sO}, s{sT2}')
    a(f's_add_u32 s{sO}, s{sO}, s{sW}')
    a(f's_lshl_b32 s{sO}, s{sO}, 6')
    a(f's_add_u32 s{sO}, s{sO}, s{sSeg}')
    a(f's_lshl_b32 s{sO}, s{sO}, 13')
    a(f's_add_u32 s{sO}, s{sO}, {OX_OFF}')
    a(f's_add_u32 s{sO2}, s{sO}, 4096')
    a.label(LOOP)
    stamp()
    o_fetch()
    a(f's_and_b32 s{sTag}, s{sTask}, 1')
    a(f's_lshl_b32 s{sT}, s{sLay}, 6')
    a(f's_add_u32 s{sT}, s{sT}, s{sSeg}')
    a(f's_lshl_b32 s{sHw}, s{sT}, 4')
    a(f's_add_u32 s{sHw}, s{sHw}, s{sH}')
    a(f's_lshl_b32 s{sHw}, s{sHw}, 2')
    a(f's_add_u32 s{sHw}, s{sHw}, s{sW}')
    a(f's_lshl_b32 s{sHw}, s{sHw}, 10')
    a(f's_add_u32 s{sHw}, s{sHw}, {HALO_OFF}')
    a(f's_sub_u32 s{sHr}, s{sHw}, 65536')
    a(f's_lshl_b32 s{sRes}, s{sSeg}, 4')
    a(f's_add_u32 s{sRes}, s{sRes}, s{sH}')
    a(f's_lshl_b32 s{sRes}, s{sRes}, 11')
    a(f's_lshl_b32 s{sT}, s{sTag}, 15')
    a(f's_add_u32 s{sXr}, s{sRb}, s{sT}')
    a(f's_add_u32 s{sXr}, s{sXr}, {768 << 10}')
    a(f's_lshl_b32 s{sT2}, s{sH}, 11')
    a(f's_add_u32 s{sXw}, s{sXr}, s{sT2}')
    a(f's_xor_b32 s{sT}, s{sT}, 0x8000')
    a(f's_add_u32 s{sXc}, s{sRb}, s{sT}')
    a(f's_add_u32 s{sXc}, s{sXc}, {768 << 10}')
    a(f's_add_u32 s{sXc}, s{sXc}, s{sT2}')
    a(f's_add_u32 s{sXr}, s{sXr}, s{sBuf}')
    RT, OK0 = a.newlabel('WO'), a.newlabel('WOK')
    a(f's_mov_b32 s{sSpin}, 0')
    a('s_waitcnt vmcnt(0)')
    a(f's_branch {OK0}')
    a.label(RT)
    a('s_mov_b64 exec, -1')
    if opt.get('probe', 0):
        PR = a.newlabel('WP')
        a(f'v_lshlrev_b32 v{T + 4}, 7, v{vL16}')
        a('s_mov_b64 exec, 15')
        a.label(PR)
        if opt.get('osleep', 1):
            a(f's_sleep {opt.get("osleep", 1)}')
        a(f'buffer_load_dword v{T + 5}, v{T + 4}, {WS}, s{sO} offen offset:1024 sc1')
        spin_guard(a, sSpin, fail)
        a(f'v_cmp_eq_u32 vcc, -1, v{T + 5}')
        a(f's_cbranch_vccnz {PR}')
        a('s_mov_b64 exec, -1')
    o_fetch()
    spin_guard(a, sSpin, fail)
    a('s_waitcnt vmcnt(0)')
    a.label(OK0)
    tile_check(RT, (0,))
    a('s_barrier')
    stamp()
    XR = T + 10

    def ofrag(q):
        mt, ks = q >> 4, q & 15
        return f'ds_read_b128 {vr(FR + 4 * (q & 3), 4)}, v{vOr} offset:{8192 * (ks >> 2) + 4096 * mt + 1024 * (ks & 1) + (0 if ks & 2 else 32)}'
    for q in range(3):
        a(ofrag(q))
    extra = {}
    extra[0] = [f's_mul_i32 s{sT}, s{sLay}, {X2_OFF}', f's_add_u32 s{sClr}, s{sT}, s{sRes}',
                f'buffer_load_dwordx2 {vr(XR, 2)}, v{vRo}, {RES}, s{sClr} offen sc1']
    extra[1] = [f'v_mov_b64 {vr(SEN, 2)}, -1', f'v_mov_b64 {vr(SEN + 2, 2)}, -1']
    extra[2] = [f's_add_u32 s{sT}, s{sHw}, {3 * 65536}', f's_cmp_ge_u32 s{sSeg}, {NSEG - 3}', f's_cselect_b32 s{sT}, s14, s{sT}',
                f'buffer_store_dwordx4 {vr(SEN, 4)}, v{vL16}, {WS}, s{sT} offen sc1']
    extra[3] = [f's_cmp_ge_u32 s{sSeg}, {NSEG - 3}', f's_cselect_b32 s{sT2}, 1, s{sLay}']
    for q, base in ((4, XN_OFF + (2 << 20) + 3 * 32768), (6, X2_OFF + 3 * 32768)):
        extra[q] = [f's_add_u32 s{sT}, s{sRes}, {base}', f's_cmp_eq_u32 s{sT2}, 1', f's_cselect_b32 s{sT}, s14, s{sT}',
                    f'buffer_store_dwordx2 {vr(SEN, 2)}, v{vRo}, {WS}, s{sT} offen sc1']

    def chunk_ops(acc4, y, PK, vaddr, sbase, off, imm):
        o = [f's_add_u32 s{sT}, s{sbase}, {off}']
        for x in range(2):
            for j in range(2):
                o.append(f'v_cvt_pk_bf16_f32 v{PK + 2 * x + j}, v{acc4[2 * j] + 2 * y + x}, v{acc4[2 * j + 1] + 2 * y + x}')
        o.append(f'v_and_or_b32 v{PK}, v{PK}, -2, s{sTag}')
        o.append(f'buffer_store_dwordx4 {vr(PK, 4)}, v{vaddr}, {WS}, s{sT} offen offset:{imm}{sc}')
        return o
    ep0 = [l for y in range(2) for l in chunk_ops([ACC + 4 * t for t in range(4)], y, T + 4 * y, vP1, sP1, y * 16384, 0)]
    for q in range(32):
        mt, ks = q >> 4, q & 15
        for t in range(4):
            d = ACC + 16 * mt + 4 * t
            a(mf(d, vr(FR + 4 * (q & 3), 4), ar(16 * ks + 4 * t, 4), 0 if ks == 0 else vr(d, 4)))
            if t == 0 and q + 3 < 32:
                a(ofrag(q + 3))
            if t == 1:
                for l in extra.get(q, []):
                    a(l)
            if q >= 17 and t >= 2 and ep0:
                a(ep0.pop(0))
    assert not ep0
    for y in range(2):
        for l in chunk_ops([ACC + 16 + 4 * t for t in range(4)], y, T + 4 * y, vP1, sP1, (8 + y) * 16384, 0):
            a(l)
    stamp()
    RA = T + 4
    reduce(4, sP1r, ACC, RA)
    stamp()
    RX, RXOK = a.newlabel('WX'), a.newlabel('WXK')
    a(f's_cmp_eq_u32 s{sLay}, 0')
    a(f's_cbranch_scc1 {RXOK}')
    a.label(RX)
    a(f'v_cmp_eq_u32 vcc, -1, v{XR}')
    a(f's_cbranch_vccz {RXOK}')
    spin_guard(a, sSpin, fail)
    a(f'buffer_load_dwordx2 {vr(XR, 2)}, v{vRo}, {RES}, s{sClr} offen sc1')
    a(f's_branch {RX}')
    a.label(RXOK)

    def add_round(racc, res, packed):
        for k in range(4):
            a(f'v_add_f32 v{racc + k}, v{racc + k}, v{res + k}')
        a(f'v_cvt_pk_bf16_f32 v{packed}, v{racc}, v{racc + 1}')
        a(f'v_cvt_pk_bf16_f32 v{packed + 1}, v{racc + 2}, v{racc + 3}')

    def unpack(dst, packed):
        for k in range(2):
            a(f'v_lshlrev_b32 v{dst + 2 * k}, 16, v{packed + k}')
            a(f'v_and_b32 v{dst + 2 * k + 1}, 0xffff0000, v{packed + k}')

    def normalise(dstp, t):
        for k in range(4):
            a(f'v_fma_f32 v{t + 2 + k}, v{X1 + k}, v{t}, v{t + 1}')
        a(f'v_cvt_pk_bf16_f32 v{dstp}, v{t + 2}, v{t + 3}')
        a(f'v_cvt_pk_bf16_f32 v{dstp + 1}, v{t + 4}, v{t + 5}')
        a(f'v_min_u32 v{dstp}, -2, v{dstp}')
    unpack(X1, XR)
    for k in range(2):
        a(f'v_pk_add_f32 {vr(X1 + 2 * k, 2)}, {vr(X1 + 2 * k, 2)}, {vr(RA + 2 * k, 2)}')

    def rearm():
        a(f'v_mov_b64 {vr(T + 8, 2)}, -1')
        a(f'buffer_store_dwordx2 {vr(T + 8, 2)}, v{vRo}, {WS}, s{sXc} offen{sc}')
    row_stats(a, X1, ACC, rearm)
    normalise(XR, ACC)
    a(f'buffer_store_dwordx2 {vr(XR, 2)}, v{vRo}, {WS}, s{sXw} offen{sc}')
    stamp()
    RT = a.newlabel('WN')
    a(f's_mov_b32 s{sSpin}, 0')
    a(f's_add_u32 s{sT2}, s{sXr}, 4096')
    if opt.get('wack', 1):
        a('s_waitcnt vmcnt(0)')
    a.label(RT)
    for j in range(8):
        if j % 4 == 0:
            a(f's_mov_b32 m0, s{sBuf if j == 0 else sBuf2}')
        a(f'buffer_load_dwordx4 v{vD + (j >> 1)}, {WS}, s{sXr if j < 4 else sT2} offen offset:{1024 * (j & 3)} sc1 lds')
    a('s_mov_b64 exec, -1')
    spin_guard(a, sSpin, fail)
    a('s_waitcnt vmcnt(0)')
    tile_check(RT, (0, 2))
    a('s_barrier')
    stamp()
    HP = T + 8
    NOH = a.newlabel('WNH')
    a(f'v_mov_b64 {vr(HP, 2)}, 0')
    a(f'v_mov_b64 {vr(HP + 2, 2)}, 0')
    a(f's_cmp_eq_u32 s{sSeg}, 0')
    a(f's_cbranch_scc1 {NOH}')
    a(f'buffer_load_dwordx4 {vr(HP, 4)}, v{vL16}, {WS}, s{sHr} offen sc1')
    a.label(NOH)
    QA, KA, VA = ACC, ACC + 4, ACC + 8
    XF, VF = ACC + 16, FR

    def b1rd(k):
        return [f'ds_read_b128 {vr(XF + 4 * (k & 3), 4)}, v{vXr + (k & 3)} offset:{256 * (k >> 2)}',
                f'ds_read_b64_tr_b16 {vr(VF + 4 * (k & 3), 2)}, v{vVr} offset:{2048 * k}',
                f'ds_read_b64_tr_b16 {vr(VF + 4 * (k & 3) + 2, 2)}, v{vVr} offset:{2048 * k + 256}']
    for k in range(3):
        for l in b1rd(k):
            a(l)
    for k in range(16):
        xf = vr(XF + 4 * (k & 3), 4)
        nx = b1rd(k + 3) if k + 3 < 16 else []
        a(mf(KA, vr(WK + 4 * k, 4), xf, 0 if k == 0 else vr(KA, 4)))
        if nx:
            a(nx[0])
        a(mf(VA, xf, vr(VF + 4 * (k & 3), 4), 0 if k == 0 else vr(VA, 4)))
        if nx:
            a(nx[1])
            a(nx[2])
        a(mf(QA, vr(WQ + 4 * k, 4), xf, 0 if k == 0 else vr(QA, 4)))
    HC = T + 4
    QP = T + 2
    for d in range(2):
        a(f'v_cvt_pk_bf16_f32 v{HC + d}, v{KA + 2 * d}, v{KA + 2 * d + 1}')
    for d in range(2):
        a(f'v_cvt_pk_bf16_f32 v{HC + 2 + d}, v{VA + 2 * d}, v{VA + 2 * d + 1}')
    a(f'v_min_u32 v{HC}, -2, v{HC}')
    for d in range(2):
        a(f'v_cvt_pk_bf16_f32 v{QP + d}, v{QA + 2 * d}, v{QA + 2 * d + 1}')
    stamp()
    S0, S1 = ACC + 16, ACC + 20
    HOK, HRT, HZ = a.newlabel('WHK'), a.newlabel('WHR'), a.newlabel('WHZ')
    a(f'v_mfma_f32_16x16x16_bf16 {vr(S1, 4)}, {vr(HC, 2)}, {vr(QP, 2)}, {vr(MSK + 4, 4)}')
    a(f's_cmp_eq_u32 s{sSeg}, 0')
    a(f's_cbranch_scc1 {HZ}')
    a(f's_mov_b32 s{sSpin}, 0')
    a.label(HRT)
    a(f'v_cmp_eq_u32 vcc, -1, v{HP}')
    a(f's_cbranch_vccz {HOK}')
    spin_guard(a, sSpin, fail)
    a(f'buffer_load_dwordx4 {vr(HP, 4)}, v{vL16}, {WS}, s{sHr} offen sc1')
    a(f's_branch {HRT}')
    a.label(HZ)
    for k in range(4):
        a(f'v_mov_b32 v{S0 + k}, {NEG:#x}')
    HDONE = a.newlabel('WHD')
    a(f's_branch {HDONE}')
    a.label(HOK)
    a(f'v_mfma_f32_16x16x16_bf16 {vr(S0, 4)}, {vr(HP, 2)}, {vr(QP, 2)}, {vr(MSK, 4)}')
    a.label(HDONE)
    a(f'buffer_store_dwordx4 {vr(HC, 4)}, v{vL16}, {WS}, s{sHw} offen sc1')
    m0_, m1_ = T, T + 1
    VOP, PP = ACC + 24, ACC + 28
    a(f'v_mov_b32 v{VOP}, v{HP + 2}')
    a(f'v_mov_b32 v{VOP + 1}, v{HP + 3}')
    a(f'v_mov_b32 v{VOP + 2}, v{HC + 2}')
    a(f'v_mov_b32 v{VOP + 3}, v{HC + 3}')
    a(f'v_max3_f32 v{m0_}, v{S1}, v{S1 + 1}, v{S1 + 2}')
    a(f'v_max3_f32 v{m0_}, v{m0_}, v{S1 + 3}, v{S0}')
    a(f'v_max3_f32 v{m0_}, v{m0_}, v{S0 + 1}, v{S0 + 2}')
    a(f'v_max_f32 v{m1_}, v{m0_}, v{S0 + 3}')
    a(f'v_max_f32 v{m0_}, v{m0_}, v{S0 + 3}')
    a(f'v_permlane16_swap_b32 v{m0_}, v{m1_}')
    a(f'v_max_f32 v{m0_}, v{m0_}, v{m1_}')
    a(f'v_mov_b32 v{m1_}, v{m0_}')
    a(f'v_permlane32_swap_b32 v{m0_}, v{m1_}')
    a(f'v_max_f32 v{m0_}, v{m0_}, v{m1_}')
    a(f'v_mul_f32 v{m0_}, s{sC}, v{m0_}')
    for k in range(8):
        a(f'v_fma_f32 v{S0 + k}, v{S0 + k}, s{sC}, -v{m0_}')
    for k in range(8):
        a(f'v_exp_f32 v{S0 + k}, v{S0 + k}')
    a(f'v_pk_add_f32 {vr(m0_, 2)}, {vr(S0, 2)}, {vr(S0 + 2, 2)}')
    a(f'v_pk_add_f32 {vr(PP, 2)}, {vr(S1, 2)}, {vr(S1 + 2, 2)}')
    a(f'v_pk_add_f32 {vr(m0_, 2)}, {vr(m0_, 2)}, {vr(PP, 2)}')
    a(f'v_add_f32 v{PP}, v{m0_}, v{m1_}')
    a(f'v_add_f32 v{m0_}, v{m0_}, v{m1_}')
    a(f'v_permlane16_swap_b32 v{m0_}, v{PP}')
    a(f'v_add_f32 v{m1_}, v{m0_}, v{PP}')
    a(f'v_add_f32 v{m0_}, v{m0_}, v{PP}')
    a(f'v_permlane32_swap_b32 v{m0_}, v{m1_}')
    a(f'v_add_f32 v{m0_}, v{m0_}, v{m1_}')
    a(f'v_rcp_f32 v{m0_}, v{m0_}')
    for k in range(4):
        a(f'v_pk_mul_f32 {vr(S0 + 2 * k, 2)}, {vr(S0 + 2 * k, 2)}, {vr(m0_, 2)} op_sel_hi:[1,0]')
    for k in range(4):
        a(f'v_cvt_pk_bf16_f32 v{PP + k}, v{S0 + 2 * k}, v{S0 + 2 * k + 1}')
    OA = ACC
    a(mf(OA, vr(VOP, 4), vr(PP, 4), 0))
    for d in range(2):
        a(f'v_cvt_pk_bf16_f32 v{QP + d}, v{OA + 2 * d}, v{OA + 2 * d + 1}')
    a(f'ds_write_b64 v{vOw}, {vr(QP, 2)}')
    a('s_waitcnt lgkmcnt(0)')
    a('s_barrier')
    stamp()
    for mt in range(2):
        a(f'ds_read_b128 {vr(FR + 4 * mt, 4)}, v{vOrd} offset:{1280 * mt}')
    groups = [(mt, cg) for mt in range(2) for cg in range(2)]

    def b2m(i):
        mt, cg = groups[i]
        return [mf(ACC + 16 * (i & 1) + 4 * t, vr(FR + 4 * mt, 4), vr(WB2 + 16 * cg + 4 * t, 4), 0) for t in range(4)]
    for l in b2m(0) + b2m(1):
        a(l)
    q = 0
    for i, (mt, cg) in enumerate(groups):
        for y in range(2):
            ops = chunk_ops([ACC + 16 * (i & 1) + 4 * t for t in range(4)], y, T + 4 * (q % 3), vP2, sP2, (8 * mt + y) * 32768, 256 * cg)
            for l in ops[:-1]:
                a(l)
            if y == 1 and i + 2 < 4:
                nx = b2m(i + 2)
                a(nx[0])
                a(ops[-1])
                for l in nx[1:]:
                    a(l)
            else:
                a(ops[-1])
            q += 1
    stamp()
    RA = T + 4
    reduce(8, sP2r, ACC, RA)
    stamp()
    for k in range(2):
        a(f'v_pk_add_f32 {vr(X1 + 2 * k, 2)}, {vr(X1 + 2 * k, 2)}, {vr(RA + 2 * k, 2)}')
    L1, LE = a.newlabel('WF'), a.newlabel('WE')
    a(f's_cmp_eq_u32 s{sLay}, 1')
    a(f's_cbranch_scc1 {L1}')

    def raw_store():
        a(f'v_cvt_pk_bf16_f32 v{T + 8}, v{X1}, v{X1 + 1}')
        a(f'v_cvt_pk_bf16_f32 v{T + 9}, v{X1 + 2}, v{X1 + 3}')
        a(f'v_min_u32 v{T + 8}, -2, v{T + 8}')
        a(f's_add_u32 s{sT}, s{sRes}, {X2_OFF}')
        a(f'buffer_store_dwordx2 {vr(T + 8, 2)}, v{vRo}, {WS}, s{sT} offen sc1')
    row_stats(a, X1, ACC, raw_store)
    normalise(XR, ACC)
    a(f's_add_u32 s{sT}, s{sRes}, {XN_OFF + (2 << 20)}')
    a(f'buffer_store_dwordx2 {vr(XR, 2)}, v{vRo}, {WS}, s{sT} offen sc1')
    a(f's_branch {LE}')
    a.label(L1)
    if opt.get('noise'):
        for k in range(4):
            a(f'v_mul_f32 v{X1 + k}, {f32bits(opt["noise"]):#x}, v{X1 + k}')
    a(f'v_cvt_pk_bf16_f32 v{XR}, v{X1}, v{X1 + 1}')
    a(f'v_cvt_pk_bf16_f32 v{XR + 1}, v{X1 + 2}, v{X1 + 3}')
    a(f'buffer_store_dwordx2 {vr(XR, 2)}, v{vRo}, {OUT}, s{sRes} offen')
    a.label(LE)
    if prof:
        stamp()
        a('s_waitcnt lgkmcnt(0)')
        a(f's_lshl_b32 s{sT}, s{sLay}, 6')
        a(f's_add_u32 s{sT}, s{sT}, s{sSeg}')
        a(f's_lshl_b32 s{sT}, s{sT}, 4')
        a(f's_add_u32 s{sT}, s{sT}, s{sH}')
        a(f's_lshl_b32 s{sT}, s{sT}, 2')
        a(f's_add_u32 s{sT}, s{sT}, s{sW}')
        a(f's_lshl_b32 s{sT}, s{sT}, 6')
        a(f's_add_u32 s{sT}, s{sT}, {PROF_OFF + (4 << 20)}')
        for k in range(npr[0]):
            a(f'v_writelane_b32 v{T}, s{sPROF + 2 * k}, {k}')
        for k in range(4):
            a(f'v_writelane_b32 v{T}, s{60 + k}, {12 + k}')
        a(f'v_lshrrev_b32 v{T + 1}, 2, v{vL16}')
        a('s_mov_b64 exec, 0xffff')
        a(f'buffer_store_dword v{T}, v{T + 1}, {WS}, s{sT} offen')
        a('s_mov_b64 exec, -1')
    a(f's_add_u32 s{sO}, s{sO}, {3 * 8192}')
    a(f's_add_u32 s{sO2}, s{sO2}, {3 * 8192}')
    a(f's_add_u32 s{sTask}, s{sTask}, 1')
    a(f's_add_u32 s{sSeg}, s{sSeg}, 3')
    a(f's_cmp_lt_u32 s{sSeg}, {NSEG}')
    a(f's_cbranch_scc1 {LOOP}')
    a(f's_branch {done}')
```

```python
import sys
from asmlib import *
from layout import *
import chain, proj, wb

NAME = 'interleave_layers__memory_aug_recurrent_mem_tr__sliding_local_dilated__prompt_kernel'
D_FAIL, D_READY = 16 + 64, 16 + 128


D_READY2, D_READY3 = 16 + 192, 16
L_BC = 32512
sROLE, sXCC, sFINAL = 90, 91, 92
sRANK = 89
vRANK = 126


SLEEP2 = 20


def role_of(a, opt, idx, dst):
    perm = opt.get('perm', [0, 2, 1, 3, 4, 5, 6, 7])
    a(f's_lshr_b32 s22, s{idx}, 5')
    a('s_lshl_b32 s22, s22, 2')
    a(f's_lshr_b32 s22, {sum(p << (4 * i) for i, p in enumerate(perm)):#x}, s22')
    a('s_and_b32 s22, s22, 7')
    a('s_lshl_b32 s22, s22, 5')
    a(f's_and_b32 s{dst}, s{idx}, 31')
    a(f's_or_b32 s{dst}, s{dst}, s22')


def broadcast(a, src, dst):
    L = a.newlabel('BC')
    a(f'v_mov_b32 v60, {L_BC}')
    a(f's_cmp_lg_u32 s{sW}, 0')
    a(f's_cbranch_scc1 {L}')
    a(f'v_mov_b32 v61, s{src}')
    a('ds_write_b32 v60, v61')
    a('s_waitcnt lgkmcnt(0)')
    a.label(L)
    a('s_barrier')
    a('ds_read_b32 v61, v60')
    a(f'v_readfirstlane_b32 s{dst}, v61')
    a('s_barrier')


def emit_prologue(a, opt):
    a('s_cmp_ge_u32 s2, 256')
    a('s_cbranch_scc1 DONE')
    a(f's_load_dwordx4 s[8:11], s[0:1], {KA_DBG}')
    a(f's_getreg_b32 s{sXCC}, hwreg(HW_REG_XCC_ID, 0, 4)')
    a('v_lshrrev_b32 v1, 6, v0')
    a(f'v_readfirstlane_b32 s{sW}, v1')
    a('v_and_b32 v0, 63, v0')
    a(f's_and_b32 s{sXCC}, s{sXCC}, 7')
    a('s_waitcnt lgkmcnt(0)')
    a('s_mov_b32 s12, s10')
    a('s_mov_b32 s13, s11')
    a(f's_mov_b32 s14, {WS_BYTES}')
    a('s_mov_b32 s15, 0x20000')
    if opt.get('prof'):
        a('s_memrealtime s[94:95]')
    if opt.get('ipf', 0):
        a('s_getpc_b64 s[22:23]')
        a.label('PCREF')
        a(f's_lshl_b32 s21, s{sW}, 13')
        a('v_lshl_add_u32 v2, v0, 7, s21')
        for k in range(3):
            a(f'v_min_u32 v3, CODE_END-PCREF-4, v2')
            a('global_load_dword v125, v3, s[22:23]')
            a('v_add_u32 v2, 0x8000, v2')
    if opt.get('wpf', 0):
        a(f's_load_dwordx8 s[24:31], s[0:1], {KA_WQ}')
        a(f's_load_dwordx4 s[32:35], s[0:1], {KA_WQKV}')
        a('s_lshl_b32 s21, s2, 14')
        a('v_lshl_add_u32 v2, v0, 7, s21')
        a('s_mul_i32 s21, s2, 6144')
        a('v_min_u32 v3, 47, v0')
        a('v_lshl_add_u32 v3, v3, 7, s21')
        a('s_lshl_b32 s21, s2, 11')
        a('v_min_u32 v6, 15, v0')
        a('v_lshl_add_u32 v6, v6, 7, s21')
        a('s_waitcnt lgkmcnt(0)')
        for k in range(1, 4):
            a(f's_cmp_eq_u32 s{sW}, {k}')
            a(f's_cselect_b32 s24, s{24 + 2 * k}, s24')
            a(f's_cselect_b32 s25, s{25 + 2 * k}, s25')
        a('global_load_dword v124, v2, s[24:25]')
        a('v_add_u32 v2, 0x2000, v2')
        a('global_load_dword v124, v2, s[24:25]')
        a(f's_cmp_eq_u32 s{sW}, 1')
        a('s_cselect_b32 s32, s34, s32')
        a('s_cselect_b32 s33, s35, s33')
        a('s_cselect_b64 vcc, -1, 0')
        a('v_cndmask_b32 v3, v3, v6, vcc')
        a(f's_cmp_gt_u32 s{sW}, 1')
        a('s_cbranch_scc1 NOWPF')
        a('global_load_dword v124, v3, s[32:33]')
        a.label('NOWPF')
    a(f'v_mov_b64 {vr(vRANK, 2)}, 0')
    a(f's_cmp_lg_u32 s{sW}, 0')
    a('s_cbranch_scc1 NORANK')
    a(f's_and_b32 s21, s{sXCC}, 3')
    a('s_lshl_b32 s21, s21, 6')
    a(f's_lshr_b32 s22, s{sXCC}, 2')
    a('s_lshl_b32 s22, s22, 3')
    a('s_add_u32 s21, s21, s22')
    a('s_lshr_b32 s22, s2, 3')
    a('s_lshl_b32 s22, 1, s22')
    a('v_mov_b32 v2, s21')
    a('v_mov_b32 v4, s22')
    a('v_mov_b32 v5, 0x100')
    a('s_mov_b64 exec, 1')
    a(f'global_atomic_add_x2 {vr(vRANK, 2)}, v2, v[4:5], s[8:9] sc0')
    a('s_mov_b64 exec, -1')
    a.label('NORANK')
    if opt.get('byrank'):
        a(f'v_readfirstlane_b32 s21, v{vRANK + 1}')
        a('s_lshr_b32 s21, s21, 8')
        broadcast(a, 21, 23)
        a('s_min_u32 s22, s23, 31')
    else:
        a('s_lshr_b32 s22, s2, 3')
    a(f's_lshl_b32 s21, s{sXCC}, 5')
    a('s_add_u32 s21, s21, s22')
    role_of(a, opt, 21, sROLE)
    a(f's_mov_b32 s{sFINAL}, 0')
    a('s_branch DISPATCH')


def save_rank(a):
    L = a.newlabel('SR')
    a(f's_cmp_eq_u32 s{sFINAL}, 1')
    a(f's_cbranch_scc1 {L}')
    a(f'v_readfirstlane_b32 s{sRANK}, v{vRANK + 1}')
    a.label(L)


def census_load(a, dst):
    a(f's_load_dwordx2 s[62:63], s[0:1], {KA_DBG}')
    a(f'v_mbcnt_lo_u32_b32 v{dst}, -1, 0')
    a(f'v_and_b32 v{dst + 1}, 3, v{dst}')
    a(f'v_lshrrev_b32 v{dst}, 2, v{dst}')
    a(f'v_lshlrev_b32 v{dst}, 3, v{dst}')
    a(f'v_lshl_add_u32 v{dst}, v{dst + 1}, 6, v{dst}')
    a('s_mov_b64 exec, 0xff')
    a('s_waitcnt lgkmcnt(0)')
    a(f'global_load_dwordx2 {vr(dst, 2)}, v{dst}, s[62:63] sc1')
    a('s_mov_b64 exec, -1')


def census_eval(a, src):
    a('s_mov_b32 s64, 0')
    a('s_mov_b32 s65, 0')
    a('s_mov_b32 s66, 1')
    a('s_mov_b32 s67, 1')
    for k in range(8):
        a(f'v_readlane_b32 s68, v{src + 1}, {k}')
        a(f'v_readlane_b32 s69, v{src}, {k}')
        a('s_cmp_eq_u32 s68, 0x2000')
        a('s_cselect_b32 s67, s67, 0')
        a('s_cmp_eq_u32 s69, -1')
        a('s_cselect_b32 s67, s67, 0')
        a('s_lshr_b32 s68, s68, 8')
        a('s_add_u32 s64, s64, s68')
        a(f's_cmp_gt_u32 s{sXCC}, {k}')
        a('s_cselect_b32 s69, s68, 0')
        a('s_add_u32 s65, s65, s69')
        a('s_cmp_eq_u32 s68, 32')
        a('s_cselect_b32 s66, s66, 0')


def verify(a, opt, preloaded=None):
    L, E, OK = a.newlabel('VW'), a.newlabel('VE'), a.newlabel('VK')
    src = preloaded or 60
    a(f's_cmp_eq_u32 s{sFINAL}, 1')
    a(f's_cbranch_scc1 {OK}')
    a('s_mov_b32 s61, 0')
    if preloaded:
        a(f's_branch {E}')
    a.label(L)
    spin_guard(a, 61, 'FAIL')
    a(f's_sleep {opt.get("vsleep", 16)}')
    census_load(a, src)
    a.label(E)
    if not (opt.get('slow') or opt.get('rerank')):
        G = a.newlabel('VG')
        a('s_mov_b64 exec, 0xff')
        if opt.get('byrank'):
            a(f'v_lshrrev_b32 v{src}, 8, v{src + 1}')
            a(f'v_cmp_eq_u32 vcc, 32, v{src}')
        else:
            a(f'v_cmp_eq_u32 vcc, -1, v{src}')
            a('s_mov_b64 exec, vcc')
            a(f'v_cmp_eq_u32 vcc, 0x2000, v{src + 1}')
        a('s_mov_b64 exec, -1')
        a('s_cmp_eq_u32 vcc_lo, 0xff')
        a(f's_cbranch_scc1 {G}')
    census_eval(a, src)
    a('s_cmp_lt_u32 s64, 256')
    a(f's_cbranch_scc1 {L}')
    a('s_cmp_gt_u32 s64, 256')
    a('s_cbranch_scc1 FAIL')
    if opt.get('byrank'):
        a('s_mov_b32 s67, s66')
    if opt.get('slow') or opt.get('rerank'):
        a('s_mov_b32 s67, 0')
    a('s_cmp_eq_u32 s67, 0')
    a('s_cbranch_scc1 REROLE')
    if not (opt.get('slow') or opt.get('rerank')):
        a.label(G)
    a(f's_mov_b32 s{sFAST}, 1')
    a(f's_mov_b32 s{sFINAL}, 1')
    a.label(OK)


def emit_rerole(a, opt):
    a.label('REROLE')
    a('s_waitcnt vmcnt(0) lgkmcnt(0)')
    a('s_barrier')
    a(f's_lshr_b32 s21, s{sRANK}, 8')
    broadcast(a, 21, 21)
    a('s_add_u32 s65, s65, s21')
    if opt.get('slow'):
        a('s_mov_b32 s66, 0')
        a('s_mov_b32 s65, s2')
    role_of(a, opt, 65, sROLE)
    a(f's_mov_b32 s{sFAST}, s66')
    a(f's_mov_b32 s{sFINAL}, 1')
    a('v_mbcnt_lo_u32_b32 v0, -1, 0')
    a('v_mbcnt_hi_u32_b32 v0, -1, v0')


def signal(a, off, by_layer=False, drain=True):
    L = a.newlabel('SG')
    if drain:
        a('s_waitcnt vmcnt(0)')
    a('s_barrier')
    a(f's_cmp_lg_u32 s{sW}, 0')
    a(f's_cbranch_scc1 {L}')
    a(f's_load_dwordx2 s[62:63], s[0:1], {KA_DBG}')
    a(f'v_mov_b32 v60, {off}')
    if by_layer:
        a(f's_and_b32 s61, s{sL}, 1')
        a('v_lshl_add_u32 v60, s61, 2, v60')
    a('v_mov_b32 v61, 1')
    a('s_mov_b64 exec, 1')
    a('s_waitcnt lgkmcnt(0)')
    a('global_atomic_add v60, v61, s[62:63]')
    a('s_mov_b64 exec, -1')
    a.label(L)


def wait_count(a, off, n, by_layer=False):
    L, S = a.newlabel('RW'), a.newlabel('RS')
    a(f's_cmp_lg_u32 s{sW}, 0')
    a(f's_cbranch_scc1 {S}')
    a(f's_load_dwordx2 s[62:63], s[0:1], {KA_DBG}')
    a(f'v_mov_b32 v60, {off}')
    if by_layer:
        a(f's_and_b32 s61, s{sL}, 1')
        a('v_lshl_add_u32 v60, s61, 2, v60')
    a('s_mov_b32 s61, 0')
    a('s_mov_b64 exec, 1')
    a('s_waitcnt lgkmcnt(0)')
    a.label(L)
    spin_guard(a, 61, 'FAIL')
    a('s_sleep 8')
    a('global_load_dword v61, v60, s[62:63] sc1')
    a(f'v_cmp_gt_u32 vcc, {n}, v61')
    a(f's_cbranch_vccnz {L}')
    a('s_mov_b64 exec, -1')
    a.label(S)
    a('s_barrier')


def wait_two(a, for_p=False):
    L, S = a.newlabel('RW'), a.newlabel('RS')
    a(f's_cmp_lg_u32 s{sW}, 0')
    a(f's_cbranch_scc1 {S}')
    a(f's_load_dwordx2 s[62:63], s[0:1], {KA_DBG}')
    a('v_mov_b32 v62, 48')
    if for_p:
        a(f's_mov_b32 s61, {D_READY}')
        a('s_movk_i32 s60, 96')
        a('v_writelane_b32 v62, s60, 1')
    else:
        a(f's_and_b32 s61, s{sL}, 1')
        a('s_lshl_b32 s61, s61, 2')
        a(f's_add_u32 s61, s61, {D_READY3}')
    a(f'v_mov_b32 v60, {D_READY2}')
    a('v_writelane_b32 v60, s61, 1')
    a('s_mov_b32 s61, 0')
    a('s_mov_b64 exec, 3')
    a('s_waitcnt lgkmcnt(0)')
    F = a.newlabel('RF')
    a(f's_branch {F}')
    a.label(L)
    spin_guard(a, 61, 'FAIL')
    a(f's_sleep {SLEEP2}')
    a.label(F)
    a('global_load_dword v61, v60, s[62:63] sc1')
    a('v_cmp_gt_u32 vcc, v62, v61')
    a(f's_cbranch_vccnz {L}')
    a('s_mov_b64 exec, -1')
    a.label(S)
    a('s_barrier')


def wait_progress(a, n):
    L, S = a.newlabel('PW'), a.newlabel('PS')
    wait_count(a, D_READY, 48)
    a(f's_cmp_lg_u32 s{sW}, 0')
    a(f's_cbranch_scc1 {S}')
    a(f's_lshl_b32 s60, s{sH}, 8')
    a(f's_add_u32 s60, s60, {FLAG_OFF}')
    a('v_mov_b32 v60, 0')
    a('s_mov_b32 s61, 0')
    a('s_mov_b64 exec, 1')
    a.label(L)
    spin_guard(a, 61, 'FAIL')
    a('s_sleep 8')
    a(f'buffer_load_dword v61, v60, {WS}, s60 offen sc1')
    a(f'v_cmp_gt_u32 vcc, {n}, v61')
    a(f's_cbranch_vccnz {L}')
    a('s_mov_b64 exec, -1')
    a.label(S)
    a('s_barrier')


def ln0_loads(a):
    a(f's_load_dwordx2 s[52:53], s[0:1], {KA_X}')
    a('s_mov_b32 s54, 0x200000')
    a('s_mov_b32 s55, 0x20000')
    a('v_lshlrev_b32 v30, 4, v0')
    a('s_lshl_b32 s56, s21, 2')
    a(f's_add_u32 s56, s56, s{sW}')
    a('s_lshl_b32 s57, s56, 10')
    a('s_waitcnt lgkmcnt(0)')
    for r in range(11):
        a(f's_add_u32 s58, s57, {r * 192 * 1024}')
        a(f'buffer_load_dwordx4 {vr(64 + 4 * r, 4)}, v30, s[52:55], s58 offen')


def ln0_compute(a):
    a(f's_mov_b32 s50, {f32bits(1 / 512):#x}')
    a(f's_mov_b32 s51, {f32bits(1e-5):#x}')
    for r in range(11):
        X, Y, t = 64 + 4 * r, 32, 40
        for k in range(4):
            a(f'v_lshlrev_b32 v{Y + 2 * k}, 16, v{X + k}')
            a(f'v_and_b32 v{Y + 2 * k + 1}, 0xffff0000, v{X + k}')
        a(f'v_add_f32 v{t}, v{Y}, v{Y + 1}')
        a(f'v_mul_f32 v{t + 1}, v{Y}, v{Y}')
        a(f'v_fmac_f32 v{t + 1}, v{Y + 1}, v{Y + 1}')
        for k in range(2, 8):
            a(f'v_add_f32 v{t}, v{t}, v{Y + k}')
            a(f'v_fmac_f32 v{t + 1}, v{Y + k}, v{Y + k}')
        for sh in (8, 4, 2, 1):
            for s_ in (t, t + 1):
                a(f'v_add_f32_dpp v{s_}, v{s_}, v{s_} row_ror:{sh} row_mask:0xf bank_mask:0xf')
        for op in ('v_permlane16_swap_b32', 'v_permlane32_swap_b32'):
            a(f'v_mov_b32 v{t + 2}, v{t}')
            a(f'v_mov_b32 v{t + 3}, v{t + 1}')
            a(f'{op} v{t}, v{t + 2}')
            a(f'{op} v{t + 1}, v{t + 3}')
            a(f'v_pk_add_f32 {vr(t, 2)}, {vr(t, 2)}, {vr(t + 2, 2)}')
        wb.finish_stats(a, t, t + 1, t + 2, 's50', 's51')
        for k in range(8):
            a(f'v_fma_f32 v{Y + k}, v{Y + k}, v{t + 2}, v{t + 3}')
        for k in range(4):
            a(f'v_cvt_pk_bf16_f32 v{X + k}, v{Y + 2 * k}, v{Y + 2 * k + 1}')
        a(f's_add_u32 s58, s57, {XN_OFF + r * 192 * 1024}')
        if r == 10:
            a('s_cmp_lt_u32 s56, 128')
            a('s_cselect_b32 s58, s58, s14')
        a(f'buffer_store_dwordx4 {vr(X, 4)}, v30, {WS}, s58 offen sc1')


def emit_init_work(a):
    a('v_lshlrev_b32 v1, 4, v0')
    a('s_lshl_b32 s21, s21, 2')
    a(f's_add_u32 s21, s21, s{sW}')
    a('s_lshl_b32 s22, s21, 10')
    a('v_mov_b64 v[8:9], 0')
    a('v_mov_b64 v[10:11], 0')
    a(f's_add_u32 s23, s22, {FLAG_OFF}')
    a('s_cmp_lt_u32 s21, 16')
    a('s_cselect_b32 s23, s23, s14')
    a(f'buffer_store_dwordx4 v[8:11], v1, {WS}, s23 offen sc1')
    signal(a, D_READY)
    a('v_mov_b64 v[4:5], -1')
    a('v_mov_b64 v[6:7], -1')
    a('s_lshl_b32 s23, s21, 13')
    a(f's_add_u32 s23, s23, {CPART_OFF}')
    a('s_cmp_lt_u32 s21, 136')
    a('s_cselect_b32 s23, s23, s14')
    fill4k(a, 8)
    a('s_mul_i32 s24, s21, 21846')
    a('s_lshr_b32 s24, s24, 16')
    a('s_mul_i32 s25, s24, 3')
    a('s_sub_u32 s25, s21, s25')
    a('s_lshl_b32 s24, s24, 19')
    a('s_lshl_b32 s25, s25, 13')
    a('s_add_u32 s23, s24, s25')
    a(f's_add_u32 s23, s23, {OX_OFF}')
    fill4k(a, 8)
    for base in (HALO_OFF, HALO_OFF + (4 << 20), XN_OFF + (2 << 20), X2_OFF):
        a(f's_add_u32 s23, s22, {base}')
        fill4k(a, 1)


def fill4k(a, n, sc=' sc1', d='v[4:7]', ad='v1', so=23):
    for k in range(n):
        if k and k % 4 == 0:
            a(f's_add_u32 s{so}, s{so}, 4096')
        a(f'buffer_store_dwordx4 {d}, {ad}, {WS}, s{so} offen offset:{1024 * (k % 4)}{sc}')


def arm_own_rings(a, w2=False):
    LS, LD = a.newlabel('IA'), a.newlabel('IB')
    a('v_lshlrev_b32 v62, 4, v0')
    a('v_mov_b64 v[64:65], -1')
    a('v_mov_b64 v[66:67], -1')
    a(f's_mul_i32 s64, s{sL}, {WBR_SIZE}')
    a(f's_add_u32 s64, s64, {WBR_OFF}')
    a(f's_lshl_b32 s65, s{sH}, 2')
    a(f's_add_u32 s65, s65, s{sW}')
    a(f's_cmp_eq_u32 s{sFAST}, 0')
    a(f's_cbranch_scc1 {LS}')
    for lab, sc in ((None, ''), (LS, ' sc1')):
        if lab:
            a(f's_branch {LD}')
            a.label(lab)
        for base, sh, n in ((0, 12, 4), (256 << 10, 12, 4) if w2 else (256 << 10, 13, 8), (768 << 10, 10, 1)):
            a(f's_lshl_b32 s66, s65, {sh}')
            a('s_add_u32 s66, s66, s64')
            a(f's_add_u32 s66, s66, {base}')
            fill4k(a, n, sc, 'v[64:67]', 'v62', 66)
    a.label(LD)


def exp_delay(a, us):
    if us:
        L = a.newlabel('DL')
        a('s_memrealtime s[60:61]')
        a('s_waitcnt lgkmcnt(0)')
        a.label(L)
        a('s_sleep 4')
        a('s_memrealtime s[62:63]')
        a('s_waitcnt lgkmcnt(0)')
        a('s_sub_u32 s62, s62, s60')
        a(f's_cmp_lt_u32 s62, {int(us * 100)}')
        a(f's_cbranch_scc1 {L}')


def tstamp(a, opt, reg):
    if opt.get('prof'):
        a(f's_memrealtime s[{reg}:{reg + 1}]')
        a('s_waitcnt lgkmcnt(0)')


def build(opt=None):
    global SLEEP2
    opt = opt or {}
    SLEEP2 = opt.get('sl2', 20)
    import importlib
    chain = importlib.import_module(opt.get('chain', 'chain'))
    wb_ = importlib.import_module(opt.get('wb', 'wb2'))
    proj = importlib.import_module(opt.get('proj', 'proj'))
    prof = opt.get('prof', False) == 1
    a = Asm()
    a.label('ENTRY')
    emit_prologue(a, opt)
    emit_rerole(a, opt)
    a.label('DISPATCH')
    tstamp(a, opt, 96)
    a(f's_mov_b32 s21, s{sROLE}')
    a('s_cmp_ge_u32 s21, 160')
    a('s_cbranch_scc1 ROLE_P')
    a('s_cmp_ge_u32 s21, 64')
    a('s_cbranch_scc1 ROLE_WB')
    a(f's_and_b32 s{sH}, s21, 31')
    a(f's_lshr_b32 s{sL}, s21, 5')

    def hook(u):
        if opt.get('sprof'):
            a('s_memrealtime s[80:81]')
            a('s_waitcnt lgkmcnt(0)')
            a(f'v_writelane_b32 v125, s80, {u}')
            if u == 17:
                a(f'v_writelane_b32 v125, s{chain.sOKF}, 20')
                a(f's_lshl_b32 s80, s{sROLE}, 2')
                a(f's_add_u32 s80, s80, s{sW}')
                a('s_lshl_b32 s80, s80, 8')
                a(f's_add_u32 s80, s80, {PROF_OFF + (10 << 20)}')
                a('v_lshlrev_b32 v115, 2, v0')
                a(f'buffer_store_dword v125, v115, {WS}, s80 offen')
        if u == 1:
            save_rank(a)
        if u == opt.get('cu', 12):
            census_load(a, 120)
        if u == opt.get('cu', 12) + 3:
            verify(a, opt, 120)
    if opt.get('c1n', 0):
        a(f's_cmp_eq_u32 s{sL}, 0')
        a('s_cbranch_scc1 C0GO')
        if opt.get('c1pf'):
            a(f's_load_dwordx2 s[24:25], s[0:1], {KA_WO}')
            a(f's_lshl_b32 s21, s{sH}, 17')
            a(f's_lshl_b32 s22, s{sW}, 15')
            a('s_add_u32 s21, s21, s22')
            a('v_lshl_add_u32 v2, v0, 7, s21')
            a('s_waitcnt lgkmcnt(0)')
            for k in range(4):
                a('global_load_dword v3, v2, s[24:25]')
                a('v_add_u32 v2, 0x2000, v2')
        save_rank(a)
        verify(a, opt)
        wait_progress(a, opt.get('c1n', 0))
        a.label('C0GO')
    if opt.get('dC'):
        a(f's_cmp_eq_u32 s{sL}, 0')
        a('s_cbranch_scc1 C0GO3')
        exp_delay(a, opt.get('dC'))
        a.label('C0GO3')
    chain.emit_chain_setup(a, hook, D_READY2, opt)
    for w in range(1, 4):
        a(f's_cmp_eq_u32 s{sW}, {w}')
        a(f's_cbranch_scc1 CW{w}')
    for w in range(4):
        a.label(f'CW{w}')
        chain.emit_chain_consts(a, w, opt.get('wb', 'wb2') == 'wb2')
        chain.emit_chain_first(a, w, 'FAIL', D_READY2)
        tstamp(a, opt, 98)
        if opt.get('prof') == 2:
            a('s_memtime s[86:87]')
            a('s_waitcnt lgkmcnt(0)')
        a(f's_cmp_eq_u32 s{sFAST}, 0')
        a(f's_cbranch_scc1 CS{w}')
        chain.emit_chain_loop(a, w, True, 'FAIL', 'FIN', prof, opt)
        a.label(f'CS{w}')
        chain.emit_chain_loop(a, w, False, 'FAIL', 'FIN', prof, opt)
    a.label('ROLE_WB')
    a('s_sub_u32 s21, s21, 64')
    a(f's_and_b32 s{sH}, s21, 15')
    a(f's_lshr_b32 s{sL}, s21, 4')
    a(f's_bitcmp0_b32 s{sL}, 0')
    a('s_cbranch_scc1 W0GO')
    a(f's_lshr_b32 s21, s{sL}, 1')
    a('s_lshl_b32 s21, s21, 4')
    a(f's_add_u32 s21, s21, s{sH}')
    ln0_loads(a)
    ln0_compute(a)
    save_rank(a)
    verify(a, opt)
    emit_init_work(a)
    signal(a, D_READY2)
    a.label('W0GO')

    ws_ = lambda k: tstamp(a, opt, 96) if opt.get('wbst') == k else None
    ws_(0)

    if opt.get('w1n', 5):
        a(f's_bitcmp0_b32 s{sL}, 0')
        a('s_cbranch_scc1 W0GO2')
        wait_progress(a, opt.get('w1n', 5))
        a.label('W0GO2')

    exp_delay(a, opt.get('dW'))

    def wb_hook(u):
        w2 = opt.get('wb', 'wb2') == 'wb2'
        if u == 6:
            save_rank(a)
            census_load(a, 16)
        if u == 9:
            verify(a, opt, 16)
            arm_own_rings(a, w2)
        if u == (14 if w2 else 18):
            signal(a, D_READY3, True, drain=False)
    wb_.emit_wb_setup(a, wb_hook, ws_, opt.get('late', 0))
    ws_(4)
    wait_two(a)
    ws_(5)
    tstamp(a, opt, 98)
    a(f's_cmp_eq_u32 s{sFAST}, 0')
    a('s_cbranch_scc1 WBS')
    wb_.emit_wb_loop(a, True, 'FAIL', 'FIN', prof, opt)
    a.label('WBS')
    wb_.emit_wb_loop(a, False, 'FAIL', 'FIN', prof, opt)
    a.label('ROLE_P')
    a('s_sub_u32 s21, s21, 160')
    a(f's_and_b32 s{sH}, s21, 31')
    a(f's_lshr_b32 s{sL}, s21, 5')
    proj.emit_proj_setup(a, lambda: None, opt.get('wb', 'wb2') == 'wb2')
    save_rank(a)
    verify(a, opt)
    wait_count(a, D_READY, 48)
    tstamp(a, opt, 98)
    for m in (1, 2):
        a(f's_cmp_eq_u32 s{sL}, {m}')
        a(f's_cbranch_scc1 PM{m}')
    for m in range(3):
        a.label(f'PM{m}')
        proj.emit_proj_loop(a, m, 'FAIL', 'FIN', opt)
    a.label('FAIL')
    a(f's_load_dwordx2 s[8:9], s[0:1], {KA_DBG}')
    a('s_mov_b64 exec, 1')
    a(f'v_mov_b32 v2, {D_FAIL}')
    a('v_mov_b32 v3, 1')
    a('s_waitcnt lgkmcnt(0)')
    a('global_atomic_add v2, v3, s[8:9]')
    a('s_waitcnt vmcnt(0)')
    a('s_endpgm')
    a.label('FIN')
    if opt.get('dbgt'):
        a('s_waitcnt vmcnt(0)')
        tstamp(a, opt, 100)
        a(f's_and_b32 s3, s{sROLE}, 15')
        a(f's_or_b32 s3, s3, s{sW}')
        a('s_cbranch_scc1 DONE')
        a(f's_load_dwordx2 s[8:9], s[0:1], {KA_DBG}')
        a('s_mov_b64 exec, 1')
        a('s_waitcnt lgkmcnt(0)')
        a('s_not_b32 s94, s94')
        a(f's_lshr_b32 s3, s{sROLE}, 5')
        a('s_min_u32 s3, s3, 2')
        a('s_lshl_b32 s3, s3, 2')
        for off, reg, byrole in ((32, 94, 0), (36, 100, 1), (48, 98, 1)):
            a(f'v_mov_b32 v2, {off}')
            if byrole:
                a('v_add_u32 v2, s3, v2')
            a(f'v_mov_b32 v3, s{reg}')
            a('global_atomic_umax v2, v3, s[8:9]')
        a('s_waitcnt vmcnt(0)')
        a('s_endpgm')
    if opt.get('prof'):
        a('s_waitcnt vmcnt(0)')
        tstamp(a, opt, 100)
        a('s_mov_b64 exec, 1')
        a(f's_lshl_b32 s93, s{sROLE}, 4')
        a(f's_add_u32 s93, s93, {PROF_OFF + (8 << 20)}')
        for k in range(4):
            a(f'v_mov_b32 v{4 + k}, s{94 + 2 * k}')
        a('v_mov_b32 v2, 0')
        a(f'buffer_store_dwordx4 v[4:7], v2, {WS}, s93 offen')
        if opt.get('prof') == 2:
            a('s_memtime s[84:85]')
            a('s_waitcnt lgkmcnt(0)')
            a('s_sub_u32 s84, s84, s86')
            a('v_mov_b32 v4, s84')
            a('s_add_u32 s93, s93, 4096')
            a(f'buffer_store_dword v4, v2, {WS}, s93 offen')
    a.label('DONE')
    a.label('CODE_END')
    body = a.finalize(entries=('ENTRY',))
    return body


HEADER = open('interleave_layers__memory_aug_recurrent_mem_tr__sliding_local_dilated__prompt.s.ref').read().split('; Override launch')[0] if False else ''


PROMOTE = ('v_add_f32', 'v_max_f32', 'v_mul_f32', 'v_mov_b32', 'v_exp_f32', 'v_rcp_f32', 'v_and_b32', 'v_xor_b32', 'v_min_u32', 'v_max_u32',
           'v_lshlrev_b32', 'v_lshrrev_b32', 'v_sub_f32', 'v_mov_b64', 'v_cmp_eq_u32', 'v_cmp_ne_u32', 'v_cmp_gt_u32', 'v_add_u32', 'v_rsq_f32', 'v_fmac_f32')


PROMOTE2 = PROMOTE + ('v_permlane16_swap_b32', 'v_permlane32_swap_b32', 'v_or_b32', 'v_cndmask_b32', 'v_mul_u32_u24', 'v_ashrrev_i32')


def align8(body, mode=1):
    import subprocess, re, os, tempfile
    lines = body.split('\n')
    idx = [i for i, l in enumerate(lines) if l and not l.endswith(':') and not l.startswith(';') and not l.startswith('.')]
    d = tempfile.mkdtemp()
    open(d + '/a.s', 'w').write('.amdgcn_target "amdgcn-amd-amdhsa--gfx950"\n.text\n' + body)
    subprocess.run(['clang', '-x', 'assembler', '-target', 'amdgcn-amd-amdhsa', '-mcpu=gfx950', '-c', d + '/a.s', '-o', d + '/a.o'], check=True)
    out = subprocess.run(['llvm-objdump', '-d', '--mcpu=gfx950', d + '/a.o'], capture_output=True, text=True).stdout
    sizes = [4 * len(m.group(1).split()) for m in re.finditer(r'// [0-9A-F]{12}: ((?:[0-9A-F]{8} ?)+)', out)]
    assert len(sizes) == len(idx), (len(sizes), len(idx))
    if mode == 1:
        addr, last = 0, None
        for k, i in enumerate(idx):
            sz = sizes[k]
            if sz == 8 and addr % 8 == 4 and last is not None:
                mn = lines[last].split()[0]
                lines[last] = lines[last].replace(mn, mn + '_e64', 1)
                addr += 4
            if sz == 8:
                last = None
            elif sz == 4 and lines[i].split()[0] in PROMOTE:
                last = i
            addr += sz
    else:
        wm = {3: 1.0, 4: 0.0, 5: 0.3}.get(mode, 0.5)
        M = {6: 8, 7: 16, 8: 4}.get(mode, 2)
        INF = 1e18
        cost, back = [0.0] + [INF] * (M - 1), []
        for k, i in enumerate(idx):
            sz, mn = sizes[k], lines[i].split()[0]
            new, bk = [INF] * M, [None] * M
            for p in range(M):
                if cost[p] >= INF:
                    continue
                opts = [(sz, False)]
                if sz == 4 and mn in PROMOTE2:
                    opts.append((8, True))
                for z, pr in opts:
                    c = cost[p] + (0.05 if pr else 0)
                    if z >= 8 and p == M - 1:
                        c += wm if 'mfma' in mn else 1.0
                    q = (p + z // 4) % M
                    if c < new[q]:
                        new[q], bk[q] = c, (p, pr)
            cost = new
            back.append(bk)
        p = min(range(M), key=lambda q: cost[q])
        for k in range(len(idx) - 1, -1, -1):
            p, pr = back[k][p]
            if pr:
                mn = lines[idx[k]].split()[0]
                lines[idx[k]] = lines[idx[k]].replace(mn, mn + '_e64', 1)
    return '\n'.join(lines)


def full_text(opt=None):
    body = build(opt)
    if (opt or {}).get('al8', 8):
        body = align8(body, (opt or {}).get('al8', 8))
    return f'''; @launch grid=(256,1,1) block=(256,1,1) lds=163840
.amdgcn_target "amdgcn-amd-amdhsa--gfx950"
.text
.globl {NAME}
.p2align 8
.type {NAME},@function
{NAME}:
{body}s_endpgm
.section .rodata,"a"
.p2align 6
.amdhsa_kernel {NAME}
  .amdhsa_next_free_vgpr 512
  .amdhsa_next_free_sgpr 102
  .amdhsa_accum_offset 256
  .amdhsa_group_segment_fixed_size 0
  .amdhsa_kernarg_size 104
  .amdhsa_user_sgpr_count 2
  .amdhsa_user_sgpr_kernarg_segment_ptr 1
  .amdhsa_system_sgpr_workgroup_id_x 1
  .amdhsa_float_denorm_mode_32 3
.end_amdhsa_kernel
'''


if __name__ == '__main__':
    opt = eval(sys.argv[2]) if len(sys.argv) > 2 else {}
    t = full_text(opt)
    open(sys.argv[1], 'w').write(t)
    print(len(t), 'bytes', t.count('\n'), 'lines')
```

```python
import re
from asmlib import *
from layout import *

L_MEM, L_KX, L_VX = 0, 8192, 16384
L_QM = 24576
L_KM = L_QM + 2304
L_VM = L_KM + 2304
L_ZERO = L_VM + 2048
L_WST = 32768
vL16, vW16, vXw, vQr, vKr, vIdx, vPst, vOx, v8, v9, vT0, vT1 = range(12)
A_, ACC, S_, X_ = 12, 44, 60, 124
sStep, sQKV, sQKVn, sOX, sOX2, sP, sPr, sM, sMr, sMw, sSpin, sFlag, sT, sT2, sPb, sMb, sQx, sQx2 = range(20, 38)
sC = 38
sMASK = 40
sEM, sEX = 56, 58
sSEL = 60
sOXp, sTag = 68, 69
sPROF = 70
SPIN_MAX = 1 << 22

S1A = [(t, 0) for t in range(4)] + [(0, 1), (1, 1)]
S1B = [(t, 5) for t in range(4)]
S1C = [(0, 4), (1, 4)]
S3 = [(t, 1) for t in range(4, 8)]


def resident_map():
    staged = S1A + S1B + S1C
    ops = [('qk', t, kt) for kt in range(8) for t in range(4) if (t, kt) not in staged]
    ops += [('v', t, kt) for kt in range(8) for t in range(2)]
    ops += [('o', t, z) for z in range(2) for t in range(8) if (t, z) not in S3]
    assert len(ops) == 48
    m = {}
    for i, o in enumerate(ops):
        m[o] = ('a', 8 * i) if i < 32 else ('v', 128 + 8 * (i - 32))
    for i, (t, kt) in enumerate(S1A):
        m[('qk', t, kt)] = ('lds', i, S_ + 8 * i)
    for i, (t, kt) in enumerate(S1B):
        m[('qk', t, kt)] = ('lds', 6 + i, S_ + 8 * i)
    for i, (t, kt) in enumerate(S1C):
        m[('qk', t, kt)] = ('lds', 10 + i, S_ + 32 + 8 * i)
    for i, (t, z) in enumerate(S3):
        m[('o', t, z)] = ('lds', 12 + i, [ACC, S_ + 32, S_ + 16, S_ + 24][i])
    return m


RM = resident_map()


def bop(key):
    e = RM[key]
    if e[0] == 'a':
        return ar(e[1], 8)
    if e[0] == 'v':
        return vr(e[1], 8)
    return vr(e[2], 8)


def stage_reads(key):
    e = RM[key]
    return [f'ds_read_b128 {vr(e[2] + 4 * hh, 4)}, v{vW16} offset:{e[1] * 2048 + hh * 1024}' for hh in range(2)]


def zfill(reg):
    return f'ds_read_b128 {vr(reg, 4)}, v{vL16} offset:{L_ZERO}'


XW = 0
vCNT, vFLG = 124, 7


sOKF = 78


def count_load(a, d_ready):
    a(f's_load_dwordx2 s[70:71], s[0:1], {KA_DBG}')
    a(f'v_mov_b32 v114, {d_ready}')
    a('s_waitcnt lgkmcnt(0)')
    a('s_mov_b64 exec, 1')
    a(f'global_load_dword v{vCNT}, v114, s[70:71] sc1')
    a('s_mov_b64 exec, -1')


def flag_load(a, dst):
    a(f'v_readlane_b32 s79, v{vCNT}, 0')
    a('v_mbcnt_lo_u32_b32 v113, -1, 0')
    a('v_lshlrev_b32 v112, 4, v113')
    a(f's_lshl_b32 s3, s{sL}, 5')
    a(f's_add_u32 s3, s3, s{sH}')
    a('s_lshl_b32 s76, s3, 8')
    a(f's_add_u32 s76, s76, {FLAG_OFF}')
    a('s_mov_b64 exec, 0xfff')
    a(f'buffer_load_dword v{dst}, v112, {WS}, s76 offen sc1')
    a('s_mov_b64 exec, -1')


def check_eval(a, src, need):
    a('s_mov_b64 exec, 0xfff')
    a(f'v_cmp_gt_u32 vcc, {need}, v{src}')
    a('s_mov_b64 exec, -1')
    a('s_cmp_eq_u64 vcc, 0')
    a('s_cselect_b32 s76, s79, 0')
    a('s_cmp_ge_u32 s76, 48')


def first_loads(a):
    a(f's_load_dwordx2 s[72:73], s[0:1], {KA_MEM0}')
    a('s_mov_b32 s74, 8192')
    a('s_mov_b32 s75, 0x20000')
    a('v_mbcnt_lo_u32_b32 v113, -1, 0')
    a('v_mbcnt_hi_u32_b32 v113, -1, v113')
    a('v_lshlrev_b32 v112, 4, v113')
    a(f's_lshl_b32 s3, s{sL}, 5')
    a(f's_add_u32 s3, s3, s{sH}')
    a('s_lshl_b32 s3, s3, 6')
    a(f's_mul_i32 s77, s3, {QKV_BLK}')
    a(f's_lshl_b32 s3, s{sW}, 12')
    a(f's_add_u32 m0, s3, {L_KX}')
    a('s_add_u32 s3, s3, s77')
    for p in range(4):
        a(f'buffer_load_dwordx4 v112, {WS}, s3 offen offset:{1024 * p} sc1 lds')
    a('v_and_b32 v114, 1, v113')
    a('v_bfe_u32 v115, v113, 2, 2')
    a('v_lshl_add_u32 v114, v115, 1, v114')
    a('v_lshrrev_b32 v115, 4, v113')
    a('v_bfe_u32 v113, v113, 1, 1')
    a('v_lshlrev_b32 v114, 10, v114')
    a('v_lshl_add_u32 v114, v115, 5, v114')
    a('v_lshl_add_u32 v114, v113, 4, v114')
    a(f's_lshl_b32 s3, s{sW}, 11')
    a('s_add_u32 s3, s3, s77')
    a('s_add_u32 s3, s3, 16384')
    a(f'buffer_load_dwordx4 v[116:119], v112, {WS}, s3 offen sc1')
    a(f'buffer_load_dwordx4 v[120:123], v112, {WS}, s3 offen offset:1024 sc1')
    a(f's_lshl_b32 s3, s{sL}, 19')
    a(f's_lshl_b32 s76, s{sH}, 13')
    a('s_add_u32 s3, s3, s76')
    a(f's_and_b32 s76, s{sW}, 1')
    a('s_lshl_b32 s76, s76, 18')
    a('s_add_u32 s3, s3, s76')
    a(f's_add_u32 s3, s3, {CPART_OFF}')
    a(f's_lshl_b32 s76, s{sL}, 15')
    a(f's_lshl_b32 s77, s{sH}, 10')
    a('s_add_u32 s76, s76, s77')
    a(f's_add_u32 s76, s76, {CMEM_OFF}')
    a(f's_cmp_lt_u32 s{sW}, 2')
    a('s_cselect_b32 s3, s3, s76')
    a('s_cselect_b32 s76, 3, 0')
    a('v_lshlrev_b32 v115, s76, v112')
    a(f'buffer_load_dword v115, v115, {WS}, s3 offen sc1')
    a('s_waitcnt lgkmcnt(0)')
    for k in range(2):
        a(f's_lshl_b32 s3, s{sW}, 11')
        a(f's_add_u32 m0, s3, {L_MEM + 1024 * k}')
        a(f's_lshl_b32 s3, s{sW}, 8')
        a(f's_add_u32 s3, s3, {128 * k}')
        a('buffer_load_dwordx4 v114, s[72:75], s3 offen lds')


def emit_chain_setup(a, hook=None, d_ready=None, opt=None):
    lane, vn, vgb, vAq, vAv, vAo = 0, 1, 2, 3, 4, 5
    a(f'v_and_b32 v{vn}, 15, v{lane}')
    a(f'v_lshrrev_b32 v{vgb}, 4, v{lane}')
    a(f'v_lshrrev_b32 v6, 1, v{vgb}')
    a(f'v_and_b32 v7, 1, v{vgb}')
    a(f'v_lshlrev_b32 v8, 17, v6')
    a(f'v_lshl_add_u32 v8, v7, 15, v8')
    a(f'v_lshl_add_u32 v{vAq}, v{vn}, 3, v8')
    a(f'v_and_b32 v9, 14, v{vn}')
    a(f'v_lshl_add_u32 v{vAv}, v9, 2, v8')
    a(f'v_and_b32 v9, 1, v{vn}')
    a(f'v_lshl_add_u32 v{vAv}, v9, 18, v{vAv}')
    a(f'v_lshlrev_b32 v8, 15, v7')
    a(f'v_lshl_add_u32 v8, v6, 13, v8')
    a(f'v_lshl_add_u32 v{vAo}, v{vn}, 3, v8')
    a(f's_lshl_b32 s3, s{sW}, 15')
    a(f's_add_u32 s3, s3, {L_WST}')
    a(f'v_lshl_add_u32 v6, v{lane}, 4, s3')
    vSt = 6
    a(f's_load_dwordx4 s[40:43], s[0:1], {KA_WQ}')
    a(f's_load_dwordx4 s[44:47], s[0:1], {KA_WV}')
    a('s_waitcnt lgkmcnt(0)')
    a(f's_cmp_lt_u32 s{sW}, 2')
    a('s_cselect_b32 s4, s40, s42')
    a('s_cselect_b32 s5, s41, s43')
    a('s_mov_b32 s6, 0x400000')
    a('s_mov_b32 s7, 0x20000')
    a('s_mov_b32 s8, s44')
    a('s_mov_b32 s9, s45')
    a('s_mov_b32 s10, 0x400000')
    a('s_mov_b32 s11, 0x20000')
    a('s_mov_b32 s48, s46')
    a('s_mov_b32 s49, s47')
    a('s_mov_b32 s50, 0x400000')
    a('s_mov_b32 s51, 0x20000')
    a(f's_lshl_b32 s20, s{sH}, 8')
    a(f's_and_b32 s21, s{sW}, 1')
    a('s_lshl_b32 s21, s21, 7')
    a('s_add_u32 s21, s21, s20')
    a(f's_lshl_b32 s22, s{sW}, 6')
    a('s_add_u32 s22, s22, s20')
    a(f's_lshl_b32 s23, s{sH}, 17')
    a(f's_lshl_b32 s24, s{sW}, 8')
    a('s_add_u32 s23, s23, s24')
    a(f's_and_b32 s24, s{sW}, {XW}')
    a('s_lshl_b32 s24, s24, 7')
    a('s_add_u32 s23, s23, s24')
    a('s_xor_b32 s29, s23, 128')
    a('s_mov_b32 s26, 0x05040100')
    a('s_mov_b32 s27, 0x07060302')
    a('s_mov_b32 s30, 0x55555555')
    a('s_mov_b32 s31, 0x55555555')
    SEL = (26, 27)
    rowqk = lambda jb: 32 * (jb >> 3) + 8 * ((jb >> 1) & 1) + 2 * ((jb >> 2) & 1) + (jb & 1)
    rowo = lambda jb: 16 * (jb >> 3) + 2 * (jb & 3) + ((jb >> 2) & 1)
    BUF = [16, 48, 80]
    TMP = 8
    units = []

    def put(key, j0, n, srcs):
        out = []
        e = RM[key]
        for k, (hi, lo, sel) in enumerate(srcs):
            if e[0] == 'v':
                out.append(f'v_perm_b32 v{e[1] + j0 + k}, v{hi}, v{lo}, s{SEL[sel]}')
            else:
                out.append(f'v_perm_b32 v{TMP + k}, v{hi}, v{lo}, s{SEL[sel]}')
        if e[0] == 'a':
            out += [f'v_accvgpr_write_b32 a{e[1] + j0 + k}, v{TMP + k}' for k in range(n)]
        elif e[0] == 'lds':
            for hh in range(n // 4):
                out.append(f'ds_write_b128 v{vSt}, {vr(TMP + 4 * hh, 4)} offset:{e[1] * 2048 + (j0 // 4 + hh) * 1024}')
        return out

    def rot(kt, base):
        return [f's_lshl_b32 s28, s{sW}, 1', f's_add_u32 s28, s28, {kt}', 's_and_b32 s28, s28, 7', 's_lshl_b32 s28, s28, 19', f's_add_u32 s28, s28, s{base}']

    for kt in range(8):
        def ld(B, kt=kt):
            o = rot(kt, 21)
            for jb in range(16):
                o.append(f's_add_u32 s25, s28, {rowqk(jb) * 8192}')
                o.append(f'buffer_load_dwordx2 {vr(B + 2 * jb, 2)}, v{vAq}, s[4:7], s25 offen')
            return o

        def pr(B, kt=kt):
            o = []
            for t in range(4):
                o += put(('qk', t, kt), 0, 8, [(B + 2 * (2 * jj + 1) + (t >> 1), B + 2 * (2 * jj) + (t >> 1), t & 1) for jj in range(8)])
            return o
        units.append((ld, pr))
    for kp in range(4):
        def ld(B, kp=kp):
            o = []
            for kk in range(2):
                for jb in range(8):
                    o.append(f's_add_u32 s25, s22, {(64 * (2 * kp + kk) + rowqk(jb)) * 8192}')
                    o.append(f'buffer_load_dwordx2 {vr(B + 16 * kk + 2 * jb, 2)}, v{vAv}, s[8:11], s25 offen')
            return o

        def pr(B, kp=kp):
            o = []
            for kk in range(2):
                R = B + 16 * kk
                o.append('s_mov_b64 vcc, s[30:31]')
                o += [f'v_cndmask_b32_dpp v{112 + j}, v{R + 2 * j + 1}, v{R + 2 * j}, vcc quad_perm:[0,0,2,2] row_mask:0xf bank_mask:0xf' for j in range(8)]
                o.append('s_not_b64 vcc, vcc')
                o += [f'v_cndmask_b32_dpp v{R + 2 * j + 1}, v{R + 2 * j}, v{R + 2 * j + 1}, vcc quad_perm:[1,1,3,3] row_mask:0xf bank_mask:0xf' for j in range(8)]
                row = lambda jb: 112 + jb if jb < 8 else R + 2 * (jb - 8) + 1
                for t in range(2):
                    o += put(('v', t, 2 * kp + kk), 0, 8, [(row(2 * jj + 1), row(2 * jj), t) for jj in range(8)])
            return o
        units.append((ld, pr))
    for z in range(2):
        for hb in range(2):
            def ld(B, z=z, hb=hb):
                o = []
                for jb in range(16):
                    o.append(f's_add_u32 s25, s{23 if hb == 0 else 29}, {(64 * z + rowo(jb)) * 1024}')
                    o.append(f'buffer_load_dwordx2 {vr(B + 2 * jb, 2)}, v{vAo}, s[48:51], s25 offen')
                return o

            def pr(B, z=z, hb=hb):
                o = []
                for t in range(4):
                    o += put(('o', 4 * hb + t, z), 0, 8, [(B + 2 * (2 * jj + 1) + (t >> 1), B + 2 * (2 * jj) + (t >> 1), t & 1) for jj in range(8)])
                return o
            units.append((ld, pr))
    opt = opt or {}
    if opt.get('wfl'):
        units = [((lambda B, f=ld: [x + ' ' + opt['wfl'] if x.startswith('buffer') else x for x in f(B)]), pr) for ld, pr in units]
    if opt.get('wofirst', 0):
        units = units[12:] + units[8:12] + units[:8]
    D = opt.get('depth', 2)
    n = len(units)
    for u in range(n + 2):
        if hook:
            if u == n - 6 and not opt.get('one', 1):
                count_load(a, d_ready)
            if u == n - 3:
                flag_load(a, vFLG)
            if u == n:
                NL = a.newlabel('CNL')
                check_eval(a, vFLG, 2)
                a(f's_cselect_b32 s{sOKF}, 1, 0')
                a(f's_cbranch_scc0 {NL}')
                first_loads(a)
                a.label(NL)
        if u < n:
            for l in units[u][0](BUF[u % 3]):
                if opt.get('cap') and l.startswith('buffer'):
                    a(f's_waitcnt vmcnt({opt["cap"] - 1})')
                a(l)
        if hook:
            hook(u)
        if D <= u < n + D:
            for l in units[u - D][1](BUF[(u - D) % 3]):
                a(l)
    a('v_mov_b64 v[12:13], 0')
    a('v_mov_b64 v[14:15], 0')
    a(f'v_lshlrev_b32 v8, 4, v{lane}')
    a(f'ds_write_b128 v8, v[12:15] offset:{L_ZERO}')
    a(f'v_mov_b32 v125, v{vFLG}')
    a('s_waitcnt lgkmcnt(0)')


def emit_chain_consts(a, w, par=0):
    i, g, t1, t2, vtq, vhf = 20, 21, 22, 23, 24, 25
    a(f'v_and_b32 v{i}, 15, v0')
    a(f'v_lshrrev_b32 v{g}, 4, v0')
    a(f'v_lshrrev_b32 v{t1}, 2, v{i}')
    a(f'v_and_b32 v{t2}, 1, v{i}')
    a(f'v_lshl_add_u32 v{vtq}, v{t1}, 1, v{t2}')
    a(f'v_bfe_u32 v{vhf}, v{i}, 1, 1')
    a(f'v_mov_b32 v26, v0')
    a(f'v_lshlrev_b32 v{vL16}, 4, v26')
    a(f'v_add_u32 v{vW16}, {L_WST + w * 32768}, v{vL16}')
    a('s_movk_i32 s3, 144')
    if w < 2:
        a(f'v_lshrrev_b32 v27, 1, v{i}')
        a(f'v_mul_lo_u32 v27, v27, s3')
        a(f'v_lshl_add_u32 v27, v{g}, 5, v27')
        a(f'v_lshl_add_u32 v27, v{t2}, 3, v27')
        a(f'v_add_u32 v{vXw}, {L_QM + 8 * w * 144}, v27')
    else:
        a(f'v_lshlrev_b32 v27, 1, v{t1}')
        a(f'v_mul_lo_u32 v27, v27, s3')
        a(f'v_lshl_add_u32 v27, v{g}, 5, v27')
        a(f'v_and_b32 v28, 3, v{i}')
        a(f'v_lshl_add_u32 v27, v28, 2, v27')
        a(f'v_add_u32 v{vXw}, {L_KM + 8 * (w - 2) * 144}, v27')
    a(f'v_mul_lo_u32 v27, v{g}, s3')
    a(f'v_lshl_add_u32 v27, v{vtq}, 4, v27')
    a(f'v_add_u32 v{vQr}, {L_QM}, v27')
    a(f'v_lshl_add_u32 v27, v{g}, 1, v{vhf}')
    a(f'v_mul_lo_u32 v27, v27, s3')
    a(f'v_lshl_add_u32 v27, v{vtq}, 4, v27')
    a(f'v_add_u32 v{vKr}, {L_KM}, v27')
    a(f'v_mul_u32_u24 v27, 0xaaaa, v{vhf}')
    a(f'v_add_u32 v{vIdx}, 0x4444, v27')
    a(f'v_lshlrev_b32 v27, 13, v{t1}')
    a(f'v_lshl_add_u32 v27, v{g}, 11, v27')
    a(f'v_and_b32 v28, 3, v{i}')
    a(f'v_lshl_add_u32 v27, v28, 4, v27')
    a(f's_lshl_b32 s3, s{sH}, 6')
    a(f's_add_u32 s3, s3, {8 * w * 8192}')
    a(f'v_add_u32 v{vPst}, s3, v27')
    for k in range(4):
        smov64(a, sSEL + 2 * k, mask64(lambda i, g: (i >> 1) == k))
    a(f'v_lshlrev_b32 v28, 10, v{vtq}')
    a(f'v_lshl_add_u32 v28, v{g}, 5, v28')
    a(f'v_lshl_add_u32 v28, v{vhf}, 4, v28')
    for T in range(2):
        for rho in range(4):
            m = mask64(lambda i, g: hf(i) == 1 and 16 * (g >> 1) + 8 * T + 4 * (g & 1) + rho > (16 * (w & 1) + 2 * tq(i) + (w >> 1) if par else 8 * w + tq(i)))
            smov64(a, sMASK + 2 * (4 * T + rho), m)
    smov64(a, sEM, 0x3333333333333333)
    smov64(a, sEX, 0xcccccccccccccccc)
    a(f's_mov_b32 s{sC}, {f32bits(SCALE_A):#x}')
    a(f's_mov_b32 s{sC + 1}, {f32bits(SCALE_A):#x}')
    a(f's_mov_b32 s{sStep}, 0')
    a(f's_lshl_b32 s3, s{sL}, 5')
    a(f's_add_u32 s3, s3, s{sH}')
    a('s_lshl_b32 s3, s3, 6')
    a(f's_mul_i32 s{sQKV}, s3, {QKV_BLK}')
    a(f's_lshl_b32 s{sOX}, s3, 13')
    a(f's_add_u32 s{sOX}, s{sOX}, {OX_OFF + 2048 * w}')
    a(f's_lshl_b32 s{sPb}, s{sL}, 19')
    a(f's_add_u32 s{sPb}, s{sPb}, {CPART_OFF}')
    a(f's_lshl_b32 s{sMb}, s{sL}, 15')
    a(f's_add_u32 s{sMb}, s{sMb}, {CMEM_OFF}')
    a(f's_lshl_b32 s3, s{sL}, 5')
    a(f's_add_u32 s3, s3, s{sH}')
    a('s_lshl_b32 s3, s3, 8')
    a(f's_add_u32 s{sFlag}, s3, {FLAG_OFF}')


def flag_wait(a, need_sreg, fail, preloaded=False):
    L, Lok = a.newlabel('FW'), a.newlabel('FOK')
    a('s_mov_b64 exec, 0xfff')
    if preloaded:
        a(f'v_cmp_gt_u32 vcc, s{need_sreg}, v{v9}')
        a(f's_cbranch_vccz {Lok}')
    a.label(L)
    spin_guard(a, sSpin, fail)
    a(f'buffer_load_dword v{v9}, v{vL16}, {WS}, s{sFlag} offen sc1')
    a(f'v_cmp_gt_u32 vcc, s{need_sreg}, v{v9}')
    a(f's_cbranch_vccnz {L}')
    a.label(Lok)
    a('s_mov_b64 exec, -1')


def prefetch_next(a):
    for key in S1A:
        for l in stage_reads(('qk',) + key):
            a(l)
    for t in range(4):
        a(f'v_mov_b64 {vr(ACC + 4 * t, 2)}, 0')
        a(f'v_mov_b64 {vr(ACC + 4 * t + 2, 2)}, 0')


def emit_chain_first(a, w, fail, d_ready, need2=True):
    RE, OK = a.newlabel('CF'), a.newlabel('CK')
    a(f's_mov_b32 s{sSpin}, 0')
    a(f's_cmp_eq_u32 s{sOKF}, 1')
    a(f's_cbranch_scc1 {OK}')
    a.label(RE)
    spin_guard(a, sSpin, fail)
    RF = a.newlabel('CG')
    a('s_cmp_ge_u32 s79, 48')
    a(f's_cbranch_scc1 {RF}')
    count_load(a, d_ready)
    a.label(RF)
    flag_load(a, 125)
    check_eval(a, 125, 1)
    a(f's_cbranch_scc0 {RE}')
    first_loads(a)
    if w == 0 and need2:
        a(f's_mov_b32 s{sT}, 2')
        flag_wait(a, sT, fail)
        a(f'v_mov_b32 v125, v{v9}')
    a.label(OK)
    a(f'v_mov_b32 v{v9}, v125')
    a('s_waitcnt vmcnt(0)')
    for k in range(2):
        a(f'ds_read_b128 {vr(A_ + 4 * k, 4)}, v{vL16} offset:{L_MEM + 1024 * (2 * w + k)}')
    prefetch_next(a)
    a(f's_mov_b32 s{sOXp}, {WS_BYTES}')
    a('s_waitcnt lgkmcnt(0)')


def emit_chain_loop(a0, w, fast, fail, done, prof=False, opt=None):
    opt = opt or {}
    drop = opt.get('drop', [])

    class Filt:
        def __call__(self, text):
            for line in text.split('\n'):
                if not any(re.search(p, line) for p in drop):
                    a0(line)

        def __getattr__(self, n):
            return getattr(a0, n)
    a = Filt()
    sc = '' if fast else ' sc1'
    LOOP = a.newlabel('CL')
    LAST = a.newlabel('CLAST')
    npr = [0]

    fine = opt.get('fine')

    def fstamp(name):
        if prof and fine and name in fine:
            a(f's_memtime {sr(sPROF + 16 + 2 * fine.index(name), 2)}')

    def stamp():
        if prof:
            a(f'{"s_memrealtime" if opt.get("rt") else "s_memtime"} {sr(sPROF + 2 * npr[0], 2)}')
            npr[0] += 1

    def smf(d, A, B):
        return f'v_smfmac_f32_16x16x64_bf16 {vr(d, 4)}, {vr(A, 4)}, {B}, v{vIdx}'

    Q_, VACC = S_ + 32, S_ + 48
    QA, QB, KM_ = S_ + 56, S_ + 40, S_ + 32
    QE = [QA, QA + 4, QB, QB + 4]
    T0, T1, TM = ACC, ACC + 4, X_
    DD = [S_ + 48 + 2 * U for U in range(8)]

    def ox_store(u, s0):
        return f'buffer_store_dwordx4 {vr(DD[2 * u], 4)}, v{vL16}, {WS}, s{s0} offen offset:{1024 * u} sc1'

    def ox_pack():
        o = [f's_mov_b64 vcc, {sr(sEX, 2)}']
        o += [f'v_cndmask_b32_dpp v{DD[0] + k}, v{DD[4] + k}, v{DD[0] + k}, vcc quad_perm:[2,3,2,3] row_mask:0xf bank_mask:0xf' for k in range(8)]
        o += [f'v_min_u32 v{DD[2 * u]}, -2, v{DD[2 * u]}' for u in range(2)]
        return o

    def memrd(k):
        return f'ds_read_b128 {vr(A_ + 4 * k, 4)}, v{vL16} offset:{L_MEM + 1024 * ((2 * w + k) & 7)}'
    sal = [f's_add_u32 s{sQx}, s{sQKV}, {16384 + 2048 * w}',
           f's_add_u32 s{sQKVn}, s{sQKV}, {0 if opt.get("samekv") else QKV_BLK}', f's_add_u32 s{sQx2}, s{sQKVn}, {8192 * max(w - 1, 0)}']
    for l in sal:
        a(l)
    a(f'v_lshlrev_b32 v{vOx}, 3, v{vL16}')
    a(f's_branch {LOOP}')
    i_loop = len(a0.items)
    a.label(LOOP)
    mreg = opt.get('mreg', 3)
    if not mreg:
        a('s_barrier')
    stamp()
    order = [(t, kt) for kt in range(6) for t in range(4)] + [(t, kt) for t in range(4) for kt in (6, 7)]
    mem = [[] for _ in range(32)]
    alu = [[] for _ in range(32)]
    qearly = opt.get('qearly', 0)
    qld = [f'buffer_load_dwordx4 {vr(QA + 4 * p, 4)}, v{vL16}, {WS}, s{sQx} offen offset:{1024 * p} sc1' for p in range(2)]
    vm = ['\n'.join(qld)] if qearly else []
    kpv = opt.get('kpv', 0)
    kreal = 0 if kpv else opt.get('kreal', 1)
    vlate = opt.get('vlate', 0)
    if w > (1 if kreal else 0) and opt.get('warm', 1):
        vm.append(f'buffer_load_dword v{v8}, v{vOx}, {WS}, s{sQx2} offen sc1')
    flag_ld = f's_mov_b64 exec, 0xfff\nbuffer_load_dword v{v9}, v{vL16}, {WS}, s{sFlag} offen sc1\ns_mov_b64 exec, -1'
    fresh = opt.get('fresh', 0)
    fresh2 = opt.get('fresh2', 0)
    if fresh2:
        vm = [flag_ld] + vm
    if kpv and w == 0:
        vm = [flag_ld] + vm
    if fresh:
        vm = [flag_ld + ''.join('\n' + x for x in vm)]
    vm += [ox_store(0, sOXp), ox_store(1, sOXp)]
    for k, l in enumerate(vm):
        mem[4 * k + w].append(l)
    rd = [memrd(k) for k in range(2, 8)]
    rd += [l for key in S1C + S1B for l in stage_reads(('qk',) + key)]
    if mreg:
        kb = mreg - 1
        mem[kb] += ['s_waitcnt lgkmcnt(0)', 's_barrier', rd[0], rd[1]]
        mem[kb + 1] += [rd[2], rd[3]]
        mem[kb + 2] += [rd[4], rd[5]]
        for k, l in enumerate(rd[6:]):
            mem[max(6 + k, kb + 3 + k // 2 if k < 4 else 0)].append(l)
        for k in range(32):
            far = [l for l in mem[k] if l.startswith('buffer')]
            if far and k <= kb:
                mem[k] = [l for l in mem[k] if not l.startswith('buffer')]
                mem[kb + 1 + k] += far
    else:
        for k, l in enumerate(rd):
            mem[k].append(l)
    for j in range(8):
        mem[21 + j].append(f'ds_read_b128 {vr(S_ + 4 * j, 4)}, v{vL16} offset:{L_KX + j * 1024}')
    qmv = [f'v_mov_b32_dpp v{QB + k}, v{QA + k} quad_perm:[0,1,0,1] row_mask:0xf bank_mask:0xf' for k in range(8)]
    if qearly:
        for k in range(4):
            alu[17 + k].append(f'v_mov_b64 {vr(VACC + 2 * k, 2)}, 0')
        alu[21].append(f'v_mov_b32 v{vT1}, {NEG:#x}')
        for k in range(5):
            alu[22 + k].append(qmv[k])
        qrest = qmv[5:]
    else:
        for k in range(4):
            alu[13 + k].append(f'v_mov_b64 {vr(VACC + 2 * k, 2)}, 0')
        for k in range(8):
            alu[18 + k].append(qmv[k])
        alu[26].append(f'v_mov_b32 v{vT1}, {NEG:#x}')
        qrest = []
    for k, (tt, x) in zip((27, 28, 29, 30, 31, 31), ((0, 0), (0, 1), (1, 0), (1, 1), (2, 0), (2, 1))):
        alu[k].append(f'v_add_f32 v{ACC + 4 * tt + x}, v{ACC + 4 * tt + x}, v{ACC + 4 * tt + 2 + x}')
    FSL, FRET = a.newlabel('FSL'), a.newlabel('FRET')
    fhop = opt.get('fhop', 1) and not fresh2
    if w == 0 and not fhop and not fresh2:
        mem[6] += [f's_add_u32 s{sT}, s{sStep}, 2', f's_min_u32 s{sT}, s{sT}, {NSEG}']
        alu[7] += ['s_mov_b64 exec, 0xfff', f'v_cmp_gt_u32 vcc, s{sT}, v{v9}', 's_mov_b64 exec, -1']
        mem[10] += [f's_cbranch_vccnz {FSL}', FRET + ':']
    for k, (t, kt) in enumerate(order):
        a(smf(ACC + 4 * t, A_ + 4 * kt, bop(('qk', t, kt))))
        for l in mem[k] + alu[k]:
            a(l)
    stamp()
    for x in range(2):
        a(f'v_cvt_pk_bf16_f32 v{X_ + 2 * x}, v{ACC + x}, v{ACC + 4 + x}')
    masks = [f'v_cndmask_b32 v{T0 + k}, 0, v{vT1}, {sr(sMASK + 2 * k, 2)}' for k in range(8)]
    pend = qrest + masks
    a(pend.pop(0))
    a(pend.pop(0))
    for x in range(2):
        a(f'v_add_f32 v{ACC + 12 + x}, v{ACC + 12 + x}, v{ACC + 14 + x}')
    for x in range(2):
        a(f'v_cvt_pk_bf16_f32 v{X_ + 2 * x + 1}, v{ACC + 8 + x}, v{ACC + 12 + x}')
    for x in range(2):
        if w < 2:
            a(f'ds_write_b64 v{vXw}, {vr(X_ + 2 * x, 2)} offset:{16 * x}')
        else:
            a(f'ds_write2_b32 v{vXw}, v{X_ + 2 * x}, v{X_ + 2 * x + 1} offset0:{4 * x} offset1:{36 + 4 * x}')
    vlist = [(t, kt) for kt in range(8) for t in range(2)]
    vi = [0]

    def vmf(n, fillers=()):
        fillers = list(fillers)
        for _ in range(n):
            t, kt = vlist[vi[0]]
            vi[0] += 1
            a(smf(VACC + 4 * t, A_ + 4 * ((kt - 2 * w) & 7), bop(('v', t, kt))))
            if fillers:
                a(fillers.pop(0))
        for l in fillers:
            a(l)
    PX, PM = ACC + 12, ACC + 8
    n1, n2 = opt.get('nv1', 5), opt.get('nv2', 5)
    todo = pend + [f'v_mov_b32 v{PM + 1}, 0', f'v_mov_b32 v{PM + 2}, 0']
    f1 = todo[:n1]
    f1[0] = f's_mov_b32 m0, {L_KX + 2048 * w}\ns_add_u32 s{sT}, s{sQKVn}, {2048 * w}\n' + f1[0]
    vmf(n1, f1)
    todo = todo[n1:]
    a('s_waitcnt lgkmcnt(0)')
    a('s_barrier')
    stamp()
    a(f's_mov_b64 exec, {sr(sEM, 2)}')
    for E in range(4):
        a(f'ds_read_b128 {vr(QE[E], 4)}, v{vQr} offset:{576 * E}')
    a('s_mov_b64 exec, -1')
    for z in range(2):
        a(f'ds_read_b128 {vr(KM_ + 4 * z, 4)}, v{vKr} offset:{1152 * z}')
    fstamp('rd')
    kk = [f'buffer_load_dwordx4 v{vL16}, {WS}, s{sT} offen offset:{1024 * p} sc1 lds' if kreal else '' for p in range(2)]
    kkf = kk
    klate = opt.get('klate', 'sm')
    if fresh or klate is not None:
        kk = ['', '']
    todo += [f'v_mov_b64 {vr(TM, 2)}, 0', f'v_mov_b64 {vr(TM + 2, 2)}, 0']
    fl = [kk[0] if k == w else '' for k in range(n2)]
    for k, l in enumerate(todo):
        fl[k % n2] += '\n' + l
    vmf(n2, fl)
    fstamp('v2')
    VX_ = S_
    vxr = [f'ds_read_b128 {vr(VX_ + 4 * U, 4)}, v{vL16} offset:{L_VX + 1024 * U}' for U in range(8)]

    def sc_(E, T):
        return f'v_mfma_f32_16x16x32_bf16 {vr(T0 + 4 * T, 4)}, {vr(S_ + 16 * T + 4 * E, 4)}, {vr(QE[E], 4)}, {vr(T0 + 4 * T, 4)}'
    seq = [sc_(0, 0), sc_(0, 1), sc_(1, 0), sc_(1, 1), smf(TM, KM_, vr(QE[0], 8)), sc_(2, 0), sc_(2, 1),
           smf(TM, KM_ + 4, vr(QE[2], 8)), sc_(3, 0), sc_(3, 1)]
    after = {1: [vxr[0]], 2: [vxr[4]], 3: [vxr[1]], 4: [vxr[5]], 6: [vxr[2]], 7: [vxr[6]], 9: [vxr[3], vxr[7]]}
    for k, l in enumerate(seq):
        a(l)
        if k == w:
            a(kk[1])
        if w == 0 and k == 5 and not fresh and not fresh2 and not kpv and opt.get('fpos', -5) < 0:
            a(flag_ld)
        if fresh:
            kp = opt.get('kp', 5)
            if k == kp - 3:
                a(f's_add_u32 s{sT2}, s{sStep}, 2')
                a(f's_min_u32 s{sT2}, s{sT2}, {NSEG}')
                a('s_mov_b64 exec, 0xfff')
                a(f'v_cmp_gt_u32 vcc, s{sT2}, v{v9}')
                a('s_mov_b64 exec, -1')
            if k == kp:
                a(f's_cbranch_vccnz {FSL}')
                a.label(FRET)
                a(kkf[0])
            if k == kp + 2:
                a(kkf[1])
        for x in after.get(k, []):
            a(x)
        fstamp(f'sc{k}')
    stamp()
    a(f'v_add_f32 v{TM}, v{TM}, v{TM + 2}')
    a(f'v_add_f32 v{TM + 1}, v{TM + 1}, v{TM + 3}')
    a(f'v_max3_f32 v{vT0}, v{TM}, v{TM + 1}, v{T0}')
    a(f'v_max3_f32 v{vT0}, v{vT0}, v{T0 + 1}, v{T0 + 2}')
    if opt.get('m7', 1):
        vmf(1)
    a(f'v_max3_f32 v{vT0}, v{vT0}, v{T0 + 3}, v{T1}')
    a(f'v_max3_f32 v{vT0}, v{vT0}, v{T1 + 1}, v{T1 + 2}')
    a(f'v_max_f32 v{vT1}, v{vT0}, v{T1 + 3}')
    a(f'v_max_f32 v{vT0}, v{vT0}, v{T1 + 3}')
    vmf(1)
    a(f'v_permlane16_swap_b32 v{vT0}, v{vT1}')
    a(f'v_max_f32 v{vT0}, v{vT0}, v{vT1}')
    a(f'v_mov_b32 v{vT1}, v{vT0}')
    vmf(1)
    a(f'v_permlane32_swap_b32 v{vT0}, v{vT1}')
    a(f'v_max_f32 v{vT0}, v{vT0}, v{vT1}')
    a(f'v_mul_f32 v{vT0}, s{sC}, v{vT0}')
    sc_regs = [T0 + k for k in range(8)] + [TM, TM + 1]
    if fresh2:
        a(f's_add_u32 s{sT2}, s{sStep}, 2')
        a(f's_min_u32 s{sT2}, s{sT2}, {NSEG}')
        a('s_mov_b64 exec, 0xfff')
        a(f'v_cmp_gt_u32 vcc, s{sT2}, v{v9}')
        a('s_mov_b64 exec, -1')
    a(f'v_fma_f32 v{TM}, v{TM}, s{sC}, -v{vT0}')
    a(f'v_fma_f32 v{TM + 1}, v{TM + 1}, s{sC}, -v{vT0}')
    for k in range(4):
        a(f'v_pk_fma_f32 {vr(T0 + 2 * k, 2)}, {vr(T0 + 2 * k, 2)}, {sr(sC, 2)}, {vr(vT0, 2)} op_sel_hi:[1,1,0] neg_lo:[0,0,1] neg_hi:[0,0,1]')
    for ir, r in enumerate(sc_regs):
        if vi[0] < 16:
            vmf(1)
            if fresh2 and ir == 0:
                a(f's_cbranch_vccnz {FSL}')
                a.label(FRET)
            if klate == 'sm' and ir in (0, 2):
                a(kkf[ir // 2])
        a(f'v_exp_f32 v{r}, v{r}')
    assert vi[0] == 16
    vx_ = [f'v_pk_add_f32 {vr(VACC + 4 * t, 2)}, {vr(VACC + 4 * t, 2)}, {vr(VACC + 4 * t + 2, 2)}' for t in range(2)]
    vx_ += [f'v_cvt_pk_bf16_f32 v{VACC + t}, v{VACC + 4 * t}, v{VACC + 4 * t + 1}' for t in range(2)]
    vx_ += [f'ds_write_b64 v{vL16}, {vr(VACC, 2)} offset:{L_VM + (w >> 1) * 1024 + (w & 1) * 8}']
    a(vx_[0])
    a(f'v_pk_add_f32 {vr(vT0, 2)}, {vr(T0, 2)}, {vr(T0 + 2, 2)}')
    a(f'v_pk_add_f32 {vr(TM + 2, 2)}, {vr(T1, 2)}, {vr(T1 + 2, 2)}')
    a(f'v_pk_add_f32 {vr(vT0, 2)}, {vr(vT0, 2)}, {vr(TM, 2)}')
    a(f'v_pk_add_f32 {vr(vT0, 2)}, {vr(vT0, 2)}, {vr(TM + 2, 2)}')
    a(vx_[1])
    a(f'v_add_f32 v{TM + 2}, v{vT0}, v{vT1}')
    a(f'v_add_f32 v{vT0}, v{vT0}, v{vT1}')
    a(vx_[2])
    a(vx_[3])
    a(f'v_permlane16_swap_b32 v{vT0}, v{TM + 2}')
    a(f'v_add_f32 v{vT1}, v{vT0}, v{TM + 2}')
    a(f'v_add_f32 v{vT0}, v{vT0}, v{TM + 2}')
    a(vx_[4])
    if kpv and w == 0:
        a(f's_add_u32 s{sT}, s{sStep}, 2')
        a(f's_min_u32 s{sT}, s{sT}, {NSEG}')
        a('s_mov_b64 exec, 0xfff')
        a(f'v_cmp_gt_u32 vcc, s{sT}, v{v9}')
        a('s_mov_b64 exec, -1')
    else:
        a(f's_mov_b64 vcc, {sr(sEM, 2)}')
    a(f'v_permlane32_swap_b32 v{vT0}, v{vT1}')
    a(f'v_add_f32 v{vT0}, v{vT0}, v{vT1}')
    a(f'v_rcp_f32 v{vT0}, v{vT0}')
    a(f's_mov_b32 m0, {L_VX + 2048 * w}')
    for k in range(5):
        r = sc_regs[2 * k]
        a(f'v_pk_mul_f32 {vr(r, 2)}, {vr(r, 2)}, {vr(vT0, 2)} op_sel_hi:[1,0]')
    for k in range(4):
        a(f'v_cvt_pk_bf16_f32 v{PX + k}, v{T0 + 2 * k}, v{T0 + 2 * k + 1}')
    a(f'v_cvt_pk_bf16_f32 v{PM}, v{TM}, v{TM + 1}')
    a(f'v_cvt_pk_bf16_f32 v{PM + 3}, v{TM}, v{TM + 1}')
    vsetup = [f's_mov_b32 m0, {L_VX + 2048 * w}', f's_add_u32 s{sT2}, s{sQKVn}, {8192 + 2048 * w}']
    b3chk = []
    if kpv:
        vsetup = [f's_mov_b32 m0, {L_KX + 4096 * w}', f's_add_u32 s{sT2}, s{sQKVn}, {4096 * w}']
        if w == 0:
            b3chk = [f's_cbranch_vccnz {FSL}', FRET + ':', f's_mov_b64 vcc, {sr(sEM, 2)}', f's_cmp_eq_u32 s{sStep}, {NSEG - 1}']
    stamp()
    VM_ = S_ + 56
    OA = [Q_ + 4 * U for U in range(4)] + [VX_ + 4 * U for U in range(4)]
    WA = [A_ + 4 * t for t in range(8)]
    AP = [Q_ + 8, Q_ + 12]
    s3 = [l for key in S3 for l in stage_reads(('o',) + key)]

    def pvx(U):
        return f'v_mfma_f32_16x16x32_bf16 {vr(OA[U], 4)}, {vr(VX_ + 4 * U, 4)}, {vr(PX, 4)}, 0'

    def pvm(U):
        return f'v_mfma_f32_16x16x16_bf16 {vr(OA[U], 4)}, {vr(VM_ + 2 * (U >> 1), 2)}, {vr(PM + 2 * (U & 1), 2)}, {vr(OA[U], 4)}'

    def dcvt(U):
        return [f'v_cvt_pk_bf16_f32 v{DD[U] + d}, v{OA[U] + 2 * d}, v{OA[U] + 2 * d + 1}' for d in range(2)]

    def apx(U):
        return f'v_cndmask_b32_dpp v{AP[U >> 2] + (U & 3)}, v{DD[U] + 1}, v{DD[U]}, vcc quad_perm:[0,1,0,1] row_mask:0xf bank_mask:0xf'

    def zmov(r):
        return [f'v_mov_b64 {vr(r, 2)}, 0', f'v_mov_b64 {vr(r + 2, 2)}, 0']
    kd = [f'buffer_load_dwordx4 v{vL16}, {WS}, s{sT2} offen offset:{1024 * p} sc1 lds' for p in range(4)]
    vmr = [f'ds_read_b128 {vr(VM_ + 4 * hh, 4)}, v{vL16} offset:{L_VM + 1024 * hh}' for hh in range(2)]
    zz = [l for t in range(8) for l in zmov(WA[t])]
    z4 = opt.get('z4', 0)
    pv = [(pvx(0), (zz[12:14] if z4 else []) + ['s_waitcnt lgkmcnt(0)', 's_barrier'] + vmr),
          (pvx(1), [vsetup[1], f's_cmp_eq_u32 s{sStep}, {NSEG - 1}'] + zz[0:2]),
          (pvx(2), zz[2:4]),
          (pvx(3), zz[4:6]),
          (pvx(4), zz[6:8]),
          (pvm(0), zz[8:10]),
          (pvm(1), zz[10:12] + (vsetup[:1] if vlate else [])),
          (pvm(2), dcvt(0)),
          (pvm(3), dcvt(1)),
          (pvx(5), dcvt(2)),
          (pvm(4), dcvt(3)),
          (pvx(6), [apx(0), apx(1)]),
          (pvm(5), [apx(2), apx(3)]),
          (pvx(7), dcvt(4)),
          (pvm(6), dcvt(5)),
          (pvm(7), [f's_cbranch_scc1 {LAST}', apx(4), apx(5)])]
    for k, (m, fl) in enumerate(pv):
        a(m)
        if w == 0 and k == opt.get('fpos', -5) + 1:
            a(flag_ld)
        if klate == 'pv':
            if k == 0:
                a(kkf[0])
            if k == 2 + (w >> 1):
                a(kkf[1])
            if k == 5:
                a(vsetup[0])
        if kpv:
            if k >= 1 and (k - 1) % 4 == w and (k - 1) // 4 < 3:
                a(kd[(k - 1) // 4])
            if k == 12 + w:
                a(kd[3])
        else:
            if not vlate and k == 7 + w:
                a(kd[0])
            if not vlate and k == 11 + w:
                a(kd[1])
        for l in fl:
            a(l)
        fstamp(f'pv{k}')
    PD = [ACC + 8, ACC + 12]
    d6, d7 = dcvt(6), dcvt(7)
    za = [[s3[0], s3[1], f's_and_b32 s{sT}, s{sStep}, 1', d6[0]],
          [s3[2], f's_lshl_b32 s{sT}, s{sT}, 18', d6[1], d7[0]],
          [s3[3], f's_add_u32 s{sP}, s{sPb}, s{sT}', d7[1]],
          [apx(6), apx(7), f's_add_u32 s{sPr}, s{sP}, {4 * 8192}', f's_bfe_u32 s{sTag}, s{sStep}, 0x10001']]
    for t in range(4):
        a(smf(WA[t], AP[0], bop(('o', t, 0))))
        for l in za[t]:
            a(l)
    fstamp('z0a')
    for t in range(4):
        a(smf(WA[t], AP[1], bop(('o', t, 1))))
        a(s3[4 + t])
        if t < 2:
            if not z4:
                a(zz[12 + t])
            a(zz[14 + t])
        else:
            a(f'v_add_f32 v{WA[0] + t - 2}, v{WA[0] + t - 2}, v{WA[0] + t}')
    fstamp('z1a')
    ep = []
    for t in (1, 2, 3):
        ep += [f'v_add_f32 v{WA[t] + x}, v{WA[t] + x}, v{WA[t] + 2 + x}' for x in range(2)]
    ep += [f'v_cvt_pk_bf16_f32 v{PD[0] + 2 * x + j}, v{WA[2 * j] + x}, v{WA[2 * j + 1] + x}' for x in range(2) for j in range(2)]
    ep += [f'v_and_or_b32 v{PD[0]}, v{PD[0]}, -2, s{sTag}']
    swp = w & XW
    st0 = f'buffer_store_dwordx4 {vr(PD[0], 4)}, v{vPst}, {WS}, s{sPr if swp else sP} offen{sc}'
    seq = [(t, 0) for t in range(4, 8)] + [(t, 1) for t in range(4, 8)]
    for k, (t, z) in enumerate(seq):
        a(smf(WA[t], AP[z], bop(('o', t, z))))
        if k < 5:
            for _ in range(2):
                a(ep.pop(0))
        elif k == 5:
            a(ep.pop(0))
        elif k == 6:
            a(st0)
            a(f'v_add_f32 v{WA[4]}, v{WA[4]}, v{WA[4] + 2}')
        elif k == 7:
            a(f'v_add_f32 v{WA[4] + 1}, v{WA[4] + 1}, v{WA[4] + 3}')
    assert not ep
    fstamp('z1b')
    for x in range(2):
        a(f'v_add_f32 v{WA[5] + x}, v{WA[5] + x}, v{WA[5] + 2 + x}')
    a(f'v_cvt_pk_bf16_f32 v{PD[1]}, v{WA[4]}, v{WA[5]}')
    for x in range(2):
        a(f'v_add_f32 v{WA[6] + x}, v{WA[6] + x}, v{WA[6] + 2 + x}')
    a(f'v_cvt_pk_bf16_f32 v{PD[1] + 2}, v{WA[4] + 1}, v{WA[5] + 1}')
    a(f'v_and_or_b32 v{PD[1]}, v{PD[1]}, -2, s{sTag}')
    a(f'v_pk_add_f32 {vr(WA[7], 2)}, {vr(WA[7], 2)}, {vr(WA[7] + 2, 2)}')
    for x in range(2):
        a(f'v_cvt_pk_bf16_f32 v{PD[1] + 2 * x + 1}, v{WA[6] + x}, v{WA[7] + x}')
    a(f'buffer_store_dwordx4 {vr(PD[1], 4)}, v{vPst}, {WS}, s{sP if swp else sPr} offen{sc}')
    stamp()
    R_, SELR, RACC, SEN, vRl, vMs = A_ + 8, X_, A_ + 16, A_ + 20, A_ + 22, A_ + 23
    if vlate:
        a(kd[0])
        a(kd[1])
    a(f's_lshl_b32 s{sT}, s{sH}, 13')
    a(f's_add_u32 s{sP}, s{sP}, s{sT}')
    a(f's_add_u32 s{sP}, s{sP}, {2048 * w}')
    pre = [f'v_and_b32 v{vT0}, 16, v{vL16}', f'v_mov_b32 v{vT1}, 0x3f80', f'v_lshlrev_b32 v{vT0}, v{vT0}, v{vT1}']
    pre += [f'v_cndmask_b32 v{SELR + k}, 0, v{vT0}, {sr(sSEL + 2 * k, 2)}' for k in range(4)]
    pre += [f'v_mov_b64 {vr(SEN, 2)}, -1']
    pre += [f'v_bfe_u32 v{vT0}, v{vL16}, 4, 1', f'v_lshrrev_b32 v{vT1}, 8, v{vL16}', f'v_lshl_add_u32 v{vT0}, v{vT1}, 1, v{vT0}',
            f'v_and_b32 v{vT1}, 32, v{vL16}', f'v_lshl_add_u32 v{vMs}, v{vT0}, 3, v{vT1}']
    pre += [f's_and_b32 s{sT}, s{sStep}, 3', f's_lshl_b32 s{sT}, s{sT}, 13', f's_add_u32 s{sM}, s{sMb}, s{sT}',
            f's_add_u32 s{sMw}, s{sM}, {2048 * w}', f's_xor_b32 s{sT}, s{sT}, {2 << 13}', f's_add_u32 s{sMr}, s{sMb}, s{sT}',
            f's_lshl_b32 s{sT}, s{sH}, 8', f's_add_u32 s{sM}, s{sM}, s{sT}', f's_add_u32 s{sMr}, s{sMr}, s{sT}',
            f's_mov_b32 s{sOXp}, s{sOX}', f's_mov_b32 m0, {L_MEM + 2048 * w if kreal or kpv else L_KX + 2048 * w}']
    pre += [f's_mov_b32 s{sSpin}, 0']
    pre += ox_pack()
    pre += [l for key in S1A for l in stage_reads(('qk',) + key)]
    pre += [l for t in range(4) for l in zmov(ACC + 4 * t)]
    npre = opt.get('npre', 52)
    rl = [f'buffer_load_dwordx4 {vr(R_ + 4 * u, 4)}, v{vL16}, {WS}, s{sP} offen offset:{1024 * u} sc1' for u in range(2)]
    h1lds = opt.get('h1lds', 0)
    if h1lds:
        rl = [f'buffer_load_dwordx4 v{vL16}, {WS}, s{sP} offen offset:{1024 * u} sc1 lds' for u in range(2)]
    for k, l in enumerate(pre[:npre]):
        if opt.get('dummy1') == k:
            for x in rl:
                a(x.replace(vr(R_, 4), vr(A_ + 24, 4)).replace(vr(R_ + 4, 4), vr(A_ + 28, 4)))
        a(l)
    for _ in range(opt.get('d1', 0)):
        a('s_nop 15')
    if opt.get('a1') is not None:
        a(f's_waitcnt vmcnt({opt["a1"]})')
    for l in rl:
        a(l)
    for l in pre[npre:]:
        a(l)
    RT, ROK = a.newlabel('RT'), a.newlabel('ROK')
    if h1lds:
        a('s_waitcnt vmcnt(0)')
    a.label(RT)
    if h1lds:
        for u in range(2):
            a(f'ds_read_b128 {vr(R_ + 4 * u, 4)}, v{vL16} offset:{L_MEM + 2048 * w + 1024 * u}')
    rm_ = [f'v_mfma_f32_16x16x32_bf16 {vr(RACC, 4)}, {vr(SELR, 4)}, {vr(R_, 4)}, 0',
           f'v_mfma_f32_16x16x32_bf16 {vr(RACC, 4)}, {vr(SELR, 4)}, {vr(R_ + 4, 4)}, {vr(RACC, 4)}']
    rc_ = [f'v_xor_b32 v{vT0}, s{sTag}, v{R_}', f'v_bitop3_b32 v{vT0}, v{vT0}, v{R_ + 4}, s{sTag} bitop3:0xf6',
           f'v_and_b32 v{vT0}, 1, v{vT0}', f'v_cmp_ne_u32 vcc, 0, v{vT0}']
    if opt.get('r3', 2) == 1:
        seq_ = rc_ + rm_
    elif opt.get('r3', 2) == 2:
        seq_ = [rm_[0]] + rc_ + [rm_[1]]
    else:
        seq_ = [rm_[0], rc_[0], rm_[1]] + rc_[1:]
    for l in seq_:
        a(l)
    if opt.get('r4', 1):
        GOOD = a.newlabel('RG')
        a(f's_cbranch_vccz {GOOD}')
        a('s_mov_b64 exec, vcc')
        for l in rl:
            a(l)
        a('s_mov_b64 exec, -1')
        spin_guard(a, sSpin, fail)
        a(f's_branch {RT}')
        a.label(GOOD)
    elif not opt.get('r2', 0):
        a(f's_cbranch_vccnz {ROK}')
    RT1 = RT
    for sh in (4, 8):
        for k in range(4):
            a(f'v_add_f32_dpp v{RACC + k}, v{RACC + k}, v{RACC + k} row_ror:{sh} row_mask:0xf bank_mask:0xf')
    a(f'v_cvt_pk_bf16_f32 v{vT0}, v{RACC}, v{RACC + 1}')
    a(f'v_cvt_pk_bf16_f32 v{vT1}, v{RACC + 2}, v{RACC + 3}')
    a(f'v_min_u32 v{vT0}, -2, v{vT0}')
    a('s_mov_b64 exec, 0xf000f')
    if opt.get('r2', 0):
        a(f's_cbranch_vccnz {ROK}')
    a(f'buffer_store_dwordx2 {vr(vT0, 2)}, v{vMs}, {WS}, s{sM} offen offset:{64 * w}{sc}')
    stamp()
    a(f'buffer_store_dwordx2 {vr(SEN, 2)}, v{vMs}, {WS}, s{sMr} offen offset:{64 * w}{sc}')
    a('s_mov_b64 exec, -1')
    a(f's_add_u32 s{sStep}, s{sStep}, 1')
    a(f's_mov_b32 s{sQKV}, s{sQKVn}')
    a(f's_add_u32 s{sOX}, s{sOX}, 8192')
    for l in sal:
        a(l)
    qafter = opt.get('qafter', 0)
    if not qearly and not qafter:
        for l in qld:
            a(l)
    if not kreal and not kpv:
        a(f's_add_u32 s{sT}, s{sQKV}, {2048 * w}')
        for p in range(2):
            a(f'buffer_load_dwordx4 v{vL16}, {WS}, s{sT} offen offset:{1024 * p} sc1 lds')
        a(f's_mov_b32 m0, {L_MEM + 2048 * w}')
    if w == 0 and fhop:
        a(f's_add_u32 s{sT}, s{sStep}, 2')
        a(f's_min_u32 s{sT}, s{sT}, {NSEG}')
        a('s_mov_b64 exec, 0xfff')
        a(f'v_cmp_gt_u32 vcc, s{sT}, v{v9}')
        a('s_mov_b64 exec, -1')
        a(f's_cbranch_vccnz {FSL}')
        a.label(FRET)
    for _ in range(opt.get('d2', 0)):
        a('s_nop 7')
    if opt.get('dummy2'):
        for k in range(2):
            a(f'buffer_load_dwordx4 v{vL16}, {WS}, s{sMw} offen offset:{1024 * k} sc1 lds')
    if opt.get('a2', 0) is not None:
        a(f's_waitcnt vmcnt({opt.get("a2", 0)})')
    md = [f'buffer_load_dwordx4 v{vL16}, {WS}, s{sMw} offen offset:{1024 * k} sc1 lds' for k in range(2)]
    if mreg:
        md = [f'buffer_load_dwordx4 {vr(A_ + 4 * k, 4)}, v{vL16}, {WS}, s{sMw} offen offset:{1024 * k} sc1' for k in range(2)]
    for l in md:
        a(l)
    if qafter:
        for l in qld:
            a(l)
    H2, RT, MRE = a.newlabel('H2'), a.newlabel('MT'), a.newlabel('MRE')
    a(f's_branch {H2}')
    i_h2 = len(a0.items)
    a.label(H2)
    if not mreg:
        a(f's_waitcnt vmcnt({2 if qafter else 0})')
    a.label(RT)
    if not mreg:
        a(memrd(0))
        a(memrd(1))
    a(f'v_max_u32 v{vT0}, v{A_}, v{A_ + 2}')
    a(f'v_max3_u32 v{vT0}, v{vT0}, v{A_ + 4}, v{A_ + 6}')
    a(f'v_cmp_eq_u32 vcc, -1, v{vT0}')
    if mreg:
        for k in range(2):
            a(f'ds_write_b128 v{vL16}, {vr(A_ + 4 * k, 4)} offset:{L_MEM + 2048 * w + 1024 * k}')
    a(f's_cbranch_vccnz {MRE}')
    if prof:
        stamp()
        a('s_waitcnt lgkmcnt(0)')
        a(f's_lshl_b32 s{sT}, s{sL}, 5')
        a(f's_add_u32 s{sT}, s{sT}, s{sH}')
        a(f's_lshl_b32 s{sT}, s{sT}, 2')
        a(f's_add_u32 s{sT}, s{sT}, {w}')
        a(f's_lshl_b32 s{sT}, s{sT}, 6')
        a(f's_add_u32 s{sT}, s{sT}, s{sStep}')
        a(f's_lshl_b32 s{sT}, s{sT}, 6')
        a(f's_add_u32 s{sT}, s{sT}, {PROF_OFF}')
        for k in range(10):
            a(f'v_writelane_b32 v{vT0}, s{sPROF + 2 * k}, {k}')
        a(f'v_writelane_b32 v{vT0}, s{sSpin}, 15')
        a(f'v_lshrrev_b32 v{vT1}, 2, v{vL16}')
        a('s_mov_b64 exec, 0xffff')
        a(f'buffer_store_dword v{vT0}, v{vT1}, {WS}, s{sT} offen')
        a('s_mov_b64 exec, -1')
    tail = a0.items[i_h2:]
    del a0.items[i_h2:]
    a0.items[i_loop:i_loop] = tail
    a.label(ROK)
    a('s_mov_b64 exec, vcc')
    for l in rl:
        a(l)
    a('s_mov_b64 exec, -1')
    spin_guard(a, sSpin, fail)
    a(f's_branch {RT1}')
    a.label(MRE)
    a('s_mov_b64 exec, vcc')
    for l in md:
        a(l)
    a('s_mov_b64 exec, -1')
    spin_guard(a, sSpin, fail)
    if opt.get('mwait'):
        a('s_waitcnt vmcnt(0)')
    a(f's_branch {RT}')
    if w == 0 or fresh or fresh2:
        a.label(FSL)
        flag_wait(a, sT2 if fresh or fresh2 else sT, fail)
        a(f's_branch {FRET}')
    a.label(LAST)
    for U in range(6, 8):
        for l in dcvt(U):
            a(l)
    for l in ox_pack():
        a(l)
    for u in range(2):
        a(ox_store(u, sOX))
    a(f's_branch {done}')
```

```python
import sys
from asmlib import *
from layout import *
import chain, proj, wb

NAME = 'interleave_layers__memory_aug_recurrent_mem_tr__sliding_local_dilated__prompt_kernel'
D_FAIL, D_READY = 16 + 64, 16 + 128


D_READY2, D_READY3 = 16 + 192, 16
L_BC = 32512
sROLE, sXCC, sFINAL = 90, 91, 92
sRANK = 89
vRANK = 126


SLEEP2 = 20


def role_of(a, opt, idx, dst):
    perm = opt.get('perm', [0, 2, 1, 3, 4, 5, 6, 7])
    a(f's_lshr_b32 s22, s{idx}, 5')
    a('s_lshl_b32 s22, s22, 2')
    a(f's_lshr_b32 s22, {sum(p << (4 * i) for i, p in enumerate(perm)):#x}, s22')
    a('s_and_b32 s22, s22, 7')
    a('s_lshl_b32 s22, s22, 5')
    a(f's_and_b32 s{dst}, s{idx}, 31')
    a(f's_or_b32 s{dst}, s{dst}, s22')


def broadcast(a, src, dst):
    L = a.newlabel('BC')
    a(f'v_mov_b32 v60, {L_BC}')
    a(f's_cmp_lg_u32 s{sW}, 0')
    a(f's_cbranch_scc1 {L}')
    a(f'v_mov_b32 v61, s{src}')
    a('ds_write_b32 v60, v61')
    a('s_waitcnt lgkmcnt(0)')
    a.label(L)
    a('s_barrier')
    a('ds_read_b32 v61, v60')
    a(f'v_readfirstlane_b32 s{dst}, v61')
    a('s_barrier')


def emit_prologue(a, opt):
    a('s_cmp_ge_u32 s2, 256')
    a('s_cbranch_scc1 DONE')
    a(f's_load_dwordx4 s[8:11], s[0:1], {KA_DBG}')
    a(f's_getreg_b32 s{sXCC}, hwreg(HW_REG_XCC_ID, 0, 4)')
    a('v_lshrrev_b32 v1, 6, v0')
    a(f'v_readfirstlane_b32 s{sW}, v1')
    a('v_and_b32 v0, 63, v0')
    a(f's_and_b32 s{sXCC}, s{sXCC}, 7')
    a('s_waitcnt lgkmcnt(0)')
    a('s_mov_b32 s12, s10')
    a('s_mov_b32 s13, s11')
    a(f's_mov_b32 s14, {WS_BYTES}')
    a('s_mov_b32 s15, 0x20000')
    if opt.get('prof'):
        a('s_memrealtime s[94:95]')
    if opt.get('ipf', 0):
        a('s_getpc_b64 s[22:23]')
        a.label('PCREF')
        a(f's_lshl_b32 s21, s{sW}, 13')
        a('v_lshl_add_u32 v2, v0, 7, s21')
        for k in range(3):
            a(f'v_min_u32 v3, CODE_END-PCREF-4, v2')
            a('global_load_dword v125, v3, s[22:23]')
            a('v_add_u32 v2, 0x8000, v2')
    if opt.get('wpf', 0):
        a(f's_load_dwordx8 s[24:31], s[0:1], {KA_WQ}')
        a(f's_load_dwordx4 s[32:35], s[0:1], {KA_WQKV}')
        a('s_lshl_b32 s21, s2, 14')
        a('v_lshl_add_u32 v2, v0, 7, s21')
        a('s_mul_i32 s21, s2, 6144')
        a('v_min_u32 v3, 47, v0')
        a('v_lshl_add_u32 v3, v3, 7, s21')
        a('s_lshl_b32 s21, s2, 11')
        a('v_min_u32 v6, 15, v0')
        a('v_lshl_add_u32 v6, v6, 7, s21')
        a('s_waitcnt lgkmcnt(0)')
        for k in range(1, 4):
            a(f's_cmp_eq_u32 s{sW}, {k}')
            a(f's_cselect_b32 s24, s{24 + 2 * k}, s24')
            a(f's_cselect_b32 s25, s{25 + 2 * k}, s25')
        a('global_load_dword v124, v2, s[24:25]')
        a('v_add_u32 v2, 0x2000, v2')
        a('global_load_dword v124, v2, s[24:25]')
        a(f's_cmp_eq_u32 s{sW}, 1')
        a('s_cselect_b32 s32, s34, s32')
        a('s_cselect_b32 s33, s35, s33')
        a('s_cselect_b64 vcc, -1, 0')
        a('v_cndmask_b32 v3, v3, v6, vcc')
        a(f's_cmp_gt_u32 s{sW}, 1')
        a('s_cbranch_scc1 NOWPF')
        a('global_load_dword v124, v3, s[32:33]')
        a.label('NOWPF')
    a(f'v_mov_b64 {vr(vRANK, 2)}, 0')
    a(f's_cmp_lg_u32 s{sW}, 0')
    a('s_cbranch_scc1 NORANK')
    a(f's_and_b32 s21, s{sXCC}, 3')
    a('s_lshl_b32 s21, s21, 6')
    a(f's_lshr_b32 s22, s{sXCC}, 2')
    a('s_lshl_b32 s22, s22, 3')
    a('s_add_u32 s21, s21, s22')
    a('s_lshr_b32 s22, s2, 3')
    a('s_lshl_b32 s22, 1, s22')
    a('v_mov_b32 v2, s21')
    a('v_mov_b32 v4, s22')
    a('v_mov_b32 v5, 0x100')
    a('s_mov_b64 exec, 1')
    a(f'global_atomic_add_x2 {vr(vRANK, 2)}, v2, v[4:5], s[8:9] sc0')
    a('s_mov_b64 exec, -1')
    a.label('NORANK')
    if opt.get('byrank'):
        a(f'v_readfirstlane_b32 s21, v{vRANK + 1}')
        a('s_lshr_b32 s21, s21, 8')
        broadcast(a, 21, 23)
        a('s_min_u32 s22, s23, 31')
    else:
        a('s_lshr_b32 s22, s2, 3')
    a(f's_lshl_b32 s21, s{sXCC}, 5')
    a('s_add_u32 s21, s21, s22')
    role_of(a, opt, 21, sROLE)
    a(f's_mov_b32 s{sFINAL}, 0')
    a('s_branch DISPATCH')


def save_rank(a):
    L = a.newlabel('SR')
    a(f's_cmp_eq_u32 s{sFINAL}, 1')
    a(f's_cbranch_scc1 {L}')
    a(f'v_readfirstlane_b32 s{sRANK}, v{vRANK + 1}')
    a.label(L)


def census_load(a, dst):
    a(f's_load_dwordx2 s[62:63], s[0:1], {KA_DBG}')
    a(f'v_mbcnt_lo_u32_b32 v{dst}, -1, 0')
    a(f'v_and_b32 v{dst + 1}, 3, v{dst}')
    a(f'v_lshrrev_b32 v{dst}, 2, v{dst}')
    a(f'v_lshlrev_b32 v{dst}, 3, v{dst}')
    a(f'v_lshl_add_u32 v{dst}, v{dst + 1}, 6, v{dst}')
    a('s_mov_b64 exec, 0xff')
    a('s_waitcnt lgkmcnt(0)')
    a(f'global_load_dwordx2 {vr(dst, 2)}, v{dst}, s[62:63] sc1')
    a('s_mov_b64 exec, -1')


def census_eval(a, src):
    a('s_mov_b32 s64, 0')
    a('s_mov_b32 s65, 0')
    a('s_mov_b32 s66, 1')
    a('s_mov_b32 s67, 1')
    for k in range(8):
        a(f'v_readlane_b32 s68, v{src + 1}, {k}')
        a(f'v_readlane_b32 s69, v{src}, {k}')
        a('s_cmp_eq_u32 s68, 0x2000')
        a('s_cselect_b32 s67, s67, 0')
        a('s_cmp_eq_u32 s69, -1')
        a('s_cselect_b32 s67, s67, 0')
        a('s_lshr_b32 s68, s68, 8')
        a('s_add_u32 s64, s64, s68')
        a(f's_cmp_gt_u32 s{sXCC}, {k}')
        a('s_cselect_b32 s69, s68, 0')
        a('s_add_u32 s65, s65, s69')
        a('s_cmp_eq_u32 s68, 32')
        a('s_cselect_b32 s66, s66, 0')


def verify(a, opt, preloaded=None, tmp=60):
    L, E, OK = a.newlabel('VW'), a.newlabel('VE'), a.newlabel('VK')
    src = preloaded or tmp
    a(f's_cmp_eq_u32 s{sFINAL}, 1')
    a(f's_cbranch_scc1 {OK}')
    a('s_mov_b32 s61, 0')
    if preloaded:
        a(f's_branch {E}')
    a.label(L)
    spin_guard(a, 61, 'FAIL')
    a(f's_sleep {opt.get("vsleep", 16)}')
    census_load(a, src)
    a.label(E)
    if not (opt.get('slow') or opt.get('rerank')):
        G = a.newlabel('VG')
        a('s_mov_b64 exec, 0xff')
        if opt.get('byrank'):
            a(f'v_lshrrev_b32 v{src}, 8, v{src + 1}')
            a(f'v_cmp_eq_u32 vcc, 32, v{src}')
        else:
            a(f'v_cmp_eq_u32 vcc, -1, v{src}')
            a('s_mov_b64 exec, vcc')
            a(f'v_cmp_eq_u32 vcc, 0x2000, v{src + 1}')
        a('s_mov_b64 exec, -1')
        a('s_cmp_eq_u32 vcc_lo, 0xff')
        a(f's_cbranch_scc1 {G}')
    census_eval(a, src)
    a('s_cmp_lt_u32 s64, 256')
    a(f's_cbranch_scc1 {L}')
    a('s_cmp_gt_u32 s64, 256')
    a('s_cbranch_scc1 FAIL')
    if opt.get('byrank'):
        a('s_mov_b32 s67, s66')
    if opt.get('slow') or opt.get('rerank'):
        a('s_mov_b32 s67, 0')
    a('s_cmp_eq_u32 s67, 0')
    a('s_cbranch_scc1 REROLE')
    if not (opt.get('slow') or opt.get('rerank')):
        a.label(G)
    a(f's_mov_b32 s{sFAST}, 1')
    a(f's_mov_b32 s{sFINAL}, 1')
    a.label(OK)


def emit_rerole(a, opt):
    a.label('REROLE')
    a('s_waitcnt vmcnt(0) lgkmcnt(0)')
    a('s_barrier')
    a(f's_lshr_b32 s21, s{sRANK}, 8')
    broadcast(a, 21, 21)
    a('s_add_u32 s65, s65, s21')
    if opt.get('slow'):
        a('s_mov_b32 s66, 0')
        a('s_mov_b32 s65, s2')
    role_of(a, opt, 65, sROLE)
    a(f's_mov_b32 s{sFAST}, s66')
    a(f's_mov_b32 s{sFINAL}, 1')
    a('v_mbcnt_lo_u32_b32 v0, -1, 0')
    a('v_mbcnt_hi_u32_b32 v0, -1, v0')


def signal(a, off, by_layer=False, drain=True):
    L = a.newlabel('SG')
    if drain:
        a('s_waitcnt vmcnt(0)')
    a('s_barrier')
    a(f's_cmp_lg_u32 s{sW}, 0')
    a(f's_cbranch_scc1 {L}')
    a(f's_load_dwordx2 s[62:63], s[0:1], {KA_DBG}')
    a(f'v_mov_b32 v60, {off}')
    if by_layer:
        a(f's_and_b32 s61, s{sL}, 1')
        a('v_lshl_add_u32 v60, s61, 2, v60')
    a('v_mov_b32 v61, 1')
    a('s_mov_b64 exec, 1')
    a('s_waitcnt lgkmcnt(0)')
    a('global_atomic_add v60, v61, s[62:63]')
    a('s_mov_b64 exec, -1')
    a.label(L)


def wait_count(a, off, n, by_layer=False):
    L, S = a.newlabel('RW'), a.newlabel('RS')
    a(f's_cmp_lg_u32 s{sW}, 0')
    a(f's_cbranch_scc1 {S}')
    a(f's_load_dwordx2 s[62:63], s[0:1], {KA_DBG}')
    a(f'v_mov_b32 v60, {off}')
    if by_layer:
        a(f's_and_b32 s61, s{sL}, 1')
        a('v_lshl_add_u32 v60, s61, 2, v60')
    a('s_mov_b32 s61, 0')
    a('s_mov_b64 exec, 1')
    a('s_waitcnt lgkmcnt(0)')
    a.label(L)
    spin_guard(a, 61, 'FAIL')
    a('s_sleep 8')
    a('global_load_dword v61, v60, s[62:63] sc1')
    a(f'v_cmp_gt_u32 vcc, {n}, v61')
    a(f's_cbranch_vccnz {L}')
    a('s_mov_b64 exec, -1')
    a.label(S)
    a('s_barrier')


def wait_two(a, for_p=False):
    L, S = a.newlabel('RW'), a.newlabel('RS')
    a(f's_cmp_lg_u32 s{sW}, 0')
    a(f's_cbranch_scc1 {S}')
    a(f's_load_dwordx2 s[62:63], s[0:1], {KA_DBG}')
    a('v_mov_b32 v62, 48')
    if for_p:
        a(f's_mov_b32 s61, {D_READY}')
        a('s_movk_i32 s60, 96')
        a('v_writelane_b32 v62, s60, 1')
    else:
        a(f's_and_b32 s61, s{sL}, 1')
        a('s_lshl_b32 s61, s61, 2')
        a(f's_add_u32 s61, s61, {D_READY3}')
    a(f'v_mov_b32 v60, {D_READY2}')
    a('v_writelane_b32 v60, s61, 1')
    a('s_mov_b32 s61, 0')
    a('s_mov_b64 exec, 3')
    a('s_waitcnt lgkmcnt(0)')
    F = a.newlabel('RF')
    a(f's_branch {F}')
    a.label(L)
    spin_guard(a, 61, 'FAIL')
    a(f's_sleep {SLEEP2}')
    a.label(F)
    a('global_load_dword v61, v60, s[62:63] sc1')
    a('v_cmp_gt_u32 vcc, v62, v61')
    a(f's_cbranch_vccnz {L}')
    a('s_mov_b64 exec, -1')
    a.label(S)
    a('s_barrier')


def wait_progress(a, n):
    L, S = a.newlabel('PW'), a.newlabel('PS')
    wait_count(a, D_READY, 48)
    a(f's_cmp_lg_u32 s{sW}, 0')
    a(f's_cbranch_scc1 {S}')
    a(f's_lshl_b32 s60, s{sH}, 8')
    a(f's_add_u32 s60, s60, {FLAG_OFF}')
    a('v_mov_b32 v60, 0')
    a('s_mov_b32 s61, 0')
    a('s_mov_b64 exec, 1')
    a.label(L)
    spin_guard(a, 61, 'FAIL')
    a('s_sleep 8')
    a(f'buffer_load_dword v61, v60, {WS}, s60 offen sc1')
    a(f'v_cmp_gt_u32 vcc, {n}, v61')
    a(f's_cbranch_vccnz {L}')
    a('s_mov_b64 exec, -1')
    a.label(S)
    a('s_barrier')


def ln0_loads(a):
    a(f's_load_dwordx2 s[52:53], s[0:1], {KA_X}')
    a('s_mov_b32 s54, 0x200000')
    a('s_mov_b32 s55, 0x20000')
    a('v_lshlrev_b32 v30, 4, v0')
    a('s_lshl_b32 s56, s21, 2')
    a(f's_add_u32 s56, s56, s{sW}')
    a('s_lshl_b32 s57, s56, 10')
    a('s_waitcnt lgkmcnt(0)')
    for r in range(11):
        a(f's_add_u32 s58, s57, {r * 192 * 1024}')
        a(f'buffer_load_dwordx4 {vr(64 + 4 * r, 4)}, v30, s[52:55], s58 offen')


def ln0_compute(a):
    a(f's_mov_b32 s50, {f32bits(1 / 512):#x}')
    a(f's_mov_b32 s51, {f32bits(1e-5):#x}')
    for r in range(11):
        X, Y, t = 64 + 4 * r, 32, 40
        for k in range(4):
            a(f'v_lshlrev_b32 v{Y + 2 * k}, 16, v{X + k}')
            a(f'v_and_b32 v{Y + 2 * k + 1}, 0xffff0000, v{X + k}')
        a(f'v_add_f32 v{t}, v{Y}, v{Y + 1}')
        a(f'v_mul_f32 v{t + 1}, v{Y}, v{Y}')
        a(f'v_fmac_f32 v{t + 1}, v{Y + 1}, v{Y + 1}')
        for k in range(2, 8):
            a(f'v_add_f32 v{t}, v{t}, v{Y + k}')
            a(f'v_fmac_f32 v{t + 1}, v{Y + k}, v{Y + k}')
        for sh in (8, 4, 2, 1):
            for s_ in (t, t + 1):
                a(f'v_add_f32_dpp v{s_}, v{s_}, v{s_} row_ror:{sh} row_mask:0xf bank_mask:0xf')
        for op in ('v_permlane16_swap_b32', 'v_permlane32_swap_b32'):
            a(f'v_mov_b32 v{t + 2}, v{t}')
            a(f'v_mov_b32 v{t + 3}, v{t + 1}')
            a(f'{op} v{t}, v{t + 2}')
            a(f'{op} v{t + 1}, v{t + 3}')
            a(f'v_pk_add_f32 {vr(t, 2)}, {vr(t, 2)}, {vr(t + 2, 2)}')
        wb.finish_stats(a, t, t + 1, t + 2, 's50', 's51')
        for k in range(8):
            a(f'v_fma_f32 v{Y + k}, v{Y + k}, v{t + 2}, v{t + 3}')
        for k in range(4):
            a(f'v_cvt_pk_bf16_f32 v{X + k}, v{Y + 2 * k}, v{Y + 2 * k + 1}')
        a(f's_add_u32 s58, s57, {XN_OFF + r * 192 * 1024}')
        if r == 10:
            a('s_cmp_lt_u32 s56, 128')
            a('s_cselect_b32 s58, s58, s14')
        a(f'buffer_store_dwordx4 {vr(X, 4)}, v30, {WS}, s58 offen sc1')


def emit_init_work(a):
    a('v_lshlrev_b32 v1, 4, v0')
    a('s_lshl_b32 s21, s21, 2')
    a(f's_add_u32 s21, s21, s{sW}')
    a('s_lshl_b32 s22, s21, 10')
    a('v_mov_b64 v[8:9], 0')
    a('v_mov_b64 v[10:11], 0')
    a(f's_add_u32 s23, s22, {FLAG_OFF}')
    a('s_cmp_lt_u32 s21, 16')
    a('s_cselect_b32 s23, s23, s14')
    a(f'buffer_store_dwordx4 v[8:11], v1, {WS}, s23 offen sc1')
    signal(a, D_READY)
    a('v_mov_b64 v[4:5], -1')
    a('v_mov_b64 v[6:7], -1')
    a('s_lshl_b32 s23, s21, 13')
    a(f's_add_u32 s23, s23, {CPART_OFF}')
    a('s_cmp_lt_u32 s21, 136')
    a('s_cselect_b32 s23, s23, s14')
    fill4k(a, 8)
    a('s_mul_i32 s24, s21, 21846')
    a('s_lshr_b32 s24, s24, 16')
    a('s_mul_i32 s25, s24, 3')
    a('s_sub_u32 s25, s21, s25')
    a('s_lshl_b32 s24, s24, 19')
    a('s_lshl_b32 s25, s25, 13')
    a('s_add_u32 s23, s24, s25')
    a(f's_add_u32 s23, s23, {OX_OFF}')
    fill4k(a, 8)
    for base in (HALO_OFF, HALO_OFF + (4 << 20), XN_OFF + (2 << 20), X2_OFF):
        a(f's_add_u32 s23, s22, {base}')
        fill4k(a, 1)


def fill4k(a, n, sc=' sc1', d='v[4:7]', ad='v1', so=23):
    for k in range(n):
        if k and k % 4 == 0:
            a(f's_add_u32 s{so}, s{so}, 4096')
        a(f'buffer_store_dwordx4 {d}, {ad}, {WS}, s{so} offen offset:{1024 * (k % 4)}{sc}')


def arm_own_rings(a, w2=False):
    LS, LD = a.newlabel('IA'), a.newlabel('IB')
    a('v_lshlrev_b32 v62, 4, v0')
    a('v_mov_b64 v[64:65], -1')
    a('v_mov_b64 v[66:67], -1')
    a(f's_mul_i32 s64, s{sL}, {WBR_SIZE}')
    a(f's_add_u32 s64, s64, {WBR_OFF}')
    a(f's_lshl_b32 s65, s{sH}, 2')
    a(f's_add_u32 s65, s65, s{sW}')
    a(f's_cmp_eq_u32 s{sFAST}, 0')
    a(f's_cbranch_scc1 {LS}')
    for lab, sc in ((None, ''), (LS, ' sc1')):
        if lab:
            a(f's_branch {LD}')
            a.label(lab)
        for base, sh, n in ((0, 12, 4), (256 << 10, 12, 4), (512 << 10, 12, 4), (768 << 10, 10, 1)):
            a(f's_lshl_b32 s66, s65, {sh}')
            a('s_add_u32 s66, s66, s64')
            a(f's_add_u32 s66, s66, {base}')
            fill4k(a, n, sc, 'v[64:67]', 'v62', 66)
    a.label(LD)


def exp_delay(a, us):
    if us:
        L = a.newlabel('DL')
        a('s_memrealtime s[60:61]')
        a('s_waitcnt lgkmcnt(0)')
        a.label(L)
        a('s_sleep 4')
        a('s_memrealtime s[62:63]')
        a('s_waitcnt lgkmcnt(0)')
        a('s_sub_u32 s62, s62, s60')
        a(f's_cmp_lt_u32 s62, {int(us * 100)}')
        a(f's_cbranch_scc1 {L}')


def tstamp(a, opt, reg):
    if opt.get('prof'):
        a(f's_memrealtime s[{reg}:{reg + 1}]')
        a('s_waitcnt lgkmcnt(0)')


def build(opt=None):
    global SLEEP2
    opt = opt or {}
    SLEEP2 = opt.get('sl2', 20)
    import importlib
    chain = importlib.import_module(opt.get('chain', 'chain'))
    wb_ = importlib.import_module(opt.get('wb', 'wb2'))
    proj = importlib.import_module(opt.get('proj', 'proj'))
    prof = opt.get('prof', False) == 1
    a = Asm()
    a.label('ENTRY')
    emit_prologue(a, opt)
    emit_rerole(a, opt)
    a.label('DISPATCH')
    tstamp(a, opt, 96)
    a(f's_mov_b32 s21, s{sROLE}')
    a('s_cmp_ge_u32 s21, 160')
    a('s_cbranch_scc1 ROLE_P')
    a('s_cmp_ge_u32 s21, 64')
    a('s_cbranch_scc1 ROLE_WB')
    a(f's_and_b32 s{sH}, s21, 31')
    a(f's_lshr_b32 s{sL}, s21, 5')

    def hook(u):
        if opt.get('sprof'):
            a('s_memrealtime s[80:81]')
            a('s_waitcnt lgkmcnt(0)')
            a(f'v_writelane_b32 v125, s80, {u}')
            if u == 17:
                a(f'v_writelane_b32 v125, s{chain.sOKF}, 20')
                a(f's_lshl_b32 s80, s{sROLE}, 2')
                a(f's_add_u32 s80, s80, s{sW}')
                a('s_lshl_b32 s80, s80, 8')
                a(f's_add_u32 s80, s80, {PROF_OFF + (10 << 20)}')
                a('v_lshlrev_b32 v115, 2, v0')
                a(f'buffer_store_dword v125, v115, {WS}, s80 offen')
        if u == 1:
            save_rank(a)
        if opt.get('one', 1):
            cu = opt.get('cu', 10)
            if u == cu:
                a(f's_load_dwordx2 s[62:63], s[0:1], {KA_DBG}')
                a('v_lshlrev_b32 v120, 2, v0')
                a('s_waitcnt lgkmcnt(0)')
                a('global_load_dword v120, v120, s[62:63] sc1')
            if u == cu + 2:
                G, V = a.newlabel('OG'), a.newlabel('OV')
                a(f'v_readlane_b32 s60, v120, {D_READY2 // 4}')
                a(f'v_mov_b32 v{chain.vCNT}, s60')
                if not (opt.get('slow') or opt.get('rerank')):
                    a(f's_cmp_eq_u32 s{sFINAL}, 1')
                    a(f's_cbranch_scc1 {G}')
                    smov64(a, 64, 0x0005000500050005)
                    a('s_mov_b64 exec, s[64:65]')
                    a('v_cmp_ne_u32 vcc, -1, v120')
                    a('s_mov_b64 s[66:67], vcc')
                    a('s_lshl_b64 exec, s[64:65], 1')
                    a('v_cmp_ne_u32 vcc, 0x2000, v120')
                    a('s_mov_b64 exec, -1')
                    a('s_or_b64 vcc, vcc, s[66:67]')
                    a(f's_cbranch_scc1 {V}')
                    a(f's_mov_b32 s{sFAST}, 1')
                    a(f's_mov_b32 s{sFINAL}, 1')
                    a.label(V)
                verify(a, opt, None, 120)
                a.label(G)
        else:
            if u == opt.get('cu', 12):
                census_load(a, 120)
            if u == opt.get('cu', 12) + 3:
                verify(a, opt, 120)
    if opt.get('c1n', 0):
        a(f's_cmp_eq_u32 s{sL}, 0')
        a('s_cbranch_scc1 C0GO')
        if opt.get('c1pf'):
            a(f's_load_dwordx2 s[24:25], s[0:1], {KA_WO}')
            a(f's_lshl_b32 s21, s{sH}, 17')
            a(f's_lshl_b32 s22, s{sW}, 15')
            a('s_add_u32 s21, s21, s22')
            a('v_lshl_add_u32 v2, v0, 7, s21')
            a('s_waitcnt lgkmcnt(0)')
            for k in range(4):
                a('global_load_dword v3, v2, s[24:25]')
                a('v_add_u32 v2, 0x2000, v2')
        save_rank(a)
        verify(a, opt)
        wait_progress(a, opt.get('c1n', 0))
        a.label('C0GO')
    if opt.get('dC'):
        a(f's_cmp_eq_u32 s{sL}, 0')
        a('s_cbranch_scc1 C0GO3')
        exp_delay(a, opt.get('dC'))
        a.label('C0GO3')
    chain.emit_chain_setup(a, hook, D_READY2, opt)
    for w in range(1, 4):
        a(f's_cmp_eq_u32 s{sW}, {w}')
        a(f's_cbranch_scc1 CW{w}')
    for w in range(4):
        a.label(f'CW{w}')
        chain.emit_chain_consts(a, w, opt.get('wb', 'wb2') == 'wb2')
        chain.emit_chain_first(a, w, 'FAIL', D_READY2, not opt.get('fresh2'))
        tstamp(a, opt, 98)
        if opt.get('prof') == 2:
            a('s_memtime s[86:87]')
            a('s_waitcnt lgkmcnt(0)')
        a(f's_cmp_eq_u32 s{sFAST}, 0')
        a(f's_cbranch_scc1 CS{w}')
        chain.emit_chain_loop(a, w, True, 'FAIL', 'FIN', prof, opt)
        a.label(f'CS{w}')
        chain.emit_chain_loop(a, w, False, 'FAIL', 'FIN', prof, opt)
    a.label('ROLE_WB')
    a('s_sub_u32 s21, s21, 64')
    a(f's_and_b32 s{sH}, s21, 15')
    a(f's_lshr_b32 s{sL}, s21, 4')
    a(f's_bitcmp0_b32 s{sL}, 0')
    a('s_cbranch_scc1 W0GO')
    a(f's_lshr_b32 s21, s{sL}, 1')
    a('s_lshl_b32 s21, s21, 4')
    a(f's_add_u32 s21, s21, s{sH}')
    ln0_loads(a)
    ln0_compute(a)
    save_rank(a)
    verify(a, opt)
    emit_init_work(a)
    signal(a, D_READY2)
    a.label('W0GO')

    ws_ = lambda k: tstamp(a, opt, 96) if opt.get('wbst') == k else None
    ws_(0)

    if opt.get('w1n', 5):
        a(f's_bitcmp0_b32 s{sL}, 0')
        a('s_cbranch_scc1 W0GO2')
        wait_progress(a, opt.get('w1n', 5))
        a.label('W0GO2')

    exp_delay(a, opt.get('dW'))

    def wb_hook(u):
        w2 = opt.get('wb', 'wb2') == 'wb2'
        if u == 6:
            save_rank(a)
            census_load(a, 16)
        if u == 9:
            verify(a, opt, 16)
            arm_own_rings(a, w2)
        if u == (14 if w2 else 18):
            signal(a, D_READY3, True, drain=False)
    wb_.emit_wb_setup(a, wb_hook, ws_, opt.get('late', 0))
    ws_(4)
    wait_two(a)
    ws_(5)
    tstamp(a, opt, 98)
    a(f's_cmp_eq_u32 s{sFAST}, 0')
    a('s_cbranch_scc1 WBS')
    wb_.emit_wb_loop(a, True, 'FAIL', 'FIN', prof, opt)
    a.label('WBS')
    wb_.emit_wb_loop(a, False, 'FAIL', 'FIN', prof, opt)
    a.label('ROLE_P')
    a('s_sub_u32 s21, s21, 160')
    a(f's_and_b32 s{sH}, s21, 31')
    a(f's_lshr_b32 s{sL}, s21, 5')
    proj.emit_proj_setup(a, lambda: None, opt.get('wb', 'wb2') == 'wb2')
    save_rank(a)
    verify(a, opt)
    wait_count(a, D_READY, 48)
    tstamp(a, opt, 98)
    for m in (1, 2):
        a(f's_cmp_eq_u32 s{sL}, {m}')
        a(f's_cbranch_scc1 PM{m}')
    for m in range(3):
        a.label(f'PM{m}')
        proj.emit_proj_loop(a, m, 'FAIL', 'FIN', opt)
    a.label('FAIL')
    a(f's_load_dwordx2 s[8:9], s[0:1], {KA_DBG}')
    a('s_mov_b64 exec, 1')
    a(f'v_mov_b32 v2, {D_FAIL}')
    a('v_mov_b32 v3, 1')
    a('s_waitcnt lgkmcnt(0)')
    a('global_atomic_add v2, v3, s[8:9]')
    a('s_waitcnt vmcnt(0)')
    a('s_endpgm')
    a.label('FIN')
    if opt.get('dbgt'):
        a('s_waitcnt vmcnt(0)')
        tstamp(a, opt, 100)
        a(f's_and_b32 s3, s{sROLE}, 15')
        a(f's_or_b32 s3, s3, s{sW}')
        a('s_cbranch_scc1 DONE')
        a(f's_load_dwordx2 s[8:9], s[0:1], {KA_DBG}')
        a('s_mov_b64 exec, 1')
        a('s_waitcnt lgkmcnt(0)')
        a('s_not_b32 s94, s94')
        a(f's_lshr_b32 s3, s{sROLE}, 5')
        a('s_min_u32 s3, s3, 2')
        a('s_lshl_b32 s3, s3, 2')
        for off, reg, byrole in ((32, 94, 0), (36, 100, 1), (48, 98, 1)):
            a(f'v_mov_b32 v2, {off}')
            if byrole:
                a('v_add_u32 v2, s3, v2')
            a(f'v_mov_b32 v3, s{reg}')
            a('global_atomic_umax v2, v3, s[8:9]')
        a('s_waitcnt vmcnt(0)')
        a('s_endpgm')
    if opt.get('prof'):
        a('s_waitcnt vmcnt(0)')
        tstamp(a, opt, 100)
        a('s_mov_b64 exec, 1')
        a(f's_lshl_b32 s93, s{sROLE}, 4')
        a(f's_add_u32 s93, s93, {PROF_OFF + (8 << 20)}')
        for k in range(4):
            a(f'v_mov_b32 v{4 + k}, s{94 + 2 * k}')
        a('v_mov_b32 v2, 0')
        a(f'buffer_store_dwordx4 v[4:7], v2, {WS}, s93 offen')
        if opt.get('prof') == 2:
            a('s_memtime s[84:85]')
            a('s_waitcnt lgkmcnt(0)')
            a('s_sub_u32 s84, s84, s86')
            a('v_mov_b32 v4, s84')
            a('s_add_u32 s93, s93, 4096')
            a(f'buffer_store_dword v4, v2, {WS}, s93 offen')
    a.label('DONE')
    a.label('CODE_END')
    body = a.finalize(entries=('ENTRY',))
    return body


HEADER = open('interleave_layers__memory_aug_recurrent_mem_tr__sliding_local_dilated__prompt.s.ref').read().split('; Override launch')[0] if False else ''


PROMOTE = ('v_add_f32', 'v_max_f32', 'v_mul_f32', 'v_mov_b32', 'v_exp_f32', 'v_rcp_f32', 'v_and_b32', 'v_xor_b32', 'v_min_u32', 'v_max_u32',
           'v_lshlrev_b32', 'v_lshrrev_b32', 'v_sub_f32', 'v_mov_b64', 'v_cmp_eq_u32', 'v_cmp_ne_u32', 'v_cmp_gt_u32', 'v_add_u32', 'v_rsq_f32', 'v_fmac_f32')


PROMOTE2 = PROMOTE + ('v_permlane16_swap_b32', 'v_permlane32_swap_b32', 'v_or_b32', 'v_cndmask_b32', 'v_mul_u32_u24', 'v_ashrrev_i32')


def align8(body, mode=1):
    import subprocess, re, os, tempfile
    lines = body.split('\n')
    idx = [i for i, l in enumerate(lines) if l and not l.endswith(':') and not l.startswith(';') and not l.startswith('.')]
    d = tempfile.mkdtemp()
    open(d + '/a.s', 'w').write('.amdgcn_target "amdgcn-amd-amdhsa--gfx950"\n.text\n' + body)
    subprocess.run(['clang', '-x', 'assembler', '-target', 'amdgcn-amd-amdhsa', '-mcpu=gfx950', '-c', d + '/a.s', '-o', d + '/a.o'], check=True)
    out = subprocess.run(['llvm-objdump', '-d', '--mcpu=gfx950', d + '/a.o'], capture_output=True, text=True).stdout
    sizes = [4 * len(m.group(1).split()) for m in re.finditer(r'// [0-9A-F]{12}: ((?:[0-9A-F]{8} ?)+)', out)]
    assert len(sizes) == len(idx), (len(sizes), len(idx))
    if mode == 1:
        addr, last = 0, None
        for k, i in enumerate(idx):
            sz = sizes[k]
            if sz == 8 and addr % 8 == 4 and last is not None:
                mn = lines[last].split()[0]
                lines[last] = lines[last].replace(mn, mn + '_e64', 1)
                addr += 4
            if sz == 8:
                last = None
            elif sz == 4 and lines[i].split()[0] in PROMOTE:
                last = i
            addr += sz
    else:
        wm = {3: 1.0, 4: 0.0, 5: 0.3}.get(mode, 0.5)
        M = {6: 8, 7: 16, 8: 4}.get(mode, 2)
        INF = 1e18
        cost, back = [0.0] + [INF] * (M - 1), []
        for k, i in enumerate(idx):
            sz, mn = sizes[k], lines[i].split()[0]
            new, bk = [INF] * M, [None] * M
            for p in range(M):
                if cost[p] >= INF:
                    continue
                opts = [(sz, False)]
                if sz == 4 and mn in PROMOTE2:
                    opts.append((8, True))
                for z, pr in opts:
                    c = cost[p] + (0.05 if pr else 0)
                    if z >= 8 and p == M - 1:
                        c += wm if 'mfma' in mn else 1.0
                    q = (p + z // 4) % M
                    if c < new[q]:
                        new[q], bk[q] = c, (p, pr)
            cost = new
            back.append(bk)
        p = min(range(M), key=lambda q: cost[q])
        for k in range(len(idx) - 1, -1, -1):
            p, pr = back[k][p]
            if pr:
                mn = lines[idx[k]].split()[0]
                lines[idx[k]] = lines[idx[k]].replace(mn, mn + '_e64', 1)
    return '\n'.join(lines)


def full_text(opt=None):
    body = build(opt)
    if (opt or {}).get('al8', 8):
        body = align8(body, (opt or {}).get('al8', 8))
    return f'''; @launch grid=(256,1,1) block=(256,1,1) lds=163840
.amdgcn_target "amdgcn-amd-amdhsa--gfx950"
.text
.globl {NAME}
.p2align 8
.type {NAME},@function
{NAME}:
{body}s_endpgm
.section .rodata,"a"
.p2align 6
.amdhsa_kernel {NAME}
  .amdhsa_next_free_vgpr 512
  .amdhsa_next_free_sgpr 102
  .amdhsa_accum_offset 256
  .amdhsa_group_segment_fixed_size 0
  .amdhsa_kernarg_size 104
  .amdhsa_user_sgpr_count 2
  .amdhsa_user_sgpr_kernarg_segment_ptr 1
  .amdhsa_system_sgpr_workgroup_id_x 1
  .amdhsa_float_denorm_mode_32 3
.end_amdhsa_kernel
'''


if __name__ == '__main__':
    opt = eval(sys.argv[2]) if len(sys.argv) > 2 else {}
    t = full_text(opt)
    open(sys.argv[1], 'w').write(t)
    print(len(t), 'bytes', t.count('\n'), 'lines')
```

```python
import re
from asmlib import *
from layout import *

L_MEM, L_KX, L_VX = 0, 8192, 16384
L_QM = 24576
L_KM = L_QM + 2304
L_VM = L_KM + 2304
L_ZERO = L_VM + 2048
L_WST = 32768
vL16, vW16, vXw, vQr, vKr, vIdx, vPst, vOx, v8, v9, vT0, vT1 = range(12)
A_, ACC, S_, X_ = 12, 44, 60, 124
sStep, sQKV, sQKVn, sOX, sOX2, sP, sPr, sM, sMr, sMw, sSpin, sFlag, sT, sT2, sPb, sMb, sQx, sQx2 = range(20, 38)
sC = 38
sMASK = 40
sEM, sEX = 56, 58
sSEL = 60
sOXp, sTag = 68, 69
sPROF = 70
SPIN_MAX = 1 << 22

S1A = [(t, 0) for t in range(4)] + [(0, 1), (1, 1)]
S1B = [(t, 5) for t in range(4)]
S1C = [(0, 4), (1, 4)]
S3 = [(t, 1) for t in range(4, 8)]


def resident_map():
    staged = S1A + S1B + S1C
    ops = [('qk', t, kt) for kt in range(8) for t in range(4) if (t, kt) not in staged]
    ops += [('v', t, kt) for kt in range(8) for t in range(2)]
    ops += [('o', t, z) for z in range(2) for t in range(8) if (t, z) not in S3]
    assert len(ops) == 48
    m = {}
    for i, o in enumerate(ops):
        m[o] = ('a', 8 * i) if i < 32 else ('v', 128 + 8 * (i - 32))
    for i, (t, kt) in enumerate(S1A):
        m[('qk', t, kt)] = ('lds', i, S_ + 8 * i)
    for i, (t, kt) in enumerate(S1B):
        m[('qk', t, kt)] = ('lds', 6 + i, S_ + 8 * i)
    for i, (t, kt) in enumerate(S1C):
        m[('qk', t, kt)] = ('lds', 10 + i, S_ + 32 + 8 * i)
    for i, (t, z) in enumerate(S3):
        m[('o', t, z)] = ('lds', 12 + i, [ACC, S_ + 32, S_ + 16, S_ + 24][i])
    return m


RM = resident_map()


def bop(key):
    e = RM[key]
    if e[0] == 'a':
        return ar(e[1], 8)
    if e[0] == 'v':
        return vr(e[1], 8)
    return vr(e[2], 8)


def stage_reads(key):
    e = RM[key]
    return [f'ds_read_b128 {vr(e[2] + 4 * hh, 4)}, v{vW16} offset:{e[1] * 2048 + hh * 1024}' for hh in range(2)]


def zfill(reg):
    return f'ds_read_b128 {vr(reg, 4)}, v{vL16} offset:{L_ZERO}'


XW = 0
vCNT, vFLG = 124, 7


sOKF = 78


def count_load(a, d_ready):
    a(f's_load_dwordx2 s[70:71], s[0:1], {KA_DBG}')
    a(f'v_mov_b32 v114, {d_ready}')
    a('s_waitcnt lgkmcnt(0)')
    a('s_mov_b64 exec, 1')
    a(f'global_load_dword v{vCNT}, v114, s[70:71] sc1')
    a('s_mov_b64 exec, -1')


def flag_load(a, dst):
    a(f'v_readlane_b32 s79, v{vCNT}, 0')
    a('v_mbcnt_lo_u32_b32 v113, -1, 0')
    a('v_lshlrev_b32 v112, 4, v113')
    a(f's_lshl_b32 s3, s{sL}, 5')
    a(f's_add_u32 s3, s3, s{sH}')
    a('s_lshl_b32 s76, s3, 8')
    a(f's_add_u32 s76, s76, {FLAG_OFF}')
    a('s_mov_b64 exec, 0xfff')
    a(f'buffer_load_dword v{dst}, v112, {WS}, s76 offen sc1')
    a('s_mov_b64 exec, -1')


def check_eval(a, src, need):
    a('s_mov_b64 exec, 0xfff')
    a(f'v_cmp_gt_u32 vcc, {need}, v{src}')
    a('s_mov_b64 exec, -1')
    a('s_cmp_eq_u64 vcc, 0')
    a('s_cselect_b32 s76, s79, 0')
    a('s_cmp_ge_u32 s76, 48')


def first_loads(a):
    a(f's_load_dwordx2 s[72:73], s[0:1], {KA_MEM0}')
    a('s_mov_b32 s74, 8192')
    a('s_mov_b32 s75, 0x20000')
    a('v_mbcnt_lo_u32_b32 v113, -1, 0')
    a('v_mbcnt_hi_u32_b32 v113, -1, v113')
    a('v_lshlrev_b32 v112, 4, v113')
    a(f's_lshl_b32 s3, s{sL}, 5')
    a(f's_add_u32 s3, s3, s{sH}')
    a('s_lshl_b32 s3, s3, 6')
    a(f's_mul_i32 s77, s3, {QKV_BLK}')
    a(f's_lshl_b32 s3, s{sW}, 12')
    a(f's_add_u32 m0, s3, {L_KX}')
    a('s_add_u32 s3, s3, s77')
    for p in range(4):
        a(f'buffer_load_dwordx4 v112, {WS}, s3 offen offset:{1024 * p} sc1 lds')
    a('v_and_b32 v114, 1, v113')
    a('v_bfe_u32 v115, v113, 2, 2')
    a('v_lshl_add_u32 v114, v115, 1, v114')
    a('v_lshrrev_b32 v115, 4, v113')
    a('v_bfe_u32 v113, v113, 1, 1')
    a('v_lshlrev_b32 v114, 10, v114')
    a('v_lshl_add_u32 v114, v115, 5, v114')
    a('v_lshl_add_u32 v114, v113, 4, v114')
    a(f's_lshl_b32 s3, s{sW}, 11')
    a('s_add_u32 s3, s3, s77')
    a('s_add_u32 s3, s3, 16384')
    a(f'buffer_load_dwordx4 v[116:119], v112, {WS}, s3 offen sc1')
    a(f'buffer_load_dwordx4 v[120:123], v112, {WS}, s3 offen offset:1024 sc1')
    a(f's_lshl_b32 s3, s{sL}, 19')
    a(f's_lshl_b32 s76, s{sH}, 13')
    a('s_add_u32 s3, s3, s76')
    a(f's_and_b32 s76, s{sW}, 1')
    a('s_lshl_b32 s76, s76, 18')
    a('s_add_u32 s3, s3, s76')
    a(f's_add_u32 s3, s3, {CPART_OFF}')
    a(f's_lshl_b32 s76, s{sL}, 15')
    a(f's_lshl_b32 s77, s{sH}, 10')
    a('s_add_u32 s76, s76, s77')
    a(f's_add_u32 s76, s76, {CMEM_OFF}')
    a(f's_cmp_lt_u32 s{sW}, 2')
    a('s_cselect_b32 s3, s3, s76')
    a('s_cselect_b32 s76, 3, 0')
    a('v_lshlrev_b32 v115, s76, v112')
    a(f'buffer_load_dword v115, v115, {WS}, s3 offen sc1')
    a('s_waitcnt lgkmcnt(0)')
    for k in range(2):
        a(f's_lshl_b32 s3, s{sW}, 11')
        a(f's_add_u32 m0, s3, {L_MEM + 1024 * k}')
        a(f's_lshl_b32 s3, s{sW}, 8')
        a(f's_add_u32 s3, s3, {128 * k}')
        a('buffer_load_dwordx4 v114, s[72:75], s3 offen lds')


def emit_chain_setup(a, hook=None, d_ready=None, opt=None):
    lane, vn, vgb, vAq, vAv, vAo = 0, 1, 2, 3, 4, 5
    a(f'v_and_b32 v{vn}, 15, v{lane}')
    a(f'v_lshrrev_b32 v{vgb}, 4, v{lane}')
    a(f'v_lshrrev_b32 v6, 1, v{vgb}')
    a(f'v_and_b32 v7, 1, v{vgb}')
    a(f'v_lshlrev_b32 v8, 17, v6')
    a(f'v_lshl_add_u32 v8, v7, 15, v8')
    a(f'v_lshl_add_u32 v{vAq}, v{vn}, 3, v8')
    a(f'v_and_b32 v9, 14, v{vn}')
    a(f'v_lshl_add_u32 v{vAv}, v9, 2, v8')
    a(f'v_and_b32 v9, 1, v{vn}')
    a(f'v_lshl_add_u32 v{vAv}, v9, 18, v{vAv}')
    a(f'v_lshlrev_b32 v8, 15, v7')
    a(f'v_lshl_add_u32 v8, v6, 13, v8')
    a(f'v_lshl_add_u32 v{vAo}, v{vn}, 3, v8')
    a(f's_lshl_b32 s3, s{sW}, 15')
    a(f's_add_u32 s3, s3, {L_WST}')
    a(f'v_lshl_add_u32 v6, v{lane}, 4, s3')
    vSt = 6
    a(f's_load_dwordx4 s[40:43], s[0:1], {KA_WQ}')
    a(f's_load_dwordx4 s[44:47], s[0:1], {KA_WV}')
    a('s_waitcnt lgkmcnt(0)')
    a(f's_cmp_lt_u32 s{sW}, 2')
    a('s_cselect_b32 s4, s40, s42')
    a('s_cselect_b32 s5, s41, s43')
    a('s_mov_b32 s6, 0x400000')
    a('s_mov_b32 s7, 0x20000')
    a('s_mov_b32 s8, s44')
    a('s_mov_b32 s9, s45')
    a('s_mov_b32 s10, 0x400000')
    a('s_mov_b32 s11, 0x20000')
    a('s_mov_b32 s48, s46')
    a('s_mov_b32 s49, s47')
    a('s_mov_b32 s50, 0x400000')
    a('s_mov_b32 s51, 0x20000')
    a(f's_lshl_b32 s20, s{sH}, 8')
    a(f's_and_b32 s21, s{sW}, 1')
    a('s_lshl_b32 s21, s21, 7')
    a('s_add_u32 s21, s21, s20')
    a(f's_lshl_b32 s22, s{sW}, 6')
    a('s_add_u32 s22, s22, s20')
    a(f's_lshl_b32 s23, s{sH}, 17')
    a(f's_lshl_b32 s24, s{sW}, 8')
    a('s_add_u32 s23, s23, s24')
    a(f's_and_b32 s24, s{sW}, {XW}')
    a('s_lshl_b32 s24, s24, 7')
    a('s_add_u32 s23, s23, s24')
    a('s_xor_b32 s29, s23, 128')
    a('s_mov_b32 s26, 0x05040100')
    a('s_mov_b32 s27, 0x07060302')
    a('s_mov_b32 s30, 0x55555555')
    a('s_mov_b32 s31, 0x55555555')
    SEL = (26, 27)
    rowqk = lambda jb: 32 * (jb >> 3) + 8 * ((jb >> 1) & 1) + 2 * ((jb >> 2) & 1) + (jb & 1)
    rowo = lambda jb: 16 * (jb >> 3) + 2 * (jb & 3) + ((jb >> 2) & 1)
    BUF = [16, 48, 80]
    TMP = 8
    units = []

    def put(key, j0, n, srcs):
        out = []
        e = RM[key]
        for k, (hi, lo, sel) in enumerate(srcs):
            if e[0] == 'v':
                out.append(f'v_perm_b32 v{e[1] + j0 + k}, v{hi}, v{lo}, s{SEL[sel]}')
            else:
                out.append(f'v_perm_b32 v{TMP + k}, v{hi}, v{lo}, s{SEL[sel]}')
        if e[0] == 'a':
            out += [f'v_accvgpr_write_b32 a{e[1] + j0 + k}, v{TMP + k}' for k in range(n)]
        elif e[0] == 'lds':
            for hh in range(n // 4):
                out.append(f'ds_write_b128 v{vSt}, {vr(TMP + 4 * hh, 4)} offset:{e[1] * 2048 + (j0 // 4 + hh) * 1024}')
        return out

    def rot(kt, base):
        return [f's_lshl_b32 s28, s{sW}, 1', f's_add_u32 s28, s28, {kt}', 's_and_b32 s28, s28, 7', 's_lshl_b32 s28, s28, 19', f's_add_u32 s28, s28, s{base}']

    for kt in range(8):
        def ld(B, kt=kt):
            o = rot(kt, 21)
            for jb in range(16):
                o.append(f's_add_u32 s25, s28, {rowqk(jb) * 8192}')
                o.append(f'buffer_load_dwordx2 {vr(B + 2 * jb, 2)}, v{vAq}, s[4:7], s25 offen')
            return o

        def pr(B, kt=kt):
            o = []
            for t in range(4):
                o += put(('qk', t, kt), 0, 8, [(B + 2 * (2 * jj + 1) + (t >> 1), B + 2 * (2 * jj) + (t >> 1), t & 1) for jj in range(8)])
            return o
        units.append((ld, pr))
    for kp in range(4):
        def ld(B, kp=kp):
            o = []
            for kk in range(2):
                for jb in range(8):
                    o.append(f's_add_u32 s25, s22, {(64 * (2 * kp + kk) + rowqk(jb)) * 8192}')
                    o.append(f'buffer_load_dwordx2 {vr(B + 16 * kk + 2 * jb, 2)}, v{vAv}, s[8:11], s25 offen')
            return o

        def pr(B, kp=kp):
            o = []
            for kk in range(2):
                R = B + 16 * kk
                o.append('s_mov_b64 vcc, s[30:31]')
                o += [f'v_cndmask_b32_dpp v{112 + j}, v{R + 2 * j + 1}, v{R + 2 * j}, vcc quad_perm:[0,0,2,2] row_mask:0xf bank_mask:0xf' for j in range(8)]
                o.append('s_not_b64 vcc, vcc')
                o += [f'v_cndmask_b32_dpp v{R + 2 * j + 1}, v{R + 2 * j}, v{R + 2 * j + 1}, vcc quad_perm:[1,1,3,3] row_mask:0xf bank_mask:0xf' for j in range(8)]
                row = lambda jb: 112 + jb if jb < 8 else R + 2 * (jb - 8) + 1
                for t in range(2):
                    o += put(('v', t, 2 * kp + kk), 0, 8, [(row(2 * jj + 1), row(2 * jj), t) for jj in range(8)])
            return o
        units.append((ld, pr))
    for z in range(2):
        for hb in range(2):
            def ld(B, z=z, hb=hb):
                o = []
                for jb in range(16):
                    o.append(f's_add_u32 s25, s{23 if hb == 0 else 29}, {(64 * z + rowo(jb)) * 1024}')
                    o.append(f'buffer_load_dwordx2 {vr(B + 2 * jb, 2)}, v{vAo}, s[48:51], s25 offen')
                return o

            def pr(B, z=z, hb=hb):
                o = []
                for t in range(4):
                    o += put(('o', 4 * hb + t, z), 0, 8, [(B + 2 * (2 * jj + 1) + (t >> 1), B + 2 * (2 * jj) + (t >> 1), t & 1) for jj in range(8)])
                return o
            units.append((ld, pr))
    opt = opt or {}
    if opt.get('wfl'):
        units = [((lambda B, f=ld: [x + ' ' + opt['wfl'] if x.startswith('buffer') else x for x in f(B)]), pr) for ld, pr in units]
    if opt.get('wofirst', 0):
        units = units[12:] + units[8:12] + units[:8]
    D = opt.get('depth', 2)
    n = len(units)
    for u in range(n + 2):
        if hook:
            if u == n - 6 and not opt.get('one', 1):
                count_load(a, d_ready)
            if u == n - 3:
                flag_load(a, vFLG)
            if u == n:
                NL = a.newlabel('CNL')
                check_eval(a, vFLG, 2)
                a(f's_cselect_b32 s{sOKF}, 1, 0')
                a(f's_cbranch_scc0 {NL}')
                first_loads(a)
                a.label(NL)
        if u < n:
            for l in units[u][0](BUF[u % 3]):
                if opt.get('cap') and l.startswith('buffer'):
                    a(f's_waitcnt vmcnt({opt["cap"] - 1})')
                a(l)
        if hook:
            hook(u)
        if D <= u < n + D:
            for l in units[u - D][1](BUF[(u - D) % 3]):
                a(l)
    a('v_mov_b64 v[12:13], 0')
    a('v_mov_b64 v[14:15], 0')
    a(f'v_lshlrev_b32 v8, 4, v{lane}')
    a(f'ds_write_b128 v8, v[12:15] offset:{L_ZERO}')
    a(f'v_mov_b32 v125, v{vFLG}')
    a('s_waitcnt lgkmcnt(0)')


def emit_chain_consts(a, w, par=0):
    i, g, t1, t2, vtq, vhf = 20, 21, 22, 23, 24, 25
    a(f'v_and_b32 v{i}, 15, v0')
    a(f'v_lshrrev_b32 v{g}, 4, v0')
    a(f'v_lshrrev_b32 v{t1}, 2, v{i}')
    a(f'v_and_b32 v{t2}, 1, v{i}')
    a(f'v_lshl_add_u32 v{vtq}, v{t1}, 1, v{t2}')
    a(f'v_bfe_u32 v{vhf}, v{i}, 1, 1')
    a(f'v_mov_b32 v26, v0')
    a(f'v_lshlrev_b32 v{vL16}, 4, v26')
    a(f'v_add_u32 v{vW16}, {L_WST + w * 32768}, v{vL16}')
    a('s_movk_i32 s3, 144')
    if w < 2:
        a(f'v_lshrrev_b32 v27, 1, v{i}')
        a(f'v_mul_lo_u32 v27, v27, s3')
        a(f'v_lshl_add_u32 v27, v{g}, 5, v27')
        a(f'v_lshl_add_u32 v27, v{t2}, 3, v27')
        a(f'v_add_u32 v{vXw}, {L_QM + 8 * w * 144}, v27')
    else:
        a(f'v_lshlrev_b32 v27, 1, v{t1}')
        a(f'v_mul_lo_u32 v27, v27, s3')
        a(f'v_lshl_add_u32 v27, v{g}, 5, v27')
        a(f'v_and_b32 v28, 3, v{i}')
        a(f'v_lshl_add_u32 v27, v28, 2, v27')
        a(f'v_add_u32 v{vXw}, {L_KM + 8 * (w - 2) * 144}, v27')
    a(f'v_mul_lo_u32 v27, v{g}, s3')
    a(f'v_lshl_add_u32 v27, v{vtq}, 4, v27')
    a(f'v_add_u32 v{vQr}, {L_QM}, v27')
    a(f'v_lshl_add_u32 v27, v{g}, 1, v{vhf}')
    a(f'v_mul_lo_u32 v27, v27, s3')
    a(f'v_lshl_add_u32 v27, v{vtq}, 4, v27')
    a(f'v_add_u32 v{vKr}, {L_KM}, v27')
    a(f'v_mul_u32_u24 v27, 0xaaaa, v{vhf}')
    a(f'v_add_u32 v{vIdx}, 0x4444, v27')
    a(f'v_lshlrev_b32 v27, 13, v{t1}')
    a(f'v_lshl_add_u32 v27, v{g}, 11, v27')
    a(f'v_and_b32 v28, 3, v{i}')
    a(f'v_lshl_add_u32 v27, v28, 4, v27')
    a(f's_lshl_b32 s3, s{sH}, 6')
    a(f's_add_u32 s3, s3, {8 * w * 8192}')
    a(f'v_add_u32 v{vPst}, s3, v27')
    for k in range(4):
        smov64(a, sSEL + 2 * k, mask64(lambda i, g: (i >> 1) == k))
    a(f'v_lshlrev_b32 v28, 10, v{vtq}')
    a(f'v_lshl_add_u32 v28, v{g}, 5, v28')
    a(f'v_lshl_add_u32 v28, v{vhf}, 4, v28')
    for T in range(2):
        for rho in range(4):
            m = mask64(lambda i, g: hf(i) == 1 and 16 * (g >> 1) + 8 * T + 4 * (g & 1) + rho > (16 * (w & 1) + 2 * tq(i) + (w >> 1) if par else 8 * w + tq(i)))
            smov64(a, sMASK + 2 * (4 * T + rho), m)
    smov64(a, sEM, 0x3333333333333333)
    smov64(a, sEX, 0xcccccccccccccccc)
    a(f's_mov_b32 s{sC}, {f32bits(SCALE_A):#x}')
    a(f's_mov_b32 s{sC + 1}, {f32bits(SCALE_A):#x}')
    a(f's_mov_b32 s{sStep}, 0')
    a(f's_lshl_b32 s3, s{sL}, 5')
    a(f's_add_u32 s3, s3, s{sH}')
    a('s_lshl_b32 s3, s3, 6')
    a(f's_mul_i32 s{sQKV}, s3, {QKV_BLK}')
    a(f's_lshl_b32 s{sOX}, s3, 13')
    a(f's_add_u32 s{sOX}, s{sOX}, {OX_OFF + 2048 * w}')
    a(f's_lshl_b32 s{sPb}, s{sL}, 19')
    a(f's_add_u32 s{sPb}, s{sPb}, {CPART_OFF}')
    a(f's_lshl_b32 s{sMb}, s{sL}, 15')
    a(f's_add_u32 s{sMb}, s{sMb}, {CMEM_OFF}')
    a(f's_lshl_b32 s3, s{sL}, 5')
    a(f's_add_u32 s3, s3, s{sH}')
    a('s_lshl_b32 s3, s3, 8')
    a(f's_add_u32 s{sFlag}, s3, {FLAG_OFF}')


def flag_wait(a, need_sreg, fail, preloaded=False):
    L, Lok = a.newlabel('FW'), a.newlabel('FOK')
    a('s_mov_b64 exec, 0xfff')
    if preloaded:
        a(f'v_cmp_gt_u32 vcc, s{need_sreg}, v{v9}')
        a(f's_cbranch_vccz {Lok}')
    a.label(L)
    spin_guard(a, sSpin, fail)
    a(f'buffer_load_dword v{v9}, v{vL16}, {WS}, s{sFlag} offen sc1')
    a(f'v_cmp_gt_u32 vcc, s{need_sreg}, v{v9}')
    a(f's_cbranch_vccnz {L}')
    a.label(Lok)
    a('s_mov_b64 exec, -1')


def prefetch_next(a):
    for key in S1A:
        for l in stage_reads(('qk',) + key):
            a(l)
    for t in range(4):
        a(f'v_mov_b64 {vr(ACC + 4 * t, 2)}, 0')
        a(f'v_mov_b64 {vr(ACC + 4 * t + 2, 2)}, 0')


def emit_chain_first(a, w, fail, d_ready, need2=True):
    RE, OK = a.newlabel('CF'), a.newlabel('CK')
    a(f's_mov_b32 s{sSpin}, 0')
    a(f's_cmp_eq_u32 s{sOKF}, 1')
    a(f's_cbranch_scc1 {OK}')
    a.label(RE)
    spin_guard(a, sSpin, fail)
    RF = a.newlabel('CG')
    a('s_cmp_ge_u32 s79, 48')
    a(f's_cbranch_scc1 {RF}')
    count_load(a, d_ready)
    a.label(RF)
    flag_load(a, 125)
    check_eval(a, 125, 1)
    a(f's_cbranch_scc0 {RE}')
    first_loads(a)
    if w == 0 and need2:
        a(f's_mov_b32 s{sT}, 2')
        flag_wait(a, sT, fail)
        a(f'v_mov_b32 v125, v{v9}')
    a.label(OK)
    a(f'v_mov_b32 v{v9}, v125')
    a('s_waitcnt vmcnt(0)')
    for k in range(2):
        a(f'ds_read_b128 {vr(A_ + 4 * k, 4)}, v{vL16} offset:{L_MEM + 1024 * (2 * w + k)}')
    prefetch_next(a)
    a(f's_mov_b32 s{sOXp}, {WS_BYTES}')
    a('s_waitcnt lgkmcnt(0)')


def emit_chain_loop(a0, w, fast, fail, done, prof=False, opt=None):
    opt = opt or {}
    drop = opt.get('drop', [])

    class Filt:
        def __call__(self, text):
            for line in text.split('\n'):
                if not any(re.search(p, line) for p in drop):
                    a0(line)

        def __getattr__(self, n):
            return getattr(a0, n)
    a = Filt()
    sc = '' if fast else ' sc1'
    LOOP = a.newlabel('CL')
    LAST = a.newlabel('CLAST')
    npr = [0]

    fine = opt.get('fine')

    def fstamp(name):
        if prof and fine and name in fine:
            a(f's_memtime {sr(sPROF + 16 + 2 * fine.index(name), 2)}')

    def stamp():
        if prof:
            a(f'{"s_memrealtime" if opt.get("rt") else "s_memtime"} {sr(sPROF + 2 * npr[0], 2)}')
            npr[0] += 1

    def smf(d, A, B):
        return f'v_smfmac_f32_16x16x64_bf16 {vr(d, 4)}, {vr(A, 4)}, {B}, v{vIdx}'

    Q_, VACC = S_ + 32, S_ + 48
    QA, QB, KM_ = S_ + 56, S_ + 40, S_ + 32
    QE = [QA, QA + 4, QB, QB + 4]
    T0, T1, TM = ACC, ACC + 4, X_
    DD = [S_ + 48 + 2 * U for U in range(8)]

    def ox_store(u, s0):
        return f'buffer_store_dwordx4 {vr(DD[2 * u], 4)}, v{vL16}, {WS}, s{s0} offen offset:{1024 * u} sc1'

    def ox_pack():
        o = [f's_mov_b64 vcc, {sr(sEX, 2)}']
        o += [f'v_cndmask_b32_dpp v{DD[0] + k}, v{DD[4] + k}, v{DD[0] + k}, vcc quad_perm:[2,3,2,3] row_mask:0xf bank_mask:0xf' for k in range(8)]
        o += [f'v_min_u32 v{DD[2 * u]}, -2, v{DD[2 * u]}' for u in range(2)]
        return o

    def memrd(k):
        return f'ds_read_b128 {vr(A_ + 4 * k, 4)}, v{vL16} offset:{L_MEM + 1024 * ((2 * w + k) & 7)}'
    sal = [f's_add_u32 s{sQx}, s{sQKV}, {16384 + 2048 * w}',
           f's_add_u32 s{sQKVn}, s{sQKV}, {0 if opt.get("samekv") else QKV_BLK}', f's_add_u32 s{sQx2}, s{sQKVn}, {8192 * max(w - 1, 0)}']
    for l in sal:
        a(l)
    a(f'v_lshlrev_b32 v{vOx}, 3, v{vL16}')
    a(f's_branch {LOOP}')
    i_loop = len(a0.items)
    a.label(LOOP)
    mreg = opt.get('mreg', 3)
    if not mreg:
        a('s_barrier')
    stamp()
    order = [(t, kt) for kt in range(6) for t in range(4)] + [(t, kt) for t in range(4) for kt in (6, 7)]
    mem = [[] for _ in range(32)]
    alu = [[] for _ in range(32)]
    qearly = opt.get('qearly', 0)
    qld = [f'buffer_load_dwordx4 {vr(QA + 4 * p, 4)}, v{vL16}, {WS}, s{sQx} offen offset:{1024 * p} sc1' for p in range(2)]
    vm = ['\n'.join(qld)] if qearly else []
    kpv = opt.get('kpv', 0)
    kreal = 0 if kpv else opt.get('kreal', 1)
    vlate = opt.get('vlate', 0)
    if w > (1 if kreal else 0) and opt.get('warm', 1):
        vm.append(f'buffer_load_dword v{v8}, v{vOx}, {WS}, s{sQx2} offen sc1')
    flag_ld = f's_mov_b64 exec, 0xfff\nbuffer_load_dword v{v9}, v{vL16}, {WS}, s{sFlag} offen sc1\ns_mov_b64 exec, -1'
    fresh = opt.get('fresh', 0)
    fresh2 = opt.get('fresh2', 0)
    if fresh2:
        vm = [flag_ld] + vm
    if kpv and w == 0:
        vm = [flag_ld] + vm
    if fresh:
        vm = [flag_ld + ''.join('\n' + x for x in vm)]
    vm += [ox_store(0, sOXp), ox_store(1, sOXp)]
    for k, l in enumerate(vm):
        mem[4 * k + w].append(l)
    rd = [memrd(k) for k in range(2, 8)]
    rd += [l for key in S1C + S1B for l in stage_reads(('qk',) + key)]
    if mreg:
        kb = mreg - 1
        mem[kb] += ['s_waitcnt lgkmcnt(0)', 's_barrier', rd[0], rd[1]]
        mem[kb + 1] += [rd[2], rd[3]]
        mem[kb + 2] += [rd[4], rd[5]]
        for k, l in enumerate(rd[6:]):
            mem[max(6 + k, kb + 3 + k // 2 if k < 4 else 0)].append(l)
        for k in range(32):
            far = [l for l in mem[k] if l.startswith('buffer')]
            if far and k <= kb:
                mem[k] = [l for l in mem[k] if not l.startswith('buffer')]
                mem[kb + 1 + k] += far
    else:
        for k, l in enumerate(rd):
            mem[k].append(l)
    for j in range(8):
        mem[21 + j].append(f'ds_read_b128 {vr(S_ + 4 * j, 4)}, v{vL16} offset:{L_KX + j * 1024}')
    qmv = [f'v_mov_b32_dpp v{QB + k}, v{QA + k} quad_perm:[0,1,0,1] row_mask:0xf bank_mask:0xf' for k in range(8)]
    if qearly:
        for k in range(4):
            alu[17 + k].append(f'v_mov_b64 {vr(VACC + 2 * k, 2)}, 0')
        alu[21].append(f'v_mov_b32 v{vT1}, {NEG:#x}')
        for k in range(5):
            alu[22 + k].append(qmv[k])
        qrest = qmv[5:]
    else:
        for k in range(4):
            alu[13 + k].append(f'v_mov_b64 {vr(VACC + 2 * k, 2)}, 0')
        for k in range(8):
            alu[18 + k].append(qmv[k])
        alu[26].append(f'v_mov_b32 v{vT1}, {NEG:#x}')
        qrest = []
    for k, (tt, x) in zip((27, 28, 29, 30, 31, 31), ((0, 0), (0, 1), (1, 0), (1, 1), (2, 0), (2, 1))):
        alu[k].append(f'v_add_f32 v{ACC + 4 * tt + x}, v{ACC + 4 * tt + x}, v{ACC + 4 * tt + 2 + x}')
    FSL, FRET = a.newlabel('FSL'), a.newlabel('FRET')
    fhop = opt.get('fhop', 1) and not fresh2
    if w == 0 and not fhop and not fresh2:
        mem[6] += [f's_add_u32 s{sT}, s{sStep}, 2', f's_min_u32 s{sT}, s{sT}, {NSEG}']
        alu[7] += ['s_mov_b64 exec, 0xfff', f'v_cmp_gt_u32 vcc, s{sT}, v{v9}', 's_mov_b64 exec, -1']
        mem[10] += [f's_cbranch_vccnz {FSL}', FRET + ':']
    for k, (t, kt) in enumerate(order):
        a(smf(ACC + 4 * t, A_ + 4 * kt, bop(('qk', t, kt))))
        for l in mem[k] + alu[k]:
            a(l)
    stamp()
    for x in range(2):
        a(f'v_cvt_pk_bf16_f32 v{X_ + 2 * x}, v{ACC + x}, v{ACC + 4 + x}')
    masks = [f'v_cndmask_b32 v{T0 + k}, 0, v{vT1}, {sr(sMASK + 2 * k, 2)}' for k in range(8)]
    pend = qrest + masks
    a(pend.pop(0))
    a(pend.pop(0))
    for x in range(2):
        a(f'v_add_f32 v{ACC + 12 + x}, v{ACC + 12 + x}, v{ACC + 14 + x}')
    for x in range(2):
        a(f'v_cvt_pk_bf16_f32 v{X_ + 2 * x + 1}, v{ACC + 8 + x}, v{ACC + 12 + x}')
    for x in range(2):
        if w < 2:
            a(f'ds_write_b64 v{vXw}, {vr(X_ + 2 * x, 2)} offset:{16 * x}')
        else:
            a(f'ds_write2_b32 v{vXw}, v{X_ + 2 * x}, v{X_ + 2 * x + 1} offset0:{4 * x} offset1:{36 + 4 * x}')
    vlist = [(t, kt) for kt in range(8) for t in range(2)]
    vi = [0]

    def vmf(n, fillers=()):
        fillers = list(fillers)
        for _ in range(n):
            t, kt = vlist[vi[0]]
            vi[0] += 1
            a(smf(VACC + 4 * t, A_ + 4 * ((kt - 2 * w) & 7), bop(('v', t, kt))))
            if fillers:
                a(fillers.pop(0))
        for l in fillers:
            a(l)
    PX, PM = ACC + 12, ACC + 8
    n1, n2 = opt.get('nv1', 5), opt.get('nv2', 5)
    todo = pend + [f'v_mov_b32 v{PM + 1}, 0', f'v_mov_b32 v{PM + 2}, 0']
    f1 = todo[:n1]
    f1[0] = f's_mov_b32 m0, {L_KX + 2048 * w}\ns_add_u32 s{sT}, s{sQKVn}, {2048 * w}\n' + f1[0]
    vmf(n1, f1)
    todo = todo[n1:]
    a('s_waitcnt lgkmcnt(0)')
    a('s_barrier')
    stamp()
    a(f's_mov_b64 exec, {sr(sEM, 2)}')
    for E in range(4):
        a(f'ds_read_b128 {vr(QE[E], 4)}, v{vQr} offset:{576 * E}')
    a('s_mov_b64 exec, -1')
    for z in range(2):
        a(f'ds_read_b128 {vr(KM_ + 4 * z, 4)}, v{vKr} offset:{1152 * z}')
    fstamp('rd')
    kk = [f'buffer_load_dwordx4 v{vL16}, {WS}, s{sT} offen offset:{1024 * p} sc1 lds' if kreal else '' for p in range(2)]
    kkf = kk
    klate = opt.get('klate', 'sm')
    if fresh or klate is not None:
        kk = ['', '']
    todo += [f'v_mov_b64 {vr(TM, 2)}, 0', f'v_mov_b64 {vr(TM + 2, 2)}, 0']
    fl = [kk[0] if k == w else '' for k in range(n2)]
    for k, l in enumerate(todo):
        fl[k % n2] += '\n' + l
    vmf(n2, fl)
    fstamp('v2')
    VX_ = S_
    vxr = [f'ds_read_b128 {vr(VX_ + 4 * U, 4)}, v{vL16} offset:{L_VX + 1024 * U}' for U in range(8)]

    def sc_(E, T):
        return f'v_mfma_f32_16x16x32_bf16 {vr(T0 + 4 * T, 4)}, {vr(S_ + 16 * T + 4 * E, 4)}, {vr(QE[E], 4)}, {vr(T0 + 4 * T, 4)}'
    seq = [sc_(0, 0), sc_(0, 1), sc_(1, 0), sc_(1, 1), smf(TM, KM_, vr(QE[0], 8)), sc_(2, 0), sc_(2, 1),
           smf(TM, KM_ + 4, vr(QE[2], 8)), sc_(3, 0), sc_(3, 1)]
    after = {1: [vxr[0]], 2: [vxr[4]], 3: [vxr[1]], 4: [vxr[5]], 6: [vxr[2]], 7: [vxr[6]], 9: [vxr[3], vxr[7]]}
    for k, l in enumerate(seq):
        a(l)
        if k == w:
            a(kk[1])
        if w == 0 and k == 5 and not fresh and not fresh2 and not kpv and opt.get('fpos', -5) < 0:
            a(flag_ld)
        if fresh:
            kp = opt.get('kp', 5)
            if k == kp - 3:
                a(f's_add_u32 s{sT2}, s{sStep}, 2')
                a(f's_min_u32 s{sT2}, s{sT2}, {NSEG}')
                a('s_mov_b64 exec, 0xfff')
                a(f'v_cmp_gt_u32 vcc, s{sT2}, v{v9}')
                a('s_mov_b64 exec, -1')
            if k == kp:
                a(f's_cbranch_vccnz {FSL}')
                a.label(FRET)
                a(kkf[0])
            if k == kp + 2:
                a(kkf[1])
        for x in after.get(k, []):
            a(x)
        fstamp(f'sc{k}')
    stamp()
    a(f'v_add_f32 v{TM}, v{TM}, v{TM + 2}')
    a(f'v_add_f32 v{TM + 1}, v{TM + 1}, v{TM + 3}')
    a(f'v_max3_f32 v{vT0}, v{TM}, v{TM + 1}, v{T0}')
    a(f'v_max3_f32 v{vT0}, v{vT0}, v{T0 + 1}, v{T0 + 2}')
    if opt.get('m7', 1):
        vmf(1)
    a(f'v_max3_f32 v{vT0}, v{vT0}, v{T0 + 3}, v{T1}')
    a(f'v_max3_f32 v{vT0}, v{vT0}, v{T1 + 1}, v{T1 + 2}')
    a(f'v_max_f32 v{vT1}, v{vT0}, v{T1 + 3}')
    a(f'v_max_f32 v{vT0}, v{vT0}, v{T1 + 3}')
    vmf(1)
    a(f'v_permlane16_swap_b32 v{vT0}, v{vT1}')
    a(f'v_max_f32 v{vT0}, v{vT0}, v{vT1}')
    a(f'v_mov_b32 v{vT1}, v{vT0}')
    vmf(1)
    a(f'v_permlane32_swap_b32 v{vT0}, v{vT1}')
    a(f'v_max_f32 v{vT0}, v{vT0}, v{vT1}')
    a(f'v_mul_f32 v{vT0}, s{sC}, v{vT0}')
    sc_regs = [T0 + k for k in range(8)] + [TM, TM + 1]
    if fresh2:
        a(f's_add_u32 s{sT2}, s{sStep}, 2')
        a(f's_min_u32 s{sT2}, s{sT2}, {NSEG}')
        a('s_mov_b64 exec, 0xfff')
        a(f'v_cmp_gt_u32 vcc, s{sT2}, v{v9}')
        a('s_mov_b64 exec, -1')
    a(f'v_fma_f32 v{TM}, v{TM}, s{sC}, -v{vT0}')
    a(f'v_fma_f32 v{TM + 1}, v{TM + 1}, s{sC}, -v{vT0}')
    for k in range(4):
        a(f'v_pk_fma_f32 {vr(T0 + 2 * k, 2)}, {vr(T0 + 2 * k, 2)}, {sr(sC, 2)}, {vr(vT0, 2)} op_sel_hi:[1,1,0] neg_lo:[0,0,1] neg_hi:[0,0,1]')
    kpos = opt.get('kpos', (0, 2))
    for ir, r in enumerate(sc_regs):
        if vi[0] < 16:
            vmf(1)
        if klate == 'sm' and ir in kpos:
            a(kkf[kpos.index(ir)])
        a(f'v_exp_f32 v{r}, v{r}')
    assert vi[0] == 16
    vx_ = [f'v_pk_add_f32 {vr(VACC + 4 * t, 2)}, {vr(VACC + 4 * t, 2)}, {vr(VACC + 4 * t + 2, 2)}' for t in range(2)]
    vx_ += [f'v_cvt_pk_bf16_f32 v{VACC + t}, v{VACC + 4 * t}, v{VACC + 4 * t + 1}' for t in range(2)]
    vx_ += [f'ds_write_b64 v{vL16}, {vr(VACC, 2)} offset:{L_VM + (w >> 1) * 1024 + (w & 1) * 8}']
    a(vx_[0])
    a(f'v_pk_add_f32 {vr(vT0, 2)}, {vr(T0, 2)}, {vr(T0 + 2, 2)}')
    a(f'v_pk_add_f32 {vr(TM + 2, 2)}, {vr(T1, 2)}, {vr(T1 + 2, 2)}')
    a(f'v_pk_add_f32 {vr(vT0, 2)}, {vr(vT0, 2)}, {vr(TM, 2)}')
    a(f'v_pk_add_f32 {vr(vT0, 2)}, {vr(vT0, 2)}, {vr(TM + 2, 2)}')
    a(vx_[1])
    a(f'v_add_f32 v{TM + 2}, v{vT0}, v{vT1}')
    a(f'v_add_f32 v{vT0}, v{vT0}, v{vT1}')
    a(vx_[2])
    a(vx_[3])
    a(f'v_permlane16_swap_b32 v{vT0}, v{TM + 2}')
    a(f'v_add_f32 v{vT1}, v{vT0}, v{TM + 2}')
    a(f'v_add_f32 v{vT0}, v{vT0}, v{TM + 2}')
    a(vx_[4])
    if kpv and w == 0:
        a(f's_add_u32 s{sT}, s{sStep}, 2')
        a(f's_min_u32 s{sT}, s{sT}, {NSEG}')
        a('s_mov_b64 exec, 0xfff')
        a(f'v_cmp_gt_u32 vcc, s{sT}, v{v9}')
        a('s_mov_b64 exec, -1')
    else:
        a(f's_mov_b64 vcc, {sr(sEM, 2)}')
    a(f'v_permlane32_swap_b32 v{vT0}, v{vT1}')
    a(f'v_add_f32 v{vT0}, v{vT0}, v{vT1}')
    a(f'v_rcp_f32 v{vT0}, v{vT0}')
    a(f's_mov_b32 m0, {L_VX + 2048 * w}')
    for k in range(5):
        r = sc_regs[2 * k]
        a(f'v_pk_mul_f32 {vr(r, 2)}, {vr(r, 2)}, {vr(vT0, 2)} op_sel_hi:[1,0]')
    for k in range(4):
        a(f'v_cvt_pk_bf16_f32 v{PX + k}, v{T0 + 2 * k}, v{T0 + 2 * k + 1}')
    a(f'v_cvt_pk_bf16_f32 v{PM}, v{TM}, v{TM + 1}')
    a(f'v_cvt_pk_bf16_f32 v{PM + 3}, v{TM}, v{TM + 1}')
    vsetup = [f's_mov_b32 m0, {L_VX + 2048 * w}', f's_add_u32 s{sT2}, s{sQKVn}, {8192 + 2048 * w}']
    b3chk = []
    if kpv:
        vsetup = [f's_mov_b32 m0, {L_KX + 4096 * w}', f's_add_u32 s{sT2}, s{sQKVn}, {4096 * w}']
        if w == 0:
            b3chk = [f's_cbranch_vccnz {FSL}', FRET + ':', f's_mov_b64 vcc, {sr(sEM, 2)}', f's_cmp_eq_u32 s{sStep}, {NSEG - 1}']
    stamp()
    VM_ = S_ + 56
    OA = [Q_ + 4 * U for U in range(4)] + [VX_ + 4 * U for U in range(4)]
    WA = [A_ + 4 * t for t in range(8)]
    AP = [Q_ + 8, Q_ + 12]
    s3 = [l for key in S3 for l in stage_reads(('o',) + key)]

    def pvx(U):
        return f'v_mfma_f32_16x16x32_bf16 {vr(OA[U], 4)}, {vr(VX_ + 4 * U, 4)}, {vr(PX, 4)}, 0'

    def pvm(U):
        return f'v_mfma_f32_16x16x16_bf16 {vr(OA[U], 4)}, {vr(VM_ + 2 * (U >> 1), 2)}, {vr(PM + 2 * (U & 1), 2)}, {vr(OA[U], 4)}'

    def dcvt(U):
        return [f'v_cvt_pk_bf16_f32 v{DD[U] + d}, v{OA[U] + 2 * d}, v{OA[U] + 2 * d + 1}' for d in range(2)]

    def apx(U):
        return f'v_cndmask_b32_dpp v{AP[U >> 2] + (U & 3)}, v{DD[U] + 1}, v{DD[U]}, vcc quad_perm:[0,1,0,1] row_mask:0xf bank_mask:0xf'

    def zmov(r):
        return [f'v_mov_b64 {vr(r, 2)}, 0', f'v_mov_b64 {vr(r + 2, 2)}, 0']
    kd = [f'buffer_load_dwordx4 v{vL16}, {WS}, s{sT2} offen offset:{1024 * p} sc1 lds' for p in range(4)]
    vmr = [f'ds_read_b128 {vr(VM_ + 4 * hh, 4)}, v{vL16} offset:{L_VM + 1024 * hh}' for hh in range(2)]
    zz = [l for t in range(8) for l in zmov(WA[t])]
    z4 = opt.get('z4', 0)
    pv = [(pvx(0), (zz[12:14] if z4 else []) + ['s_waitcnt lgkmcnt(0)', 's_barrier'] + vmr),
          (pvx(1), [vsetup[1], f's_cmp_eq_u32 s{sStep}, {NSEG - 1}'] + zz[0:2]),
          (pvx(2), zz[2:4]),
          (pvx(3), zz[4:6]),
          (pvx(4), zz[6:8]),
          (pvm(0), zz[8:10]),
          (pvm(1), zz[10:12] + (vsetup[:1] if vlate else [])),
          (pvm(2), dcvt(0)),
          (pvm(3), dcvt(1)),
          (pvx(5), dcvt(2)),
          (pvm(4), dcvt(3)),
          (pvx(6), [apx(0), apx(1)]),
          (pvm(5), [apx(2), apx(3)]),
          (pvx(7), dcvt(4)),
          (pvm(6), dcvt(5)),
          (pvm(7), [f's_cbranch_scc1 {LAST}', apx(4), apx(5)])]
    for k, (m, fl) in enumerate(pv):
        a(m)
        if w == 0 and k == opt.get('fpos', -5) + 1:
            a(flag_ld)
        if klate == 'pv':
            if k == 0:
                a(kkf[0])
            if k == 2 + (w >> 1):
                a(kkf[1])
            if k == 5:
                a(vsetup[0])
        if kpv:
            if k >= 1 and (k - 1) % 4 == w and (k - 1) // 4 < 3:
                a(kd[(k - 1) // 4])
            if k == 12 + w:
                a(kd[3])
        else:
            if not vlate and k == 7 + w:
                a(kd[0])
            if not vlate and k == 11 + w:
                a(kd[1])
        for l in fl:
            a(l)
        fstamp(f'pv{k}')
    PD = [ACC + 8, ACC + 12]
    d6, d7 = dcvt(6), dcvt(7)
    za = [[s3[0], s3[1], f's_and_b32 s{sT}, s{sStep}, 1', d6[0]],
          [s3[2], f's_lshl_b32 s{sT}, s{sT}, 18', d6[1], d7[0]],
          [s3[3], f's_add_u32 s{sP}, s{sPb}, s{sT}', d7[1]],
          [apx(6), apx(7), f's_add_u32 s{sPr}, s{sP}, {4 * 8192}', f's_bfe_u32 s{sTag}, s{sStep}, 0x10001']]
    for t in range(4):
        a(smf(WA[t], AP[0], bop(('o', t, 0))))
        for l in za[t]:
            a(l)
    fstamp('z0a')
    for t in range(4):
        a(smf(WA[t], AP[1], bop(('o', t, 1))))
        a(s3[4 + t])
        if t < 2:
            if not z4:
                a(zz[12 + t])
            a(zz[14 + t])
        else:
            a(f'v_add_f32 v{WA[0] + t - 2}, v{WA[0] + t - 2}, v{WA[0] + t}')
    fstamp('z1a')
    ep = []
    for t in (1, 2, 3):
        ep += [f'v_add_f32 v{WA[t] + x}, v{WA[t] + x}, v{WA[t] + 2 + x}' for x in range(2)]
    ep += [f'v_cvt_pk_bf16_f32 v{PD[0] + 2 * x + j}, v{WA[2 * j] + x}, v{WA[2 * j + 1] + x}' for x in range(2) for j in range(2)]
    ep += [f'v_and_or_b32 v{PD[0]}, v{PD[0]}, -2, s{sTag}']
    swp = w & XW
    st0 = f'buffer_store_dwordx4 {vr(PD[0], 4)}, v{vPst}, {WS}, s{sPr if swp else sP} offen{sc}'
    seq = [(t, 0) for t in range(4, 8)] + [(t, 1) for t in range(4, 8)]
    for k, (t, z) in enumerate(seq):
        a(smf(WA[t], AP[z], bop(('o', t, z))))
        if k < 5:
            for _ in range(2):
                a(ep.pop(0))
        elif k == 5:
            a(ep.pop(0))
        elif k == 6:
            a(st0)
            a(f'v_add_f32 v{WA[4]}, v{WA[4]}, v{WA[4] + 2}')
        elif k == 7:
            a(f'v_add_f32 v{WA[4] + 1}, v{WA[4] + 1}, v{WA[4] + 3}')
    assert not ep
    fstamp('z1b')
    for x in range(2):
        a(f'v_add_f32 v{WA[5] + x}, v{WA[5] + x}, v{WA[5] + 2 + x}')
    a(f'v_cvt_pk_bf16_f32 v{PD[1]}, v{WA[4]}, v{WA[5]}')
    for x in range(2):
        a(f'v_add_f32 v{WA[6] + x}, v{WA[6] + x}, v{WA[6] + 2 + x}')
    a(f'v_cvt_pk_bf16_f32 v{PD[1] + 2}, v{WA[4] + 1}, v{WA[5] + 1}')
    a(f'v_and_or_b32 v{PD[1]}, v{PD[1]}, -2, s{sTag}')
    a(f'v_pk_add_f32 {vr(WA[7], 2)}, {vr(WA[7], 2)}, {vr(WA[7] + 2, 2)}')
    for x in range(2):
        a(f'v_cvt_pk_bf16_f32 v{PD[1] + 2 * x + 1}, v{WA[6] + x}, v{WA[7] + x}')
    a(f'buffer_store_dwordx4 {vr(PD[1], 4)}, v{vPst}, {WS}, s{sP if swp else sPr} offen{sc}')
    stamp()
    R_, SELR, RACC, SEN, vRl, vMs = A_ + 8, X_, A_ + 16, A_ + 20, A_ + 22, A_ + 23
    if vlate:
        a(kd[0])
        a(kd[1])
    a(f's_lshl_b32 s{sT}, s{sH}, 13')
    a(f's_add_u32 s{sP}, s{sP}, s{sT}')
    a(f's_add_u32 s{sP}, s{sP}, {2048 * w}')
    pre = [f'v_and_b32 v{vT0}, 16, v{vL16}', f'v_mov_b32 v{vT1}, 0x3f80', f'v_lshlrev_b32 v{vT0}, v{vT0}, v{vT1}']
    pre += [f'v_cndmask_b32 v{SELR + k}, 0, v{vT0}, {sr(sSEL + 2 * k, 2)}' for k in range(4)]
    pre += [f'v_mov_b64 {vr(SEN, 2)}, -1']
    pre += [f'v_bfe_u32 v{vT0}, v{vL16}, 4, 1', f'v_lshrrev_b32 v{vT1}, 8, v{vL16}', f'v_lshl_add_u32 v{vT0}, v{vT1}, 1, v{vT0}',
            f'v_and_b32 v{vT1}, 32, v{vL16}', f'v_lshl_add_u32 v{vMs}, v{vT0}, 3, v{vT1}']
    pre += [f's_and_b32 s{sT}, s{sStep}, 3', f's_lshl_b32 s{sT}, s{sT}, 13', f's_add_u32 s{sM}, s{sMb}, s{sT}',
            f's_add_u32 s{sMw}, s{sM}, {2048 * w}', f's_xor_b32 s{sT}, s{sT}, {2 << 13}', f's_add_u32 s{sMr}, s{sMb}, s{sT}',
            f's_lshl_b32 s{sT}, s{sH}, 8', f's_add_u32 s{sM}, s{sM}, s{sT}', f's_add_u32 s{sMr}, s{sMr}, s{sT}',
            f's_mov_b32 s{sOXp}, s{sOX}', f's_mov_b32 m0, {L_MEM + 2048 * w if kreal or kpv else L_KX + 2048 * w}']
    pre += [f's_mov_b32 s{sSpin}, 0']
    pre += ox_pack()
    pre += [l for key in S1A for l in stage_reads(('qk',) + key)]
    pre += [l for t in range(4) for l in zmov(ACC + 4 * t)]
    npre = opt.get('npre', 52)
    rl = [f'buffer_load_dwordx4 {vr(R_ + 4 * u, 4)}, v{vL16}, {WS}, s{sP} offen offset:{1024 * u} sc1' for u in range(2)]
    h1lds = opt.get('h1lds', 0)
    if h1lds:
        rl = [f'buffer_load_dwordx4 v{vL16}, {WS}, s{sP} offen offset:{1024 * u} sc1 lds' for u in range(2)]
    for k, l in enumerate(pre[:npre]):
        if opt.get('dummy1') == k:
            for x in rl:
                a(x.replace(vr(R_, 4), vr(A_ + 24, 4)).replace(vr(R_ + 4, 4), vr(A_ + 28, 4)))
        a(l)
    for _ in range(opt.get('d1', 0)):
        a('s_nop 15')
    if opt.get('a1') is not None:
        a(f's_waitcnt vmcnt({opt["a1"]})')
    for l in rl:
        a(l)
    for l in pre[npre:]:
        a(l)
    RT, ROK = a.newlabel('RT'), a.newlabel('ROK')
    if h1lds:
        a('s_waitcnt vmcnt(0)')
    a.label(RT)
    if h1lds:
        for u in range(2):
            a(f'ds_read_b128 {vr(R_ + 4 * u, 4)}, v{vL16} offset:{L_MEM + 2048 * w + 1024 * u}')
    rm_ = [f'v_mfma_f32_16x16x32_bf16 {vr(RACC, 4)}, {vr(SELR, 4)}, {vr(R_, 4)}, 0',
           f'v_mfma_f32_16x16x32_bf16 {vr(RACC, 4)}, {vr(SELR, 4)}, {vr(R_ + 4, 4)}, {vr(RACC, 4)}']
    rc_ = [f'v_xor_b32 v{vT0}, s{sTag}, v{R_}', f'v_bitop3_b32 v{vT0}, v{vT0}, v{R_ + 4}, s{sTag} bitop3:0xf6',
           f'v_and_b32 v{vT0}, 1, v{vT0}', f'v_cmp_ne_u32 vcc, 0, v{vT0}']
    if opt.get('r3', 2) == 1:
        seq_ = rc_ + rm_
    elif opt.get('r3', 2) == 2:
        seq_ = [rm_[0]] + rc_ + [rm_[1]]
    else:
        seq_ = [rm_[0], rc_[0], rm_[1]] + rc_[1:]
    for l in seq_:
        a(l)
    if opt.get('r4', 1):
        GOOD = a.newlabel('RG')
        a(f's_cbranch_vccz {GOOD}')
        a('s_mov_b64 exec, vcc')
        for l in rl:
            a(l)
        a('s_mov_b64 exec, -1')
        spin_guard(a, sSpin, fail)
        a(f's_branch {RT}')
        a.label(GOOD)
    elif not opt.get('r2', 0):
        a(f's_cbranch_vccnz {ROK}')
    RT1 = RT
    for sh in (4, 8):
        for k in range(4):
            a(f'v_add_f32_dpp v{RACC + k}, v{RACC + k}, v{RACC + k} row_ror:{sh} row_mask:0xf bank_mask:0xf')
    a(f'v_cvt_pk_bf16_f32 v{vT0}, v{RACC}, v{RACC + 1}')
    a(f'v_cvt_pk_bf16_f32 v{vT1}, v{RACC + 2}, v{RACC + 3}')
    a(f'v_min_u32 v{vT0}, -2, v{vT0}')
    a('s_mov_b64 exec, 0xf000f')
    if opt.get('r2', 0):
        a(f's_cbranch_vccnz {ROK}')
    a(f'buffer_store_dwordx2 {vr(vT0, 2)}, v{vMs}, {WS}, s{sM} offen offset:{64 * w}{sc}')
    stamp()
    a(f'buffer_store_dwordx2 {vr(SEN, 2)}, v{vMs}, {WS}, s{sMr} offen offset:{64 * w}{sc}')
    a('s_mov_b64 exec, -1')
    a(f's_add_u32 s{sStep}, s{sStep}, 1')
    a(f's_mov_b32 s{sQKV}, s{sQKVn}')
    a(f's_add_u32 s{sOX}, s{sOX}, 8192')
    for l in sal:
        a(l)
    qafter = opt.get('qafter', 0)
    if not qearly and not qafter:
        for l in qld:
            a(l)
    if not kreal and not kpv:
        a(f's_add_u32 s{sT}, s{sQKV}, {2048 * w}')
        for p in range(2):
            a(f'buffer_load_dwordx4 v{vL16}, {WS}, s{sT} offen offset:{1024 * p} sc1 lds')
        a(f's_mov_b32 m0, {L_MEM + 2048 * w}')
    if w == 0 and fhop:
        a(f's_add_u32 s{sT}, s{sStep}, 2')
        a(f's_min_u32 s{sT}, s{sT}, {NSEG}')
        a('s_mov_b64 exec, 0xfff')
        a(f'v_cmp_gt_u32 vcc, s{sT}, v{v9}')
        a('s_mov_b64 exec, -1')
        a(f's_cbranch_vccnz {FSL}')
        a.label(FRET)
    for _ in range(opt.get('d2', 0)):
        a('s_nop 7')
    if opt.get('dummy2'):
        for k in range(2):
            a(f'buffer_load_dwordx4 v{vL16}, {WS}, s{sMw} offen offset:{1024 * k} sc1 lds')
    if opt.get('a2', 0) is not None:
        a(f's_waitcnt vmcnt({opt.get("a2", 0)})')
    md = [f'buffer_load_dwordx4 v{vL16}, {WS}, s{sMw} offen offset:{1024 * k} sc1 lds' for k in range(2)]
    if mreg:
        md = [f'buffer_load_dwordx4 {vr(A_ + 4 * k, 4)}, v{vL16}, {WS}, s{sMw} offen offset:{1024 * k} sc1' for k in range(2)]
    for l in md:
        a(l)
    if qafter:
        for l in qld:
            a(l)
    H2, RT, MRE = a.newlabel('H2'), a.newlabel('MT'), a.newlabel('MRE')
    a(f's_branch {H2}')
    i_h2 = len(a0.items)
    a.label(H2)
    if not mreg:
        a(f's_waitcnt vmcnt({2 if qafter else 0})')
    a.label(RT)
    if not mreg:
        a(memrd(0))
        a(memrd(1))
    a(f'v_max_u32 v{vT0}, v{A_}, v{A_ + 2}')
    a(f'v_max3_u32 v{vT0}, v{vT0}, v{A_ + 4}, v{A_ + 6}')
    a(f'v_cmp_eq_u32 vcc, -1, v{vT0}')
    if mreg:
        for k in range(2):
            a(f'ds_write_b128 v{vL16}, {vr(A_ + 4 * k, 4)} offset:{L_MEM + 2048 * w + 1024 * k}')
    a(f's_cbranch_vccnz {MRE}')
    if prof:
        stamp()
        a('s_waitcnt lgkmcnt(0)')
        a(f's_lshl_b32 s{sT}, s{sL}, 5')
        a(f's_add_u32 s{sT}, s{sT}, s{sH}')
        a(f's_lshl_b32 s{sT}, s{sT}, 2')
        a(f's_add_u32 s{sT}, s{sT}, {w}')
        a(f's_lshl_b32 s{sT}, s{sT}, 6')
        a(f's_add_u32 s{sT}, s{sT}, s{sStep}')
        a(f's_lshl_b32 s{sT}, s{sT}, 6')
        a(f's_add_u32 s{sT}, s{sT}, {PROF_OFF}')
        for k in range(10):
            a(f'v_writelane_b32 v{vT0}, s{sPROF + 2 * k}, {k}')
        a(f'v_writelane_b32 v{vT0}, s{sSpin}, 15')
        a(f'v_lshrrev_b32 v{vT1}, 2, v{vL16}')
        a('s_mov_b64 exec, 0xffff')
        a(f'buffer_store_dword v{vT0}, v{vT1}, {WS}, s{sT} offen')
        a('s_mov_b64 exec, -1')
    tail = a0.items[i_h2:]
    del a0.items[i_h2:]
    a0.items[i_loop:i_loop] = tail
    a.label(ROK)
    a('s_mov_b64 exec, vcc')
    for l in rl:
        a(l)
    a('s_mov_b64 exec, -1')
    spin_guard(a, sSpin, fail)
    a(f's_branch {RT1}')
    a.label(MRE)
    a('s_mov_b64 exec, vcc')
    for l in md:
        a(l)
    a('s_mov_b64 exec, -1')
    spin_guard(a, sSpin, fail)
    if opt.get('mwait'):
        a('s_waitcnt vmcnt(0)')
    a(f's_branch {RT}')
    if w == 0 or fresh or fresh2:
        a.label(FSL)
        flag_wait(a, sT2 if fresh or fresh2 else sT, fail)
        a(f's_branch {FRET}')
    a.label(LAST)
    for U in range(6, 8):
        for l in dcvt(U):
            a(l)
    for l in ox_pack():
        a(l)
    for u in range(2):
        a(ox_store(u, sOX))
    a(f's_branch {done}')
```

```python
from asmlib import *
from layout import *

vL16, vC, vSt, vT0, vT1 = 0, 1, 2, 3, 4
vVw, vVr, vC0, vOne = 52, 53, 54, 136
vD, vF, vF0 = 8, 16, 128
ACC, PK, SEN, FR, ST = 24, 40, 48, 64, 96
(sN0, sN1, sCL, sCS, sNL, sNS, sML, sMS, sSrc, sSrc2, sFl0, sPF, sPV, sSpin, sT, sT2, sLN, sLM,
 sDD, sDC, sDF, sDV, sBC, sBN, sBM, sM0, sM1, sW13, sED, sEC) = range(20, 50)
sQF, sQV, sPL, sBX, sL0, sU = 54, 55, 56, 57, 60, 61
L_VERD = 98304
HEAD = 18


def emit_proj_setup(a, meanwhile, par=False):
    a(f's_load_dwordx4 s[40:43], s[0:1], {KA_WQ}')
    a(f's_load_dwordx2 s[44:45], s[0:1], {KA_WV}')
    a('v_lshrrev_b32 v1, 4, v0')
    a('v_and_b32 v2, 15, v0')
    a('v_lshlrev_b32 v3, 13, v1')
    a('v_lshl_add_u32 v3, v2, 4, v3')
    a('s_waitcnt lgkmcnt(0)')
    a(f's_cmp_eq_u32 s{sL}, 0')
    a('s_cselect_b32 s4, s42, s44')
    a('s_cselect_b32 s5, s43, s45')
    a(f's_cmp_eq_u32 s{sL}, 2')
    a('s_cselect_b32 s4, s40, s4')
    a('s_cselect_b32 s5, s41, s5')
    a('s_mov_b32 s6, 0x400000')
    a('s_mov_b32 s7, 0x20000')
    a(f's_lshl_b32 s20, s{sH}, 8')
    a(f's_lshl_b32 s21, s{sW}, 15')
    a('s_add_u32 s20, s20, s21')
    a(f's_lshl_b32 s21, s{sW}, 10')
    for q in range(32):
        a(f's_add_u32 m0, s21, {q * 4096}')
        a(f's_add_u32 s22, s20, {q * 16 * 8192}')
        a('buffer_load_dwordx4 v3, s[4:7], s22 offen lds')
    meanwhile()
    a('v_lshrrev_b32 v4, 2, v2')
    a('v_lshrrev_b32 v5, 1, v1')
    a('v_lshl_add_u32 v4, v5, 3, v4')
    a('v_lshlrev_b32 v4, 8, v4')
    a('v_and_b32 v5, 1, v1')
    a('v_and_b32 v6, 3, v2')
    a('v_lshrrev_b32 v7, 1, v6')
    a('v_and_b32 v8, 1, v6')
    a('v_lshl_add_u32 v7, v8, 1, v7')
    a(f's_cmp_eq_u32 s{sL}, 1')
    a('s_cselect_b64 vcc, -1, 0')
    a('v_cndmask_b32 v6, v7, v6, vcc')
    a('v_lshl_add_u32 v4, v6, 3, v4')
    a(f's_lshl_b32 s21, s{sW}, 6')
    a(f's_and_b32 s22, s{sW}, 1')
    a('s_lshl_b32 s22, s22, 6')
    a(f's_lshr_b32 s23, s{sW}, 1')
    a('s_lshl_b32 s23, s23, 5')
    a('s_add_u32 s22, s22, s23')
    a(f's_cmp_eq_u32 s{sL}, 2')
    a('s_cselect_b32 s21, s22, s21')
    a('s_cselect_b32 s22, 7, 5')
    a('v_lshlrev_b32 v5, s22, v5')
    a('v_add3_u32 v4, v4, v5, s21')
    a('v_add_u32 v5, 0x10000, v4')
    a('s_waitcnt vmcnt(0)')
    a('s_barrier')
    for k in range(32):
        for jj in range(2):
            off = (k & 15) * 4096 + jj * 1024
            a(f'ds_read_b64_tr_b16 {ar(4 * k + 2 * jj, 2)}, v{4 + (k >> 4)} offset:{off}')
    a('s_waitcnt lgkmcnt(0)')
    a('s_barrier')
    a('v_mov_b32 v7, v0')
    a(f'v_lshlrev_b32 v{vL16}, 4, v7')
    a(f's_lshl_b32 s21, s{sW}, 13')
    a(f'v_add_u32 v{vC0}, s21, v{vL16}')
    a(f's_and_b32 s21, s{sW}, 1')
    a('s_lshl_b32 s21, s21, 3')
    for j in range(8):
        a(f's_add_u32 s22, s21, {j}')
        a(f'v_xor_b32 v{vD + j}, s22, v7')
        a(f'v_lshlrev_b32 v{vD + j}, 4, v{vD + j}')
    a('v_and_b32 v5, 31, v7')
    a('v_lshrrev_b32 v6, 5, v7')
    a('v_mov_b32 v55, v5')
    if par:
        a('v_bfe_u32 v3, v5, 3, 1')
        a('v_and_b32 v4, 7, v5')
        a('v_lshlrev_b32 v4, 1, v4')
        a('v_lshl_add_u32 v3, v3, 4, v4')
        a('v_lshrrev_b32 v4, 4, v5')
        a('v_add_u32 v3, v3, v4')
        a(f's_cmp_eq_u32 s{sL}, 2')
        a('s_cselect_b64 vcc, -1, 0')
        a('v_cndmask_b32 v55, v5, v3, vcc')
    a('v_and_b32 v3, 15, v55')
    for b in range(8):
        a(f'v_add_u32 v4, {2 * b}, v6')
        a('v_xor_b32 v4, v4, v3')
        a('v_lshlrev_b32 v4, 4, v4')
        a(f'v_lshl_add_u32 v{vF + b}, v55, 10, v4')
        a(f'v_mov_b32 v{vF0 + b}, v{vF + b}')
    a(f'v_mov_b64 {vr(SEN, 2)}, -1')
    a(f'v_mov_b64 {vr(SEN + 2, 2)}, -1')
    a(f'v_cmp_eq_u32 vcc, 0, v{vL16}')
    a(f'v_mov_b32 v{vOne}, 0x7fffffff')
    a(f'v_cndmask_b32 v{vOne}, v{vOne}, v{vL16}, vcc')
    a(f'v_mov_b32 v{vVr}, {L_VERD}')
    a(f's_lshl_b32 s21, s{sW}, 2')
    a(f'v_add_u32 v{vVw}, s21, v{vVr}')


def emit_proj_loop(a, mat, fail, done, opt=None):
    opt = opt or {}
    head = opt.get('head', HEAD)
    if mat == 0:
        a('v_bfe_u32 v3, v5, 3, 1')
        a('v_lshlrev_b32 v3, 12, v3')
        a('v_lshl_add_u32 v3, v6, 8, v3')
        a('v_lshrrev_b32 v4, 4, v5')
        a('v_lshl_add_u32 v3, v4, 7, v3')
        a('v_and_b32 v4, 7, v5')
        a('v_lshl_add_u32 v3, v4, 4, v3')
        a(f's_lshl_b32 s{sT}, s{sW}, 10')
        cstep = 512
    elif mat == 1:
        a('v_and_b32 v3, 1, v5')
        a('v_lshlrev_b32 v3, 10, v3')
        a('v_lshl_add_u32 v3, v6, 8, v3')
        a('v_lshrrev_b32 v4, 1, v5')
        a('v_lshl_add_u32 v3, v4, 4, v3')
        a(f's_lshl_b32 s{sT}, s{sW}, 11')
        a(f's_add_u32 s{sT}, s{sT}, 8192')
        cstep = 512
    else:
        a('v_lshrrev_b32 v3, 3, v5')
        a('v_lshlrev_b32 v3, 11, v3')
        a('v_lshl_add_u32 v3, v6, 8, v3')
        a('v_bfe_u32 v4, v5, 2, 1')
        a('v_lshl_add_u32 v3, v4, 7, v3')
        a('v_and_b32 v4, 3, v5')
        a('v_lshl_add_u32 v3, v4, 4, v3')
        a(f's_and_b32 s{sT}, s{sW}, 1')
        a(f's_lshl_b32 s{sT}, s{sT}, 10')
        a(f's_lshr_b32 s{sT2}, s{sW}, 1')
        a(f's_lshl_b32 s{sT2}, s{sT2}, 9')
        a(f's_add_u32 s{sT}, s{sT}, s{sT2}')
        a(f's_add_u32 s{sT}, s{sT}, 16384')
        a('s_mov_b32 s50, 0x33333333')
        a('s_mov_b32 s51, 0x33333333')
        cstep = 64
    a(f'v_add_u32 v{vSt}, s{sT}, v3')
    a(f's_lshl_b32 s{sFl0}, s{sH}, 8')
    a(f's_lshl_b32 s{sT}, s{sW}, 4')
    a(f's_add_u32 s{sFl0}, s{sFl0}, s{sT}')
    a(f's_add_u32 s{sFl0}, s{sFl0}, {FLAG_OFF + 64 * mat}')
    for r in (sPF, sQF, sED, sEC):
        a(f's_mov_b32 s{r}, {WS_BYTES}')
    a(f's_mov_b32 s{sPV}, 0')
    a(f's_mov_b32 s{sQV}, 0')
    a(f's_mov_b32 s{sPL}, 0')
    a(f's_mov_b32 s{sSpin}, 0')
    a(f's_lshl_b32 s{sW13}, s{sW}, 13')

    def src_addr(l, sg, buf):
        return [f's_lshl_b32 s{sSrc}, s{l}, 6', f's_add_u32 s{sSrc}, s{sSrc}, s{sg}', f's_lshl_b32 s{sSrc}, s{sSrc}, 15',
                f's_add_u32 s{sSrc}, s{sSrc}, s{sW13}', f's_add_u32 s{sSrc}, s{sSrc}, {XN_OFF}', f's_add_u32 s{sSrc2}, s{sSrc}, 4096',
                f's_add_u32 s{sM0}, s{buf}, s{sW13}', f's_add_u32 s{sM1}, s{sM0}, 4096']
    loads = [(f's_mov_b32 m0, s{sM0 if j == 0 else sM1}\n' if j % 4 == 0 else '') +
             f'buffer_load_dwordx4 v{vD + j}, {WS}, s{sSrc if j < 4 else sSrc2} offen offset:{1024 * (j & 3)} sc1 lds' for j in range(8)]

    def flag_store(fa, fv):
        return [f'v_mov_b32 v{vT0}, s{fv}', f'buffer_store_dword v{vT0}, v{vOne}, {WS}, s{fa} offen sc1']
    stores = [f'buffer_store_dwordx4 {vr(PK + 4 * c, 4)}, v{vSt}, {WS}, s{sED} offen offset:{cstep * c} sc1' for c in range(2)]
    if mat < 2:
        stores.append(f'buffer_store_dwordx4 {vr(SEN, 4)}, v{vL16}, {WS}, s{sEC} offen sc1')
    nst = len(stores)

    def fread(k):
        return f'ds_read_b128 {vr(FR + 4 * (k & 7), 4)}, v{vF + (k & 7)} offset:{256 * (k >> 3)}'

    def mfma(k):
        fr, w = vr(FR + 4 * (k & 7), 4), ar(4 * k, 4)
        A, B = (fr, w) if mat == 1 else (w, fr)
        return f'v_mfma_f32_32x32x16_bf16 {vr(ACC, 16)}, {A}, {B}, {0 if k == 0 else vr(ACC, 16)}'
    skip = opt.get('skip', 8)
    smask = sum(1 << j for j in range(1, 64) if not skip or j % skip) | 1
    smov64(a, 58, smask)
    pick = [[f's_bitcmp1_b64 s[58:59], s{sN1}', f's_cselect_b32 s{sT}, s{sNL}, 0', f's_cmp_lt_u32 s{sN0}, {head}', f's_cselect_b32 s{sT}, 1, s{sT}',
             f's_cmp_lt_u32 s{sN0}, {NSEG}', f's_cselect_b32 s{sT}, s{sT}, 0'],
            [f's_cmp_ge_u32 s{sN1}, {NSEG}', f's_cselect_b32 s{sLM}, 1, 0', f's_min_u32 s{sT2}, s{sN1}, {NSEG - 1}'],
            [f's_cmp_eq_u32 s{sT}, 1', f's_cselect_b32 s{sMS}, s{sN0}, s{sT2}', f's_cselect_b32 s{sLM}, 0, s{sLM}', f's_cselect_b32 s{sML}, 0, 1'],
            [f's_add_u32 s{sN0}, s{sN0}, s{sT}', f's_add_u32 s{sN1}, s{sN1}, s{sML}']]
    sa = src_addr(sML, sMS, sBM)
    pick += [sa[:4], sa[4:]]
    misc = [[f's_lshl_b32 s{sT}, s{sCL}, 5', f's_add_u32 s{sT}, s{sT}, s{sH}', f's_lshl_b32 s{sT}, s{sT}, 6', f's_add_u32 s{sT}, s{sT}, s{sCS}'],
            [f's_mul_i32 s{sDD}, s{sT}, {QKV_BLK}', f's_lshl_b32 s{sDC}, s{sT}, 13', f's_lshl_b32 s{sT2}, s{sW}, 10', f's_add_u32 s{sDC}, s{sDC}, s{sT2}'],
            [f's_add_u32 s{sDC}, s{sDC}, {OX_OFF + 3 * 8192 + 4096 * mat}', f's_cmp_ge_u32 s{sCS}, {NSEG - 3}', f's_cselect_b32 s{sDC}, s14, s{sDC}'],
            [f's_lshl_b32 s{sDF}, s{sCL}, 13', f's_add_u32 s{sDF}, s{sDF}, s{sFl0}', f's_add_u32 s{sDV}, s{sCS}, 1']]
    rotate = [f's_mov_b32 s{sCL}, s{sNL}', f's_mov_b32 s{sCS}, s{sNS}', f's_mov_b32 s{sNL}, s{sML}', f's_mov_b32 s{sNS}, s{sMS}',
              f's_mov_b32 s{sT}, s{sBC}', f's_mov_b32 s{sBC}, s{sBN}', f's_mov_b32 s{sBN}, s{sBM}', f's_mov_b32 s{sBM}, s{sT}',
              f's_mov_b32 s{sLN}, s{sLM}']
    rback = [f'ds_read_b128 {vr(ST + 4 * j, 4)}, v{vC} offset:{1024 * j}' for j in range(8)]
    chk = [f'v_max_u32 v{vT1}, v{ST}, v{ST + 2}'] + [f'v_max3_u32 v{vT1}, v{vT1}, v{ST + 4 * j}, v{ST + 4 * j + 2}' for j in range(1, 8)]
    chk.append(f'v_cmp_eq_u32 vcc, -1, v{vT1}')
    for r, v in ((sCL, 0), (sCS, 0), (sNL, 0), (sNS, 1), (sN0, 2), (sN1, 0), (sBC, 0), (sBN, 32768), (sBM, 65536), (sLN, 0)):
        a(f's_mov_b32 s{r}, {v}')
    for l in src_addr(sCL, sCS, sBC) + loads + src_addr(sNL, sNS, sBN) + loads:
        a(l)
    a('s_waitcnt vmcnt(0)')
    LOOP, SLOW, CHK, GO, FIN = [a.newlabel(x) for x in ('PL', 'PS', 'PCHK', 'PGO', 'PFIN')]
    a('s_barrier')
    for k in range(4):
        a(fread(k))
    a.label(LOOP)
    if opt.get('prof') == 1:
        a('s_memrealtime s[70:71]')
        a('s_waitcnt lgkmcnt(0)')
        a(f's_lshl_b32 s72, s{sCL}, 6')
        a(f's_add_u32 s72, s72, s{sCS}')
        a(f's_lshl_b32 s72, s72, 7')
        a(f's_lshl_b32 s73, s{sL}, 5')
        a(f's_add_u32 s73, s73, s{sH}')
        a('s_add_u32 s72, s72, s73')
        a('s_lshl_b32 s72, s72, 2')
        a(f's_add_u32 s72, s72, {PROF_OFF + (9 << 20)}')
        a(f'v_mov_b32 v{vT0}, s70')
        if opt.get('pst') is not None:
            a('s_sub_u32 s74, s78, s76')
            a(f'v_mov_b32 v{vT0}, s74')
        a('s_mov_b64 exec, 1')
        a(f'buffer_store_dword v{vT0}, v{vL16}, {WS}, s72 offen')
        a('s_mov_b64 exec, -1')
        a('s_memtime s[76:77]')
    ps = lambda i: a('s_memtime s[78:79]') if opt.get('pst') == i else None
    def pack_store(now):
        if mat == 2:
            for j in range(8):
                a(f'v_cvt_pk_bf16_f32 v{ST + j}, v{ACC + 2 * j}, v{ACC + 2 * j + 1}')
            a('s_mov_b64 vcc, s[50:51]')
            for j in range(4):
                a(f'v_cndmask_b32_dpp v{PK + j}, v{ST + j}, v{ST + 4 + j}, vcc quad_perm:[0,1,0,1] row_mask:0xf bank_mask:0xf')
            if now:
                a(stores[0])
            a('s_not_b64 vcc, vcc')
            for j in range(4):
                a(f'v_cndmask_b32_dpp v{PK + 4 + j}, v{ST + 4 + j}, v{ST + j}, vcc quad_perm:[2,3,2,3] row_mask:0xf bank_mask:0xf')
            if now:
                a(stores[1])
        else:
            for c in range(2):
                for j in range(4):
                    a(f'v_cvt_pk_bf16_f32 v{PK + 4 * c + j}, v{ACC + 8 * c + 2 * j}, v{ACC + 8 * c + 2 * j + 1}')
                if now:
                    a(stores[c])
        if now:
            for l in stores[2:]:
                a(l)
            a(f's_mov_b32 s{sED}, {WS_BYTES}')
            a(f's_mov_b32 s{sEC}, {WS_BYTES}')
    kc = opt.get('kc', 9)
    pf = opt.get('prof') == 1
    LOOPB = a.newlabel('PB')
    a(f's_cmp_eq_u32 s{sNL}, 1')
    a(f's_cbranch_scc1 {LOOPB}')
    for handoff in (0, 1):
        if handoff:
            a.label(LOOPB)
        for k in range(32):
            ps(k)
            a(mfma(k))
            if k < 28:
                a(fread(k + 4))
            if k < 6:
                for l in pick[k]:
                    a(l)
            if k in (1, 3, 5) and (k - 1) // 2 < nst:
                a(stores[(k - 1) // 2])
            if k == 6 and handoff:
                a(f'v_add_u32 v{vC}, s{sBN}, v{vC0}')
            if k == 7:
                a(f's_waitcnt vmcnt({nst + 10 + pf})')
                for l in flag_store(sQF, sQV):
                    a(l)
            if handoff:
                if k == kc:
                    a(f's_waitcnt vmcnt({nst + 2 + pf})')
                    for l in rback[:4]:
                        a(l)
                if k == kc + 1:
                    for l in rback[4:]:
                        a(l)
                if k == kc + 3:
                    for l in chk[:5]:
                        a(l)
                if k == kc + 4:
                    for l in chk[5:]:
                        a(l)
                if k == kc + 5:
                    a('s_cmp_lg_u64 vcc, 0')
                    a(f's_cselect_b32 s{sT}, 1, 0')
                    a(f'v_mov_b32 v{vT0}, s{sT}')
                    a(f'ds_write_b32 v{vVw}, v{vT0}')
            if 14 <= k < 30 and k % 2 == 0:
                a(loads[(k - 14) // 2])
            if 15 <= k < 23 and k % 2 == 1:
                for l in misc[(k - 15) // 2]:
                    a(l)
            if k == 23:
                a(f's_mov_b32 s{sBX}, s{sBN}')
                a(f's_mov_b32 s{sL0}, s{sLN}')
                a(f's_cmp_lt_u32 s{sCS}, 2')
                a(f's_cselect_b32 s{sU}, 1, s{sCL}')
            if k == 25:
                for l in rotate[:4]:
                    a(l)
            if k == 27:
                for l in rotate[4:]:
                    a(l)
            if k >= 24:
                a(f'v_add_u32 v{vF + k - 24}, s{sBX}, v{vF0 + k - 24}')
            if k == 28:
                a(f's_cmp_eq_u32 s{sPL}, 1')
                a(f's_cselect_b32 s{sQF}, s14, s{sPF}')
                a(f's_cselect_b32 s{sPF}, s{sPF}, s14')
                a(f's_mov_b32 s{sQV}, s{sPV}')
            if k == 29:
                a(f's_waitcnt vmcnt({nst + 10 + pf}) lgkmcnt(0)')
                a('s_barrier')
                if handoff:
                    a(f'ds_read_b128 {vr(ST, 4)}, v{vVr}')
                a(fread(0))
            if k == 30:
                a(fread(1))
                a(fread(2))
                L0 = a.newlabel('PF')
                a(f's_cbranch_scc0 {L0}')
                a('s_waitcnt vmcnt(9)')
                a.label(L0)
                for l in flag_store(sPF, sPV):
                    a(l)
            if k == 31:
                a(fread(3))
                if handoff:
                    a(f'v_or3_b32 v{vT1}, v{ST}, v{ST + 1}, v{ST + 2}')
                    a(f'v_or3_b32 v{vT1}, v{vT1}, v{ST + 3}, s{sL0}')
                    a(f'v_cmp_ne_u32 vcc, 0, v{vT1}')
                    a(f'v_xor_b32 v{vVw}, 16, v{vVw}')
                    a(f'v_xor_b32 v{vVr}, 16, v{vVr}')
                for d, r in ((sED, sDD), (sEC, sDC), (sPF, sDF), (sPV, sDV), (sPL, sU)):
                    a(f's_mov_b32 s{d}, s{r}')
        ps(32)
        if handoff:
            a(f's_cbranch_vccnz {SLOW}')
        pack_store(False)
        ps(33)
        a(f's_branch {LOOP}')
    a.label(SLOW)
    for l in src_addr(sCL, sCS, sBC) + loads:
        a(l)
    pack_store(True)
    a(f's_mov_b32 s{sSpin}, 0')
    a(f's_waitcnt vmcnt({nst})')
    a(f's_cmp_eq_u32 s{sL0}, 1')
    a(f's_cbranch_scc1 {FIN}')
    a.label(CHK)
    for l in rback + chk:
        a(l)
    a(f's_cbranch_vccz {GO}')
    spin_guard(a, sSpin, fail)
    RE = a.newlabel('PRE')
    a(f's_cmp_eq_u32 s{sPF}, s14')
    a(f's_cbranch_scc1 {RE}')
    a('s_waitcnt vmcnt(0)')
    for l in flag_store(sQF, sQV) + flag_store(sPF, sPV):
        a(l)
    a(f's_mov_b32 s{sQF}, {WS_BYTES}')
    a(f's_mov_b32 s{sPF}, {WS_BYTES}')
    a.label(RE)
    if opt.get('pprobe', 0):
        PR = a.newlabel('PP')
        if opt['pprobe'] == 1:
            a(f'v_and_b32 v{vT0}, 48, v{vL16}')
            a(f'v_and_b32 v{vT1}, 192, v{vL16}')
            a(f'v_lshlrev_b32 v{vT0}, 4, v{vT0}')
            a(f'v_lshl_add_u32 v{vT0}, v{vT1}, 5, v{vT0}')
            a('s_mov_b64 exec, 0xffff')
        else:
            a(f'v_lshlrev_b32 v{vT0}, 3, v{vL16}')
        a.label(PR)
        a(f'buffer_load_dword v{vT1}, v{vT0}, {WS}, s{sSrc} offen sc1')
        spin_guard(a, sSpin, fail)
        a(f'v_cmp_eq_u32 vcc, -1, v{vT1}')
        if opt['pprobe'] == 2:
            a('s_mov_b64 exec, vcc')
        a(f's_cbranch_vccnz {PR}')
        a('s_mov_b64 exec, -1')
    for l in loads:
        a(l)
    a('s_waitcnt vmcnt(0)')
    a(f's_branch {CHK}')
    a.label(GO)
    a('s_barrier')
    for k in range(4):
        a(fread(k))
    a(f's_branch {LOOP}')
    a.label(FIN)
    a('s_waitcnt vmcnt(0)')
    for l in flag_store(sQF, sQV) + flag_store(sPF, sPV):
        a(l)
    a(f's_branch {done}')
```

```python
import sys
from asmlib import *
from layout import *
import chain, proj, wb

NAME = 'interleave_layers__memory_aug_recurrent_mem_tr__sliding_local_dilated__prompt_kernel'
D_FAIL, D_READY = 16 + 64, 16 + 128


D_READY2, D_READY3 = 16 + 192, 16
L_BC = 32512
sROLE, sXCC, sFINAL = 90, 91, 92
sRANK = 89
vRANK = 126


SLEEP2 = 20


def role_of(a, opt, idx, dst):
    perm = opt.get('perm', [2, 0, 3, 1, 4, 5, 6, 7])
    a(f's_lshr_b32 s22, s{idx}, 5')
    a('s_lshl_b32 s22, s22, 2')
    a(f's_lshr_b32 s22, {sum(p << (4 * i) for i, p in enumerate(perm)):#x}, s22')
    a('s_and_b32 s22, s22, 7')
    a('s_lshl_b32 s22, s22, 5')
    a(f's_and_b32 s{dst}, s{idx}, 31')
    a(f's_or_b32 s{dst}, s{dst}, s22')


def broadcast(a, src, dst):
    L = a.newlabel('BC')
    a(f'v_mov_b32 v60, {L_BC}')
    a(f's_cmp_lg_u32 s{sW}, 0')
    a(f's_cbranch_scc1 {L}')
    a(f'v_mov_b32 v61, s{src}')
    a('ds_write_b32 v60, v61')
    a('s_waitcnt lgkmcnt(0)')
    a.label(L)
    a('s_barrier')
    a('ds_read_b32 v61, v60')
    a(f'v_readfirstlane_b32 s{dst}, v61')
    a('s_barrier')


def emit_prologue(a, opt):
    a('s_cmp_ge_u32 s2, 256')
    a('s_cbranch_scc1 DONE')
    a(f's_load_dwordx4 s[8:11], s[0:1], {KA_DBG}')
    a(f's_getreg_b32 s{sXCC}, hwreg(HW_REG_XCC_ID, 0, 4)')
    a('v_lshrrev_b32 v1, 6, v0')
    a(f'v_readfirstlane_b32 s{sW}, v1')
    a('v_and_b32 v0, 63, v0')
    a(f's_and_b32 s{sXCC}, s{sXCC}, 7')
    a('s_waitcnt lgkmcnt(0)')
    a('s_mov_b32 s12, s10')
    a('s_mov_b32 s13, s11')
    a(f's_mov_b32 s14, {WS_BYTES}')
    a('s_mov_b32 s15, 0x20000')
    if opt.get('prof'):
        a('s_memrealtime s[94:95]')
    if opt.get('ipf', 0):
        a('s_getpc_b64 s[22:23]')
        a.label('PCREF')
        a(f's_lshl_b32 s21, s{sW}, 13')
        a('v_lshl_add_u32 v2, v0, 7, s21')
        for k in range(3):
            a(f'v_min_u32 v3, CODE_END-PCREF-4, v2')
            a('global_load_dword v125, v3, s[22:23]')
            a('v_add_u32 v2, 0x8000, v2')
    if opt.get('wpf', 0):
        a(f's_load_dwordx8 s[24:31], s[0:1], {KA_WQ}')
        a(f's_load_dwordx4 s[32:35], s[0:1], {KA_WQKV}')
        a('s_lshl_b32 s21, s2, 14')
        a('v_lshl_add_u32 v2, v0, 7, s21')
        a('s_mul_i32 s21, s2, 6144')
        a('v_min_u32 v3, 47, v0')
        a('v_lshl_add_u32 v3, v3, 7, s21')
        a('s_lshl_b32 s21, s2, 11')
        a('v_min_u32 v6, 15, v0')
        a('v_lshl_add_u32 v6, v6, 7, s21')
        a('s_waitcnt lgkmcnt(0)')
        for k in range(1, 4):
            a(f's_cmp_eq_u32 s{sW}, {k}')
            a(f's_cselect_b32 s24, s{24 + 2 * k}, s24')
            a(f's_cselect_b32 s25, s{25 + 2 * k}, s25')
        a('global_load_dword v124, v2, s[24:25]')
        a('v_add_u32 v2, 0x2000, v2')
        a('global_load_dword v124, v2, s[24:25]')
        a(f's_cmp_eq_u32 s{sW}, 1')
        a('s_cselect_b32 s32, s34, s32')
        a('s_cselect_b32 s33, s35, s33')
        a('s_cselect_b64 vcc, -1, 0')
        a('v_cndmask_b32 v3, v3, v6, vcc')
        a(f's_cmp_gt_u32 s{sW}, 1')
        a('s_cbranch_scc1 NOWPF')
        a('global_load_dword v124, v3, s[32:33]')
        a.label('NOWPF')
    a(f'v_mov_b64 {vr(vRANK, 2)}, 0')
    a(f's_cmp_lg_u32 s{sW}, 0')
    a('s_cbranch_scc1 NORANK')
    a(f's_and_b32 s21, s{sXCC}, 3')
    a('s_lshl_b32 s21, s21, 6')
    a(f's_lshr_b32 s22, s{sXCC}, 2')
    a('s_lshl_b32 s22, s22, 3')
    a('s_add_u32 s21, s21, s22')
    a('s_lshr_b32 s22, s2, 3')
    a('s_lshl_b32 s22, 1, s22')
    a('v_mov_b32 v2, s21')
    a('v_mov_b32 v4, s22')
    a('v_mov_b32 v5, 0x100')
    a('s_mov_b64 exec, 1')
    a(f'global_atomic_add_x2 {vr(vRANK, 2)}, v2, v[4:5], s[8:9] sc0')
    a('s_mov_b64 exec, -1')
    a.label('NORANK')
    if opt.get('byrank'):
        a(f'v_readfirstlane_b32 s21, v{vRANK + 1}')
        a('s_lshr_b32 s21, s21, 8')
        broadcast(a, 21, 23)
        a('s_min_u32 s22, s23, 31')
    else:
        a('s_lshr_b32 s22, s2, 3')
    a(f's_lshl_b32 s21, s{sXCC}, 5')
    a('s_add_u32 s21, s21, s22')
    role_of(a, opt, 21, sROLE)
    a(f's_mov_b32 s{sFINAL}, 0')
    a('s_branch DISPATCH')


def save_rank(a):
    L = a.newlabel('SR')
    a(f's_cmp_eq_u32 s{sFINAL}, 1')
    a(f's_cbranch_scc1 {L}')
    a(f'v_readfirstlane_b32 s{sRANK}, v{vRANK + 1}')
    a.label(L)


def census_load(a, dst):
    a(f's_load_dwordx2 s[62:63], s[0:1], {KA_DBG}')
    a(f'v_mbcnt_lo_u32_b32 v{dst}, -1, 0')
    a(f'v_and_b32 v{dst + 1}, 3, v{dst}')
    a(f'v_lshrrev_b32 v{dst}, 2, v{dst}')
    a(f'v_lshlrev_b32 v{dst}, 3, v{dst}')
    a(f'v_lshl_add_u32 v{dst}, v{dst + 1}, 6, v{dst}')
    a('s_mov_b64 exec, 0xff')
    a('s_waitcnt lgkmcnt(0)')
    a(f'global_load_dwordx2 {vr(dst, 2)}, v{dst}, s[62:63] sc1')
    a('s_mov_b64 exec, -1')


def census_eval(a, src):
    a('s_mov_b32 s64, 0')
    a('s_mov_b32 s65, 0')
    a('s_mov_b32 s66, 1')
    a('s_mov_b32 s67, 1')
    for k in range(8):
        a(f'v_readlane_b32 s68, v{src + 1}, {k}')
        a(f'v_readlane_b32 s69, v{src}, {k}')
        a('s_cmp_eq_u32 s68, 0x2000')
        a('s_cselect_b32 s67, s67, 0')
        a('s_cmp_eq_u32 s69, -1')
        a('s_cselect_b32 s67, s67, 0')
        a('s_lshr_b32 s68, s68, 8')
        a('s_add_u32 s64, s64, s68')
        a(f's_cmp_gt_u32 s{sXCC}, {k}')
        a('s_cselect_b32 s69, s68, 0')
        a('s_add_u32 s65, s65, s69')
        a('s_cmp_eq_u32 s68, 32')
        a('s_cselect_b32 s66, s66, 0')


def verify(a, opt, preloaded=None, tmp=60):
    L, E, OK = a.newlabel('VW'), a.newlabel('VE'), a.newlabel('VK')
    src = preloaded or tmp
    a(f's_cmp_eq_u32 s{sFINAL}, 1')
    a(f's_cbranch_scc1 {OK}')
    a('s_mov_b32 s61, 0')
    if preloaded:
        a(f's_branch {E}')
    a.label(L)
    spin_guard(a, 61, 'FAIL')
    a(f's_sleep {opt.get("vsleep", 16)}')
    census_load(a, src)
    a.label(E)
    if not (opt.get('slow') or opt.get('rerank')):
        G = a.newlabel('VG')
        a('s_mov_b64 exec, 0xff')
        if opt.get('byrank'):
            a(f'v_lshrrev_b32 v{src}, 8, v{src + 1}')
            a(f'v_cmp_eq_u32 vcc, 32, v{src}')
        else:
            a(f'v_cmp_eq_u32 vcc, -1, v{src}')
            a('s_mov_b64 exec, vcc')
            a(f'v_cmp_eq_u32 vcc, 0x2000, v{src + 1}')
        a('s_mov_b64 exec, -1')
        a('s_cmp_eq_u32 vcc_lo, 0xff')
        a(f's_cbranch_scc1 {G}')
    census_eval(a, src)
    a('s_cmp_lt_u32 s64, 256')
    a(f's_cbranch_scc1 {L}')
    a('s_cmp_gt_u32 s64, 256')
    a('s_cbranch_scc1 FAIL')
    if opt.get('byrank'):
        a('s_mov_b32 s67, s66')
    if opt.get('slow') or opt.get('rerank'):
        a('s_mov_b32 s67, 0')
    a('s_cmp_eq_u32 s67, 0')
    a('s_cbranch_scc1 REROLE')
    if not (opt.get('slow') or opt.get('rerank')):
        a.label(G)
    a(f's_mov_b32 s{sFAST}, 1')
    a(f's_mov_b32 s{sFINAL}, 1')
    a.label(OK)


def emit_rerole(a, opt):
    a.label('REROLE')
    a('s_waitcnt vmcnt(0) lgkmcnt(0)')
    a('s_barrier')
    a(f's_lshr_b32 s21, s{sRANK}, 8')
    broadcast(a, 21, 21)
    a('s_add_u32 s65, s65, s21')
    if opt.get('slow'):
        a('s_mov_b32 s66, 0')
        a('s_mov_b32 s65, s2')
    role_of(a, opt, 65, sROLE)
    a(f's_mov_b32 s{sFAST}, s66')
    a(f's_mov_b32 s{sFINAL}, 1')
    a('v_mbcnt_lo_u32_b32 v0, -1, 0')
    a('v_mbcnt_hi_u32_b32 v0, -1, v0')


def signal(a, off, by_layer=False, drain=True):
    L = a.newlabel('SG')
    if drain:
        a('s_waitcnt vmcnt(0)')
    a('s_barrier')
    a(f's_cmp_lg_u32 s{sW}, 0')
    a(f's_cbranch_scc1 {L}')
    a(f's_load_dwordx2 s[62:63], s[0:1], {KA_DBG}')
    a(f'v_mov_b32 v60, {off}')
    if by_layer:
        a(f's_and_b32 s61, s{sL}, 1')
        a('v_lshl_add_u32 v60, s61, 2, v60')
    a('v_mov_b32 v61, 1')
    a('s_mov_b64 exec, 1')
    a('s_waitcnt lgkmcnt(0)')
    a('global_atomic_add v60, v61, s[62:63]')
    a('s_mov_b64 exec, -1')
    a.label(L)


def wait_count(a, off, n, by_layer=False):
    L, S = a.newlabel('RW'), a.newlabel('RS')
    a(f's_cmp_lg_u32 s{sW}, 0')
    a(f's_cbranch_scc1 {S}')
    a(f's_load_dwordx2 s[62:63], s[0:1], {KA_DBG}')
    a(f'v_mov_b32 v60, {off}')
    if by_layer:
        a(f's_and_b32 s61, s{sL}, 1')
        a('v_lshl_add_u32 v60, s61, 2, v60')
    a('s_mov_b32 s61, 0')
    a('s_mov_b64 exec, 1')
    a('s_waitcnt lgkmcnt(0)')
    a.label(L)
    spin_guard(a, 61, 'FAIL')
    a('s_sleep 8')
    a('global_load_dword v61, v60, s[62:63] sc1')
    a(f'v_cmp_gt_u32 vcc, {n}, v61')
    a(f's_cbranch_vccnz {L}')
    a('s_mov_b64 exec, -1')
    a.label(S)
    a('s_barrier')


def wait_two(a, for_p=False):
    L, S = a.newlabel('RW'), a.newlabel('RS')
    a(f's_cmp_lg_u32 s{sW}, 0')
    a(f's_cbranch_scc1 {S}')
    a(f's_load_dwordx2 s[62:63], s[0:1], {KA_DBG}')
    a('v_mov_b32 v62, 48')
    if for_p:
        a(f's_mov_b32 s61, {D_READY}')
        a('s_movk_i32 s60, 96')
        a('v_writelane_b32 v62, s60, 1')
    else:
        a(f's_and_b32 s61, s{sL}, 1')
        a('s_lshl_b32 s61, s61, 2')
        a(f's_add_u32 s61, s61, {D_READY3}')
    a(f'v_mov_b32 v60, {D_READY2}')
    a('v_writelane_b32 v60, s61, 1')
    a('s_mov_b32 s61, 0')
    a('s_mov_b64 exec, 3')
    a('s_waitcnt lgkmcnt(0)')
    F = a.newlabel('RF')
    a(f's_branch {F}')
    a.label(L)
    spin_guard(a, 61, 'FAIL')
    a(f's_sleep {SLEEP2}')
    a.label(F)
    a('global_load_dword v61, v60, s[62:63] sc1')
    a('v_cmp_gt_u32 vcc, v62, v61')
    a(f's_cbranch_vccnz {L}')
    a('s_mov_b64 exec, -1')
    a.label(S)
    a('s_barrier')


def wait_progress(a, n):
    L, S = a.newlabel('PW'), a.newlabel('PS')
    wait_count(a, D_READY, 48)
    a(f's_cmp_lg_u32 s{sW}, 0')
    a(f's_cbranch_scc1 {S}')
    a(f's_lshl_b32 s60, s{sH}, 8')
    a(f's_add_u32 s60, s60, {FLAG_OFF}')
    a('v_mov_b32 v60, 0')
    a('s_mov_b32 s61, 0')
    a('s_mov_b64 exec, 1')
    a.label(L)
    spin_guard(a, 61, 'FAIL')
    a('s_sleep 8')
    a(f'buffer_load_dword v61, v60, {WS}, s60 offen sc1')
    a(f'v_cmp_gt_u32 vcc, {n}, v61')
    a(f's_cbranch_vccnz {L}')
    a('s_mov_b64 exec, -1')
    a.label(S)
    a('s_barrier')


def ln0_loads(a):
    a(f's_load_dwordx2 s[52:53], s[0:1], {KA_X}')
    a('s_mov_b32 s54, 0x200000')
    a('s_mov_b32 s55, 0x20000')
    a('v_lshlrev_b32 v30, 4, v0')
    a('s_lshl_b32 s56, s21, 2')
    a(f's_add_u32 s56, s56, s{sW}')
    a('s_lshl_b32 s57, s56, 10')
    a('s_waitcnt lgkmcnt(0)')
    for r in range(11):
        a(f's_add_u32 s58, s57, {r * 192 * 1024}')
        a(f'buffer_load_dwordx4 {vr(64 + 4 * r, 4)}, v30, s[52:55], s58 offen')


def ln0_compute(a):
    a(f's_mov_b32 s50, {f32bits(1 / 512):#x}')
    a(f's_mov_b32 s51, {f32bits(1e-5):#x}')
    for r in range(11):
        X, Y, t = 64 + 4 * r, 32, 40
        for k in range(4):
            a(f'v_lshlrev_b32 v{Y + 2 * k}, 16, v{X + k}')
            a(f'v_and_b32 v{Y + 2 * k + 1}, 0xffff0000, v{X + k}')
        a(f'v_add_f32 v{t}, v{Y}, v{Y + 1}')
        a(f'v_mul_f32 v{t + 1}, v{Y}, v{Y}')
        a(f'v_fmac_f32 v{t + 1}, v{Y + 1}, v{Y + 1}')
        for k in range(2, 8):
            a(f'v_add_f32 v{t}, v{t}, v{Y + k}')
            a(f'v_fmac_f32 v{t + 1}, v{Y + k}, v{Y + k}')
        for sh in (8, 4, 2, 1):
            for s_ in (t, t + 1):
                a(f'v_add_f32_dpp v{s_}, v{s_}, v{s_} row_ror:{sh} row_mask:0xf bank_mask:0xf')
        for op in ('v_permlane16_swap_b32', 'v_permlane32_swap_b32'):
            a(f'v_mov_b32 v{t + 2}, v{t}')
            a(f'v_mov_b32 v{t + 3}, v{t + 1}')
            a(f'{op} v{t}, v{t + 2}')
            a(f'{op} v{t + 1}, v{t + 3}')
            a(f'v_pk_add_f32 {vr(t, 2)}, {vr(t, 2)}, {vr(t + 2, 2)}')
        wb.finish_stats(a, t, t + 1, t + 2, 's50', 's51')
        for k in range(8):
            a(f'v_fma_f32 v{Y + k}, v{Y + k}, v{t + 2}, v{t + 3}')
        for k in range(4):
            a(f'v_cvt_pk_bf16_f32 v{X + k}, v{Y + 2 * k}, v{Y + 2 * k + 1}')
        a(f's_add_u32 s58, s57, {XN_OFF + r * 192 * 1024}')
        if r == 10:
            a('s_cmp_lt_u32 s56, 128')
            a('s_cselect_b32 s58, s58, s14')
        a(f'buffer_store_dwordx4 {vr(X, 4)}, v30, {WS}, s58 offen sc1')


def emit_init_work(a):
    a('v_lshlrev_b32 v1, 4, v0')
    a('s_lshl_b32 s21, s21, 2')
    a(f's_add_u32 s21, s21, s{sW}')
    a('s_lshl_b32 s22, s21, 10')
    a('v_mov_b64 v[8:9], 0')
    a('v_mov_b64 v[10:11], 0')
    a(f's_add_u32 s23, s22, {FLAG_OFF}')
    a('s_cmp_lt_u32 s21, 16')
    a('s_cselect_b32 s23, s23, s14')
    a(f'buffer_store_dwordx4 v[8:11], v1, {WS}, s23 offen sc1')
    signal(a, D_READY)
    a('v_mov_b64 v[4:5], -1')
    a('v_mov_b64 v[6:7], -1')
    a('s_lshl_b32 s23, s21, 13')
    a(f's_add_u32 s23, s23, {CPART_OFF}')
    a('s_cmp_lt_u32 s21, 136')
    a('s_cselect_b32 s23, s23, s14')
    fill4k(a, 8)
    a('s_mul_i32 s24, s21, 21846')
    a('s_lshr_b32 s24, s24, 16')
    a('s_mul_i32 s25, s24, 3')
    a('s_sub_u32 s25, s21, s25')
    a('s_lshl_b32 s24, s24, 19')
    a('s_lshl_b32 s25, s25, 13')
    a('s_add_u32 s23, s24, s25')
    a(f's_add_u32 s23, s23, {OX_OFF}')
    fill4k(a, 8)
    for base in (HALO_OFF, HALO_OFF + (4 << 20), XN_OFF + (2 << 20), X2_OFF):
        a(f's_add_u32 s23, s22, {base}')
        fill4k(a, 1)


def fill4k(a, n, sc=' sc1', d='v[4:7]', ad='v1', so=23):
    for k in range(n):
        if k and k % 4 == 0:
            a(f's_add_u32 s{so}, s{so}, 4096')
        a(f'buffer_store_dwordx4 {d}, {ad}, {WS}, s{so} offen offset:{1024 * (k % 4)}{sc}')


def arm_own_rings(a, w2=False):
    LS, LD = a.newlabel('IA'), a.newlabel('IB')
    a('v_lshlrev_b32 v62, 4, v0')
    a('v_mov_b64 v[64:65], -1')
    a('v_mov_b64 v[66:67], -1')
    a(f's_mul_i32 s64, s{sL}, {WBR_SIZE}')
    a(f's_add_u32 s64, s64, {WBR_OFF}')
    a(f's_lshl_b32 s65, s{sH}, 2')
    a(f's_add_u32 s65, s65, s{sW}')
    a(f's_cmp_eq_u32 s{sFAST}, 0')
    a(f's_cbranch_scc1 {LS}')
    for lab, sc in ((None, ''), (LS, ' sc1')):
        if lab:
            a(f's_branch {LD}')
            a.label(lab)
        for base, sh, n in ((0, 12, 4), (256 << 10, 12, 4), (512 << 10, 12, 4), (768 << 10, 10, 1)):
            a(f's_lshl_b32 s66, s65, {sh}')
            a('s_add_u32 s66, s66, s64')
            a(f's_add_u32 s66, s66, {base}')
            fill4k(a, n, sc, 'v[64:67]', 'v62', 66)
    a.label(LD)


def exp_delay(a, us):
    if us:
        L = a.newlabel('DL')
        a('s_memrealtime s[60:61]')
        a('s_waitcnt lgkmcnt(0)')
        a.label(L)
        a('s_sleep 4')
        a('s_memrealtime s[62:63]')
        a('s_waitcnt lgkmcnt(0)')
        a('s_sub_u32 s62, s62, s60')
        a(f's_cmp_lt_u32 s62, {int(us * 100)}')
        a(f's_cbranch_scc1 {L}')


def tstamp(a, opt, reg):
    if opt.get('prof'):
        a(f's_memrealtime s[{reg}:{reg + 1}]')
        a('s_waitcnt lgkmcnt(0)')


def build(opt=None):
    global SLEEP2
    opt = opt or {}
    SLEEP2 = opt.get('sl2', 20)
    import importlib
    chain = importlib.import_module(opt.get('chain', 'chain'))
    wb_ = importlib.import_module(opt.get('wb', 'wb2'))
    proj = importlib.import_module(opt.get('proj', 'proj'))
    prof = opt.get('prof', False) == 1
    a = Asm()
    a.label('ENTRY')
    emit_prologue(a, opt)
    emit_rerole(a, opt)
    a.label('DISPATCH')
    tstamp(a, opt, 96)
    a(f's_mov_b32 s21, s{sROLE}')
    a('s_cmp_ge_u32 s21, 160')
    a('s_cbranch_scc1 ROLE_P')
    a('s_cmp_ge_u32 s21, 64')
    a('s_cbranch_scc1 ROLE_WB')
    a(f's_and_b32 s{sH}, s21, 31')
    a(f's_lshr_b32 s{sL}, s21, 5')

    def hook(u):
        if opt.get('sprof'):
            a('s_memrealtime s[80:81]')
            a('s_waitcnt lgkmcnt(0)')
            a(f'v_writelane_b32 v125, s80, {u}')
            if u == 17:
                a(f'v_writelane_b32 v125, s{chain.sOKF}, 20')
                a(f's_lshl_b32 s80, s{sROLE}, 2')
                a(f's_add_u32 s80, s80, s{sW}')
                a('s_lshl_b32 s80, s80, 8')
                a(f's_add_u32 s80, s80, {PROF_OFF + (10 << 20)}')
                a('v_lshlrev_b32 v115, 2, v0')
                a(f'buffer_store_dword v125, v115, {WS}, s80 offen')
        if u == 1:
            save_rank(a)
        if opt.get('one', 1):
            cu = opt.get('cu', 10)
            if u == cu:
                a(f's_load_dwordx2 s[62:63], s[0:1], {KA_DBG}')
                a('v_lshlrev_b32 v120, 2, v0')
                a('s_waitcnt lgkmcnt(0)')
                a('global_load_dword v120, v120, s[62:63] sc1')
            if u == cu + 2:
                G, V = a.newlabel('OG'), a.newlabel('OV')
                a(f'v_readlane_b32 s60, v120, {D_READY2 // 4}')
                a(f'v_mov_b32 v{chain.vCNT}, s60')
                if not (opt.get('slow') or opt.get('rerank')):
                    a(f's_cmp_eq_u32 s{sFINAL}, 1')
                    a(f's_cbranch_scc1 {G}')
                    smov64(a, 64, 0x0005000500050005)
                    a('s_mov_b64 exec, s[64:65]')
                    a('v_cmp_ne_u32 vcc, -1, v120')
                    a('s_mov_b64 s[66:67], vcc')
                    a('s_lshl_b64 exec, s[64:65], 1')
                    a('v_cmp_ne_u32 vcc, 0x2000, v120')
                    a('s_mov_b64 exec, -1')
                    a('s_or_b64 vcc, vcc, s[66:67]')
                    a(f's_cbranch_scc1 {V}')
                    a(f's_mov_b32 s{sFAST}, 1')
                    a(f's_mov_b32 s{sFINAL}, 1')
                    a.label(V)
                verify(a, opt, None, 120)
                a.label(G)
        else:
            if u == opt.get('cu', 12):
                census_load(a, 120)
            if u == opt.get('cu', 12) + 3:
                verify(a, opt, 120)
    if opt.get('c1n', 0):
        a(f's_cmp_eq_u32 s{sL}, 0')
        a('s_cbranch_scc1 C0GO')
        if opt.get('c1pf'):
            a(f's_load_dwordx2 s[24:25], s[0:1], {KA_WO}')
            a(f's_lshl_b32 s21, s{sH}, 17')
            a(f's_lshl_b32 s22, s{sW}, 15')
            a('s_add_u32 s21, s21, s22')
            a('v_lshl_add_u32 v2, v0, 7, s21')
            a('s_waitcnt lgkmcnt(0)')
            for k in range(4):
                a('global_load_dword v3, v2, s[24:25]')
                a('v_add_u32 v2, 0x2000, v2')
        save_rank(a)
        verify(a, opt)
        wait_progress(a, opt.get('c1n', 0))
        a.label('C0GO')
    if opt.get('dC'):
        a(f's_cmp_eq_u32 s{sL}, 0')
        a('s_cbranch_scc1 C0GO3')
        exp_delay(a, opt.get('dC'))
        a.label('C0GO3')
    chain.emit_chain_setup(a, hook, D_READY2, opt)
    for w in range(1, 4):
        a(f's_cmp_eq_u32 s{sW}, {w}')
        a(f's_cbranch_scc1 CW{w}')
    for w in range(4):
        a.label(f'CW{w}')
        chain.emit_chain_consts(a, w, opt.get('wb', 'wb2') == 'wb2')
        chain.emit_chain_first(a, w, 'FAIL', D_READY2, not opt.get('fresh2'))
        tstamp(a, opt, 98)
        if opt.get('prof') == 2:
            a('s_memtime s[86:87]')
            a('s_waitcnt lgkmcnt(0)')
        a(f's_cmp_eq_u32 s{sFAST}, 0')
        a(f's_cbranch_scc1 CS{w}')
        chain.emit_chain_loop(a, w, True, 'FAIL', 'FIN', prof, opt)
        a.label(f'CS{w}')
        chain.emit_chain_loop(a, w, False, 'FAIL', 'FIN', prof, opt)
    a.label('ROLE_WB')
    a('s_sub_u32 s21, s21, 64')
    a(f's_and_b32 s{sH}, s21, 15')
    a(f's_lshr_b32 s{sL}, s21, 4')
    a(f's_bitcmp0_b32 s{sL}, 0')
    a('s_cbranch_scc1 W0GO')
    a(f's_lshr_b32 s21, s{sL}, 1')
    a('s_lshl_b32 s21, s21, 4')
    a(f's_add_u32 s21, s21, s{sH}')
    ln0_loads(a)
    ln0_compute(a)
    save_rank(a)
    verify(a, opt)
    emit_init_work(a)
    signal(a, D_READY2)
    a.label('W0GO')

    ws_ = lambda k: tstamp(a, opt, 96) if opt.get('wbst') == k else None
    ws_(0)

    if opt.get('w1n', 0):
        a(f's_bitcmp0_b32 s{sL}, 0')
        a('s_cbranch_scc1 W0GO2')
        wait_progress(a, opt.get('w1n', 0))
        a.label('W0GO2')

    exp_delay(a, opt.get('dW'))

    def wb_hook(u):
        w2 = opt.get('wb', 'wb2') == 'wb2'
        if u == 6:
            save_rank(a)
            census_load(a, 16)
        if u == 9:
            verify(a, opt, 16)
            arm_own_rings(a, w2)
        if u == (14 if w2 else 18):
            signal(a, D_READY3, True, drain=False)
    wb_.emit_wb_setup(a, wb_hook, ws_, opt.get('late', 0))
    ws_(4)
    wait_two(a)
    ws_(5)
    tstamp(a, opt, 98)
    a(f's_cmp_eq_u32 s{sFAST}, 0')
    a('s_cbranch_scc1 WBS')
    wb_.emit_wb_loop(a, True, 'FAIL', 'FIN', prof, opt)
    a.label('WBS')
    wb_.emit_wb_loop(a, False, 'FAIL', 'FIN', prof, opt)
    a.label('ROLE_P')
    a('s_sub_u32 s21, s21, 160')
    a(f's_and_b32 s{sH}, s21, 31')
    a(f's_lshr_b32 s{sL}, s21, 5')
    proj.emit_proj_setup(a, lambda: None, opt.get('wb', 'wb2') == 'wb2')
    save_rank(a)
    verify(a, opt)
    wait_count(a, D_READY, 48)
    tstamp(a, opt, 98)
    for m in (1, 2):
        a(f's_cmp_eq_u32 s{sL}, {m}')
        a(f's_cbranch_scc1 PM{m}')
    for m in range(3):
        a.label(f'PM{m}')
        proj.emit_proj_loop(a, m, 'FAIL', 'FIN', opt)
    a.label('FAIL')
    a(f's_load_dwordx2 s[8:9], s[0:1], {KA_DBG}')
    a('s_mov_b64 exec, 1')
    a(f'v_mov_b32 v2, {D_FAIL}')
    a('v_mov_b32 v3, 1')
    a('s_waitcnt lgkmcnt(0)')
    a('global_atomic_add v2, v3, s[8:9]')
    a('s_waitcnt vmcnt(0)')
    a('s_endpgm')
    a.label('FIN')
    if opt.get('dbgt'):
        a('s_waitcnt vmcnt(0)')
        tstamp(a, opt, 100)
        a(f's_and_b32 s3, s{sROLE}, 15')
        a(f's_or_b32 s3, s3, s{sW}')
        a('s_cbranch_scc1 DONE')
        a(f's_load_dwordx2 s[8:9], s[0:1], {KA_DBG}')
        a('s_mov_b64 exec, 1')
        a('s_waitcnt lgkmcnt(0)')
        a('s_not_b32 s94, s94')
        a(f's_lshr_b32 s3, s{sROLE}, 5')
        a('s_min_u32 s3, s3, 2')
        a('s_lshl_b32 s3, s3, 2')
        for off, reg, byrole in ((32, 94, 0), (36, 100, 1), (48, 98, 1)):
            a(f'v_mov_b32 v2, {off}')
            if byrole:
                a('v_add_u32 v2, s3, v2')
            a(f'v_mov_b32 v3, s{reg}')
            a('global_atomic_umax v2, v3, s[8:9]')
        a('s_waitcnt vmcnt(0)')
        a('s_endpgm')
    if opt.get('prof'):
        a('s_waitcnt vmcnt(0)')
        tstamp(a, opt, 100)
        a('s_mov_b64 exec, 1')
        a(f's_lshl_b32 s93, s{sROLE}, 4')
        a(f's_add_u32 s93, s93, {PROF_OFF + (8 << 20)}')
        for k in range(4):
            a(f'v_mov_b32 v{4 + k}, s{94 + 2 * k}')
        a('v_mov_b32 v2, 0')
        a(f'buffer_store_dwordx4 v[4:7], v2, {WS}, s93 offen')
        if opt.get('prof') == 2:
            a('s_memtime s[84:85]')
            a('s_waitcnt lgkmcnt(0)')
            a('s_sub_u32 s84, s84, s86')
            a('v_mov_b32 v4, s84')
            a('s_add_u32 s93, s93, 4096')
            a(f'buffer_store_dword v4, v2, {WS}, s93 offen')
    a.label('DONE')
    a.label('CODE_END')
    if opt.get('jit'):
        items, n = a.items, 0
        a.items = []
        for it in items:
            hit = it[0] == 'i' and (it[1].mn == 's_barrier' or it[1].mn.startswith('buffer_store') or (opt['jit'] > 1 and it[1].mn.startswith('buffer_load') and 'sc1' in it[1].text))
            if hit and it[1].mn != 's_barrier':
                pass
            else:
                a.items.append(it)
            if hit:
                n += 1
                L = f'JIT{n}'
                a('s_cselect_b32 s97, 1, 0')
                a('s_memtime s[94:95]')
                a('s_waitcnt lgkmcnt(0)')
                a('s_lshr_b32 s96, s94, 2')
                a('s_mul_i32 s96, s96, 0x9e3779b1')
                a('s_lshr_b32 s96, s96, 24')
                a(f's_cmp_gt_u32 s96, {opt.get("jp", 3)}')
                a(f's_cbranch_scc1 {L}')
                a('s_sleep 100')
                a.label(L)
                a('s_cmp_eq_u32 s97, 1')
                if it[1].mn != 's_barrier':
                    a.items.append(it)
    body = a.finalize(entries=('ENTRY',))
    return body


HEADER = open('interleave_layers__memory_aug_recurrent_mem_tr__sliding_local_dilated__prompt.s.ref').read().split('; Override launch')[0] if False else ''


PROMOTE = ('v_add_f32', 'v_max_f32', 'v_mul_f32', 'v_mov_b32', 'v_exp_f32', 'v_rcp_f32', 'v_and_b32', 'v_xor_b32', 'v_min_u32', 'v_max_u32',
           'v_lshlrev_b32', 'v_lshrrev_b32', 'v_sub_f32', 'v_mov_b64', 'v_cmp_eq_u32', 'v_cmp_ne_u32', 'v_cmp_gt_u32', 'v_add_u32', 'v_rsq_f32', 'v_fmac_f32')


PROMOTE2 = PROMOTE + ('v_permlane16_swap_b32', 'v_permlane32_swap_b32', 'v_or_b32', 'v_cndmask_b32', 'v_mul_u32_u24', 'v_ashrrev_i32')


def align8(body, mode=1):
    import subprocess, re, os, tempfile
    lines = body.split('\n')
    idx = [i for i, l in enumerate(lines) if l and not l.endswith(':') and not l.startswith(';') and not l.startswith('.')]
    d = tempfile.mkdtemp()
    open(d + '/a.s', 'w').write('.amdgcn_target "amdgcn-amd-amdhsa--gfx950"\n.text\n' + body)
    subprocess.run(['clang', '-x', 'assembler', '-target', 'amdgcn-amd-amdhsa', '-mcpu=gfx950', '-c', d + '/a.s', '-o', d + '/a.o'], check=True)
    out = subprocess.run(['llvm-objdump', '-d', '--mcpu=gfx950', d + '/a.o'], capture_output=True, text=True).stdout
    sizes = [4 * len(m.group(1).split()) for m in re.finditer(r'// [0-9A-F]{12}: ((?:[0-9A-F]{8} ?)+)', out)]
    assert len(sizes) == len(idx), (len(sizes), len(idx))
    if mode == 1:
        addr, last = 0, None
        for k, i in enumerate(idx):
            sz = sizes[k]
            if sz == 8 and addr % 8 == 4 and last is not None:
                mn = lines[last].split()[0]
                lines[last] = lines[last].replace(mn, mn + '_e64', 1)
                addr += 4
            if sz == 8:
                last = None
            elif sz == 4 and lines[i].split()[0] in PROMOTE:
                last = i
            addr += sz
    else:
        wm = {3: 1.0, 4: 0.0, 5: 0.3}.get(mode, 0.5)
        M = {6: 8, 7: 16, 8: 4}.get(mode, 2)
        INF = 1e18
        cost, back = [0.0] + [INF] * (M - 1), []
        for k, i in enumerate(idx):
            sz, mn = sizes[k], lines[i].split()[0]
            new, bk = [INF] * M, [None] * M
            for p in range(M):
                if cost[p] >= INF:
                    continue
                opts = [(sz, False)]
                if sz == 4 and mn in PROMOTE2:
                    opts.append((8, True))
                for z, pr in opts:
                    c = cost[p] + (0.05 if pr else 0)
                    if z >= 8 and p == M - 1:
                        c += wm if 'mfma' in mn else 1.0
                    q = (p + z // 4) % M
                    if c < new[q]:
                        new[q], bk[q] = c, (p, pr)
            cost = new
            back.append(bk)
        p = min(range(M), key=lambda q: cost[q])
        for k in range(len(idx) - 1, -1, -1):
            p, pr = back[k][p]
            if pr:
                mn = lines[idx[k]].split()[0]
                lines[idx[k]] = lines[idx[k]].replace(mn, mn + '_e64', 1)
    return '\n'.join(lines)


def full_text(opt=None):
    body = build(opt)
    if (opt or {}).get('al8', 8):
        body = align8(body, (opt or {}).get('al8', 8))
    return f'''; @launch grid=(256,1,1) block=(256,1,1) lds=163840
.amdgcn_target "amdgcn-amd-amdhsa--gfx950"
.text
.globl {NAME}
.p2align 8
.type {NAME},@function
{NAME}:
{body}s_endpgm
.section .rodata,"a"
.p2align 6
.amdhsa_kernel {NAME}
  .amdhsa_next_free_vgpr 512
  .amdhsa_next_free_sgpr 102
  .amdhsa_accum_offset 256
  .amdhsa_group_segment_fixed_size 0
  .amdhsa_kernarg_size 104
  .amdhsa_user_sgpr_count 2
  .amdhsa_user_sgpr_kernarg_segment_ptr 1
  .amdhsa_system_sgpr_workgroup_id_x 1
  .amdhsa_float_denorm_mode_32 3
.end_amdhsa_kernel
'''


if __name__ == '__main__':
    opt = eval(sys.argv[2]) if len(sys.argv) > 2 else {}
    t = full_text(opt)
    open(sys.argv[1], 'w').write(t)
    print(len(t), 'bytes', t.count('\n'), 'lines')
```

```python
import re
from asmlib import *
from layout import *

L_MEM, L_KX, L_VX = 0, 8192, 16384
L_QM = 24576
L_KM = L_QM + 2304
L_VM = L_KM + 2304
L_ZERO = L_VM + 2048
L_WST = 32768
vL16, vW16, vXw, vQr, vKr, vIdx, vPst, vOx, v8, v9, vT0, vT1 = range(12)
A_, ACC, S_, X_ = 12, 44, 60, 124
sStep, sQKV, sQKVn, sOX, sOX2, sP, sPr, sM, sMr, sMw, sSpin, sFlag, sT, sT2, sPb, sMb, sQx, sQx2 = range(20, 38)
sC = 38
sMASK = 40
sEM, sEX = 56, 58
sSEL = 60
sOXp, sTag = 68, 69
sPROF = 70
SPIN_MAX = 1 << 22

S1A = [(t, 0) for t in range(4)] + [(0, 1), (1, 1)]
S1B = [(t, 5) for t in range(4)]
S1C = [(0, 4), (1, 4)]
S3 = [(t, 1) for t in range(4, 8)]


def resident_map():
    staged = S1A + S1B + S1C
    ops = [('qk', t, kt) for kt in range(8) for t in range(4) if (t, kt) not in staged]
    ops += [('v', t, kt) for kt in range(8) for t in range(2)]
    ops += [('o', t, z) for z in range(2) for t in range(8) if (t, z) not in S3]
    assert len(ops) == 48
    m = {}
    for i, o in enumerate(ops):
        m[o] = ('a', 8 * i) if i < 32 else ('v', 128 + 8 * (i - 32))
    for i, (t, kt) in enumerate(S1A):
        m[('qk', t, kt)] = ('lds', i, S_ + 8 * i)
    for i, (t, kt) in enumerate(S1B):
        m[('qk', t, kt)] = ('lds', 6 + i, S_ + 8 * i)
    for i, (t, kt) in enumerate(S1C):
        m[('qk', t, kt)] = ('lds', 10 + i, S_ + 32 + 8 * i)
    for i, (t, z) in enumerate(S3):
        m[('o', t, z)] = ('lds', 12 + i, [ACC, S_ + 32, S_ + 16, S_ + 24][i])
    return m


RM = resident_map()


def bop(key):
    e = RM[key]
    if e[0] == 'a':
        return ar(e[1], 8)
    if e[0] == 'v':
        return vr(e[1], 8)
    return vr(e[2], 8)


def stage_reads(key):
    e = RM[key]
    return [f'ds_read_b128 {vr(e[2] + 4 * hh, 4)}, v{vW16} offset:{e[1] * 2048 + hh * 1024}' for hh in range(2)]


def zfill(reg):
    return f'ds_read_b128 {vr(reg, 4)}, v{vL16} offset:{L_ZERO}'


XW = 0
vCNT, vFLG = 124, 7


sOKF = 78


def count_load(a, d_ready):
    a(f's_load_dwordx2 s[70:71], s[0:1], {KA_DBG}')
    a(f'v_mov_b32 v114, {d_ready}')
    a('s_waitcnt lgkmcnt(0)')
    a('s_mov_b64 exec, 1')
    a(f'global_load_dword v{vCNT}, v114, s[70:71] sc1')
    a('s_mov_b64 exec, -1')


def flag_load(a, dst):
    a(f'v_readlane_b32 s79, v{vCNT}, 0')
    a('v_mbcnt_lo_u32_b32 v113, -1, 0')
    a('v_lshlrev_b32 v112, 4, v113')
    a(f's_lshl_b32 s3, s{sL}, 5')
    a(f's_add_u32 s3, s3, s{sH}')
    a('s_lshl_b32 s76, s3, 8')
    a(f's_add_u32 s76, s76, {FLAG_OFF}')
    a('s_mov_b64 exec, 0xfff')
    a(f'buffer_load_dword v{dst}, v112, {WS}, s76 offen sc1')
    a('s_mov_b64 exec, -1')


def check_eval(a, src, need):
    a('s_mov_b64 exec, 0xfff')
    a(f'v_cmp_gt_u32 vcc, {need}, v{src}')
    a('s_mov_b64 exec, -1')
    a('s_cmp_eq_u64 vcc, 0')
    a('s_cselect_b32 s76, s79, 0')
    a('s_cmp_ge_u32 s76, 48')


def first_loads(a):
    a(f's_load_dwordx2 s[72:73], s[0:1], {KA_MEM0}')
    a('s_mov_b32 s74, 8192')
    a('s_mov_b32 s75, 0x20000')
    a('v_mbcnt_lo_u32_b32 v113, -1, 0')
    a('v_mbcnt_hi_u32_b32 v113, -1, v113')
    a('v_lshlrev_b32 v112, 4, v113')
    a(f's_lshl_b32 s3, s{sL}, 5')
    a(f's_add_u32 s3, s3, s{sH}')
    a('s_lshl_b32 s3, s3, 6')
    a(f's_mul_i32 s77, s3, {QKV_BLK}')
    a(f's_lshl_b32 s3, s{sW}, 12')
    a(f's_add_u32 m0, s3, {L_KX}')
    a('s_add_u32 s3, s3, s77')
    for p in range(4):
        a(f'buffer_load_dwordx4 v112, {WS}, s3 offen offset:{1024 * p} sc1 lds')
    a('v_and_b32 v114, 1, v113')
    a('v_bfe_u32 v115, v113, 2, 2')
    a('v_lshl_add_u32 v114, v115, 1, v114')
    a('v_lshrrev_b32 v115, 4, v113')
    a('v_bfe_u32 v113, v113, 1, 1')
    a('v_lshlrev_b32 v114, 10, v114')
    a('v_lshl_add_u32 v114, v115, 5, v114')
    a('v_lshl_add_u32 v114, v113, 4, v114')
    a(f's_lshl_b32 s3, s{sW}, 11')
    a('s_add_u32 s3, s3, s77')
    a('s_add_u32 s3, s3, 16384')
    a(f'buffer_load_dwordx4 v[116:119], v112, {WS}, s3 offen sc1')
    a(f'buffer_load_dwordx4 v[120:123], v112, {WS}, s3 offen offset:1024 sc1')
    a(f's_lshl_b32 s3, s{sL}, 19')
    a(f's_lshl_b32 s76, s{sH}, 13')
    a('s_add_u32 s3, s3, s76')
    a(f's_and_b32 s76, s{sW}, 1')
    a('s_lshl_b32 s76, s76, 18')
    a('s_add_u32 s3, s3, s76')
    a(f's_add_u32 s3, s3, {CPART_OFF}')
    a(f's_lshl_b32 s76, s{sL}, 15')
    a(f's_lshl_b32 s77, s{sH}, 10')
    a('s_add_u32 s76, s76, s77')
    a(f's_add_u32 s76, s76, {CMEM_OFF}')
    a(f's_cmp_lt_u32 s{sW}, 2')
    a('s_cselect_b32 s3, s3, s76')
    a('s_cselect_b32 s76, 3, 0')
    a('v_lshlrev_b32 v115, s76, v112')
    a(f'buffer_load_dword v115, v115, {WS}, s3 offen sc1')
    a('s_waitcnt lgkmcnt(0)')
    for k in range(2):
        a(f's_lshl_b32 s3, s{sW}, 11')
        a(f's_add_u32 m0, s3, {L_MEM + 1024 * k}')
        a(f's_lshl_b32 s3, s{sW}, 8')
        a(f's_add_u32 s3, s3, {128 * k}')
        a('buffer_load_dwordx4 v114, s[72:75], s3 offen lds')


def emit_chain_setup(a, hook=None, d_ready=None, opt=None):
    lane, vn, vgb, vAq, vAv, vAo = 0, 1, 2, 3, 4, 5
    a(f'v_and_b32 v{vn}, 15, v{lane}')
    a(f'v_lshrrev_b32 v{vgb}, 4, v{lane}')
    a(f'v_lshrrev_b32 v6, 1, v{vgb}')
    a(f'v_and_b32 v7, 1, v{vgb}')
    a(f'v_lshlrev_b32 v8, 17, v6')
    a(f'v_lshl_add_u32 v8, v7, 15, v8')
    a(f'v_lshl_add_u32 v{vAq}, v{vn}, 3, v8')
    a(f'v_and_b32 v9, 14, v{vn}')
    a(f'v_lshl_add_u32 v{vAv}, v9, 2, v8')
    a(f'v_and_b32 v9, 1, v{vn}')
    a(f'v_lshl_add_u32 v{vAv}, v9, 18, v{vAv}')
    a(f'v_lshlrev_b32 v8, 15, v7')
    a(f'v_lshl_add_u32 v8, v6, 13, v8')
    a(f'v_lshl_add_u32 v{vAo}, v{vn}, 3, v8')
    a(f's_lshl_b32 s3, s{sW}, 15')
    a(f's_add_u32 s3, s3, {L_WST}')
    a(f'v_lshl_add_u32 v6, v{lane}, 4, s3')
    vSt = 6
    a(f's_load_dwordx4 s[40:43], s[0:1], {KA_WQ}')
    a(f's_load_dwordx4 s[44:47], s[0:1], {KA_WV}')
    a('s_waitcnt lgkmcnt(0)')
    a(f's_cmp_lt_u32 s{sW}, 2')
    a('s_cselect_b32 s4, s40, s42')
    a('s_cselect_b32 s5, s41, s43')
    a('s_mov_b32 s6, 0x400000')
    a('s_mov_b32 s7, 0x20000')
    a('s_mov_b32 s8, s44')
    a('s_mov_b32 s9, s45')
    a('s_mov_b32 s10, 0x400000')
    a('s_mov_b32 s11, 0x20000')
    a('s_mov_b32 s48, s46')
    a('s_mov_b32 s49, s47')
    a('s_mov_b32 s50, 0x400000')
    a('s_mov_b32 s51, 0x20000')
    a(f's_lshl_b32 s20, s{sH}, 8')
    a(f's_and_b32 s21, s{sW}, 1')
    a('s_lshl_b32 s21, s21, 7')
    a('s_add_u32 s21, s21, s20')
    a(f's_lshl_b32 s22, s{sW}, 6')
    a('s_add_u32 s22, s22, s20')
    a(f's_lshl_b32 s23, s{sH}, 17')
    a(f's_lshl_b32 s24, s{sW}, 8')
    a('s_add_u32 s23, s23, s24')
    a(f's_and_b32 s24, s{sW}, {XW}')
    a('s_lshl_b32 s24, s24, 7')
    a('s_add_u32 s23, s23, s24')
    a('s_xor_b32 s29, s23, 128')
    a('s_mov_b32 s26, 0x05040100')
    a('s_mov_b32 s27, 0x07060302')
    a('s_mov_b32 s30, 0x55555555')
    a('s_mov_b32 s31, 0x55555555')
    SEL = (26, 27)
    rowqk = lambda jb: 32 * (jb >> 3) + 8 * ((jb >> 1) & 1) + 2 * ((jb >> 2) & 1) + (jb & 1)
    rowo = lambda jb: 16 * (jb >> 3) + 2 * (jb & 3) + ((jb >> 2) & 1)
    BUF = [16, 48, 80]
    TMP = 8
    units = []

    def put(key, j0, n, srcs):
        out = []
        e = RM[key]
        for k, (hi, lo, sel) in enumerate(srcs):
            if e[0] == 'v':
                out.append(f'v_perm_b32 v{e[1] + j0 + k}, v{hi}, v{lo}, s{SEL[sel]}')
            else:
                out.append(f'v_perm_b32 v{TMP + k}, v{hi}, v{lo}, s{SEL[sel]}')
        if e[0] == 'a':
            out += [f'v_accvgpr_write_b32 a{e[1] + j0 + k}, v{TMP + k}' for k in range(n)]
        elif e[0] == 'lds':
            for hh in range(n // 4):
                out.append(f'ds_write_b128 v{vSt}, {vr(TMP + 4 * hh, 4)} offset:{e[1] * 2048 + (j0 // 4 + hh) * 1024}')
        return out

    def rot(kt, base):
        return [f's_lshl_b32 s28, s{sW}, 1', f's_add_u32 s28, s28, {kt}', 's_and_b32 s28, s28, 7', 's_lshl_b32 s28, s28, 19', f's_add_u32 s28, s28, s{base}']

    for kt in range(8):
        def ld(B, kt=kt):
            o = rot(kt, 21)
            for jb in range(16):
                o.append(f's_add_u32 s25, s28, {rowqk(jb) * 8192}')
                o.append(f'buffer_load_dwordx2 {vr(B + 2 * jb, 2)}, v{vAq}, s[4:7], s25 offen')
            return o

        def pr(B, kt=kt):
            o = []
            for t in range(4):
                o += put(('qk', t, kt), 0, 8, [(B + 2 * (2 * jj + 1) + (t >> 1), B + 2 * (2 * jj) + (t >> 1), t & 1) for jj in range(8)])
            return o
        units.append((ld, pr))
    for kp in range(4):
        def ld(B, kp=kp):
            o = []
            for kk in range(2):
                for jb in range(8):
                    o.append(f's_add_u32 s25, s22, {(64 * (2 * kp + kk) + rowqk(jb)) * 8192}')
                    o.append(f'buffer_load_dwordx2 {vr(B + 16 * kk + 2 * jb, 2)}, v{vAv}, s[8:11], s25 offen')
            return o

        def pr(B, kp=kp):
            o = []
            for kk in range(2):
                R = B + 16 * kk
                o.append('s_mov_b64 vcc, s[30:31]')
                o += [f'v_cndmask_b32_dpp v{112 + j}, v{R + 2 * j + 1}, v{R + 2 * j}, vcc quad_perm:[0,0,2,2] row_mask:0xf bank_mask:0xf' for j in range(8)]
                o.append('s_not_b64 vcc, vcc')
                o += [f'v_cndmask_b32_dpp v{R + 2 * j + 1}, v{R + 2 * j}, v{R + 2 * j + 1}, vcc quad_perm:[1,1,3,3] row_mask:0xf bank_mask:0xf' for j in range(8)]
                row = lambda jb: 112 + jb if jb < 8 else R + 2 * (jb - 8) + 1
                for t in range(2):
                    o += put(('v', t, 2 * kp + kk), 0, 8, [(row(2 * jj + 1), row(2 * jj), t) for jj in range(8)])
            return o
        units.append((ld, pr))
    for z in range(2):
        for hb in range(2):
            def ld(B, z=z, hb=hb):
                o = []
                for jb in range(16):
                    o.append(f's_add_u32 s25, s{23 if hb == 0 else 29}, {(64 * z + rowo(jb)) * 1024}')
                    o.append(f'buffer_load_dwordx2 {vr(B + 2 * jb, 2)}, v{vAo}, s[48:51], s25 offen')
                return o

            def pr(B, z=z, hb=hb):
                o = []
                for t in range(4):
                    o += put(('o', 4 * hb + t, z), 0, 8, [(B + 2 * (2 * jj + 1) + (t >> 1), B + 2 * (2 * jj) + (t >> 1), t & 1) for jj in range(8)])
                return o
            units.append((ld, pr))
    opt = opt or {}
    if opt.get('wfl'):
        units = [((lambda B, f=ld: [x + ' ' + opt['wfl'] if x.startswith('buffer') else x for x in f(B)]), pr) for ld, pr in units]
    if opt.get('wofirst', 0):
        units = units[12:] + units[8:12] + units[:8]
    D = opt.get('depth', 2)
    n = len(units)
    for u in range(n + 2):
        if hook:
            if u == n - 6 and not opt.get('one', 1):
                count_load(a, d_ready)
            if u == n - 3:
                flag_load(a, vFLG)
            if u == n:
                NL = a.newlabel('CNL')
                check_eval(a, vFLG, 2)
                a(f's_cselect_b32 s{sOKF}, 1, 0')
                a(f's_cbranch_scc0 {NL}')
                first_loads(a)
                a.label(NL)
        if u < n:
            for l in units[u][0](BUF[u % 3]):
                if opt.get('cap') and l.startswith('buffer'):
                    a(f's_waitcnt vmcnt({opt["cap"] - 1})')
                a(l)
        if hook:
            hook(u)
        if D <= u < n + D:
            for l in units[u - D][1](BUF[(u - D) % 3]):
                a(l)
    a('v_mov_b64 v[12:13], 0')
    a('v_mov_b64 v[14:15], 0')
    a(f'v_lshlrev_b32 v8, 4, v{lane}')
    a(f'ds_write_b128 v8, v[12:15] offset:{L_ZERO}')
    a(f'v_mov_b32 v125, v{vFLG}')
    a('s_waitcnt lgkmcnt(0)')


def emit_chain_consts(a, w, par=0):
    i, g, t1, t2, vtq, vhf = 20, 21, 22, 23, 24, 25
    a(f'v_and_b32 v{i}, 15, v0')
    a(f'v_lshrrev_b32 v{g}, 4, v0')
    a(f'v_lshrrev_b32 v{t1}, 2, v{i}')
    a(f'v_and_b32 v{t2}, 1, v{i}')
    a(f'v_lshl_add_u32 v{vtq}, v{t1}, 1, v{t2}')
    a(f'v_bfe_u32 v{vhf}, v{i}, 1, 1')
    a(f'v_mov_b32 v26, v0')
    a(f'v_lshlrev_b32 v{vL16}, 4, v26')
    a(f'v_add_u32 v{vW16}, {L_WST + w * 32768}, v{vL16}')
    a('s_movk_i32 s3, 144')
    if w < 2:
        a(f'v_lshrrev_b32 v27, 1, v{i}')
        a(f'v_mul_lo_u32 v27, v27, s3')
        a(f'v_lshl_add_u32 v27, v{g}, 5, v27')
        a(f'v_lshl_add_u32 v27, v{t2}, 3, v27')
        a(f'v_add_u32 v{vXw}, {L_QM + 8 * w * 144}, v27')
    else:
        a(f'v_lshlrev_b32 v27, 1, v{t1}')
        a(f'v_mul_lo_u32 v27, v27, s3')
        a(f'v_lshl_add_u32 v27, v{g}, 5, v27')
        a(f'v_and_b32 v28, 3, v{i}')
        a(f'v_lshl_add_u32 v27, v28, 2, v27')
        a(f'v_add_u32 v{vXw}, {L_KM + 8 * (w - 2) * 144}, v27')
    a(f'v_mul_lo_u32 v27, v{g}, s3')
    a(f'v_lshl_add_u32 v27, v{vtq}, 4, v27')
    a(f'v_add_u32 v{vQr}, {L_QM}, v27')
    a(f'v_lshl_add_u32 v27, v{g}, 1, v{vhf}')
    a(f'v_mul_lo_u32 v27, v27, s3')
    a(f'v_lshl_add_u32 v27, v{vtq}, 4, v27')
    a(f'v_add_u32 v{vKr}, {L_KM}, v27')
    a(f'v_mul_u32_u24 v27, 0xaaaa, v{vhf}')
    a(f'v_add_u32 v{vIdx}, 0x4444, v27')
    a(f'v_lshlrev_b32 v27, 13, v{t1}')
    a(f'v_lshl_add_u32 v27, v{g}, 11, v27')
    a(f'v_and_b32 v28, 3, v{i}')
    a(f'v_lshl_add_u32 v27, v28, 4, v27')
    a(f's_lshl_b32 s3, s{sH}, 6')
    a(f's_add_u32 s3, s3, {8 * w * 8192}')
    a(f'v_add_u32 v{vPst}, s3, v27')
    for k in range(4):
        smov64(a, sSEL + 2 * k, mask64(lambda i, g: (i >> 1) == k))
    a(f'v_lshlrev_b32 v28, 10, v{vtq}')
    a(f'v_lshl_add_u32 v28, v{g}, 5, v28')
    a(f'v_lshl_add_u32 v28, v{vhf}, 4, v28')
    for T in range(2):
        for rho in range(4):
            m = mask64(lambda i, g: hf(i) == 1 and 16 * (g >> 1) + 8 * T + 4 * (g & 1) + rho > (16 * (w & 1) + 2 * tq(i) + (w >> 1) if par else 8 * w + tq(i)))
            smov64(a, sMASK + 2 * (4 * T + rho), m)
    smov64(a, sEM, 0x3333333333333333)
    smov64(a, sEX, 0xcccccccccccccccc)
    a(f's_mov_b32 s{sC}, {f32bits(SCALE_A):#x}')
    a(f's_mov_b32 s{sC + 1}, {f32bits(SCALE_A):#x}')
    a(f's_mov_b32 s{sStep}, 0')
    a(f's_lshl_b32 s3, s{sL}, 5')
    a(f's_add_u32 s3, s3, s{sH}')
    a('s_lshl_b32 s3, s3, 6')
    a(f's_mul_i32 s{sQKV}, s3, {QKV_BLK}')
    a(f's_lshl_b32 s{sOX}, s3, 13')
    a(f's_add_u32 s{sOX}, s{sOX}, {OX_OFF + 2048 * w}')
    a(f's_lshl_b32 s{sPb}, s{sL}, 19')
    a(f's_add_u32 s{sPb}, s{sPb}, {CPART_OFF}')
    a(f's_lshl_b32 s{sMb}, s{sL}, 15')
    a(f's_add_u32 s{sMb}, s{sMb}, {CMEM_OFF}')
    a(f's_lshl_b32 s3, s{sL}, 5')
    a(f's_add_u32 s3, s3, s{sH}')
    a('s_lshl_b32 s3, s3, 8')
    a(f's_add_u32 s{sFlag}, s3, {FLAG_OFF}')


def flag_wait(a, need_sreg, fail, preloaded=False):
    L, Lok = a.newlabel('FW'), a.newlabel('FOK')
    a('s_mov_b64 exec, 0xfff')
    if preloaded:
        a(f'v_cmp_gt_u32 vcc, s{need_sreg}, v{v9}')
        a(f's_cbranch_vccz {Lok}')
    a.label(L)
    spin_guard(a, sSpin, fail)
    a(f'buffer_load_dword v{v9}, v{vL16}, {WS}, s{sFlag} offen sc1')
    a(f'v_cmp_gt_u32 vcc, s{need_sreg}, v{v9}')
    a(f's_cbranch_vccnz {L}')
    a.label(Lok)
    a('s_mov_b64 exec, -1')


def prefetch_next(a):
    for key in S1A:
        for l in stage_reads(('qk',) + key):
            a(l)
    for t in range(4):
        a(f'v_mov_b64 {vr(ACC + 4 * t, 2)}, 0')
        a(f'v_mov_b64 {vr(ACC + 4 * t + 2, 2)}, 0')


def emit_chain_first(a, w, fail, d_ready, need2=True):
    RE, OK = a.newlabel('CF'), a.newlabel('CK')
    a(f's_mov_b32 s{sSpin}, 0')
    a(f's_cmp_eq_u32 s{sOKF}, 1')
    a(f's_cbranch_scc1 {OK}')
    a.label(RE)
    spin_guard(a, sSpin, fail)
    RF = a.newlabel('CG')
    a('s_cmp_ge_u32 s79, 48')
    a(f's_cbranch_scc1 {RF}')
    count_load(a, d_ready)
    a.label(RF)
    flag_load(a, 125)
    check_eval(a, 125, 1)
    a(f's_cbranch_scc0 {RE}')
    first_loads(a)
    if w == 0 and need2:
        a(f's_mov_b32 s{sT}, 2')
        flag_wait(a, sT, fail)
        a(f'v_mov_b32 v125, v{v9}')
    a.label(OK)
    a(f'v_mov_b32 v{v9}, v125')
    a('s_waitcnt vmcnt(0)')
    for k in range(2):
        a(f'ds_read_b128 {vr(A_ + 4 * k, 4)}, v{vL16} offset:{L_MEM + 1024 * (2 * w + k)}')
    prefetch_next(a)
    a(f's_mov_b32 s{sOXp}, {WS_BYTES}')
    a('s_waitcnt lgkmcnt(0)')


def emit_chain_loop(a0, w, fast, fail, done, prof=False, opt=None):
    opt = opt or {}
    drop = opt.get('drop', [])

    class Filt:
        def __call__(self, text):
            for line in text.split('\n'):
                if not any(re.search(p, line) for p in drop):
                    a0(line)

        def __getattr__(self, n):
            return getattr(a0, n)
    a = Filt()
    sc = '' if fast else ' sc1'
    LOOP = a.newlabel('CL')
    LAST = a.newlabel('CLAST')
    npr = [0]

    fine = opt.get('fine')

    def fstamp(name):
        if prof and fine and name in fine:
            a(f's_memtime {sr(sPROF + 16 + 2 * fine.index(name), 2)}')

    def stamp():
        if prof:
            a(f'{"s_memrealtime" if opt.get("rt") else "s_memtime"} {sr(sPROF + 2 * npr[0], 2)}')
            npr[0] += 1

    def smf(d, A, B):
        return f'v_smfmac_f32_16x16x64_bf16 {vr(d, 4)}, {vr(A, 4)}, {B}, v{vIdx}'

    Q_, VACC = S_ + 32, S_ + 48
    QA, QB, KM_ = S_ + 56, S_ + 40, S_ + 32
    QE = [QA, QA + 4, QB, QB + 4]
    T0, T1, TM = ACC, ACC + 4, X_
    DD = [S_ + 48 + 2 * U for U in range(8)]

    def ox_store(u, s0):
        return f'buffer_store_dwordx4 {vr(DD[2 * u], 4)}, v{vL16}, {WS}, s{s0} offen offset:{1024 * u} sc1'

    def ox_pack():
        o = [f's_mov_b64 vcc, {sr(sEX, 2)}']
        o += [f'v_cndmask_b32_dpp v{DD[0] + k}, v{DD[4] + k}, v{DD[0] + k}, vcc quad_perm:[2,3,2,3] row_mask:0xf bank_mask:0xf' for k in range(8)]
        o += [f'v_min_u32 v{DD[2 * u]}, -2, v{DD[2 * u]}' for u in range(2)]
        return o

    def memrd(k):
        return f'ds_read_b128 {vr(A_ + 4 * k, 4)}, v{vL16} offset:{L_MEM + 1024 * ((2 * w + k) & 7)}'
    sal = [f's_add_u32 s{sQx}, s{sQKV}, {16384 + 2048 * w}',
           f's_add_u32 s{sQKVn}, s{sQKV}, {0 if opt.get("samekv") else QKV_BLK}', f's_add_u32 s{sQx2}, s{sQKVn}, {8192 * max(w - 1, 0)}']
    for l in sal:
        a(l)
    a(f'v_lshlrev_b32 v{vOx}, 3, v{vL16}')
    a(f's_branch {LOOP}')
    i_loop = len(a0.items)
    a.label(LOOP)
    mreg = opt.get('mreg', 3)
    if not mreg:
        a('s_barrier')
    stamp()
    order = [(t, kt) for kt in range(6) for t in range(4)] + [(t, kt) for t in range(4) for kt in (6, 7)]
    mem = [[] for _ in range(32)]
    alu = [[] for _ in range(32)]
    qearly = opt.get('qearly', 0)
    qld = [f'buffer_load_dwordx4 {vr(QA + 4 * p, 4)}, v{vL16}, {WS}, s{sQx} offen offset:{1024 * p} sc1' for p in range(2)]
    vm = ['\n'.join(qld)] if qearly else []
    kpv = opt.get('kpv', 0)
    kreal = 0 if kpv else opt.get('kreal', 1)
    vlate = opt.get('vlate', 0)
    if w > (1 if kreal and not opt.get('kwarm') else 0) and opt.get('warm', 1):
        warm_ld = f'buffer_load_dword v{v8}, v{vOx}, {WS}, s{sQx2} offen sc1'
        wwhen = opt.get('vw', 'x2') if w == 2 else (None if opt.get('qlds') else opt.get('qw', 'b1'))
        if wwhen == 'b1':
            vm.append(warm_ld)
    else:
        wwhen = None
    flag_ld = f's_mov_b64 exec, 0xfff\nbuffer_load_dword v{v9}, v{vL16}, {WS}, s{sFlag} offen sc1\ns_mov_b64 exec, -1'
    fresh = opt.get('fresh', 0)
    fresh2 = opt.get('fresh2', 0)
    if fresh2:
        vm = [flag_ld] + vm
    if kpv and w == 0:
        vm = [flag_ld] + vm
    if fresh:
        vm = [flag_ld + ''.join('\n' + x for x in vm)]
    vm += [ox_store(0, sOXp), ox_store(1, sOXp)]
    op = opt.get('opos', 0)
    for k, l in enumerate(vm):
        mem[4 * k + w + (op if l.startswith('buffer_store') else opt.get('wpos', 0))].append(l)
    rd = [memrd(k) for k in range(2, 8)]
    rd += [l for key in S1C + S1B for l in stage_reads(('qk',) + key)]
    if mreg:
        kb = mreg - 1
        mem[kb] += ['s_waitcnt lgkmcnt(0)', 's_barrier', rd[0], rd[1]]
        mem[kb + 1] += [rd[2], rd[3]]
        mem[kb + 2] += [rd[4], rd[5]]
        for k, l in enumerate(rd[6:]):
            mem[max(6 + k, kb + 3 + k // 2 if k < 4 else 0)].append(l)
        if opt.get('wfirst', 0):
            for k in range(32):
                wl = [l for l in mem[k] if l.startswith('buffer_load_dword ')]
                if wl:
                    mem[k] = [l for l in mem[k] if l not in wl]
                    ib = mem[kb].index('s_barrier') + (1 if opt['wfirst'] == 1 else 3)
                    mem[kb][ib:ib] = ['@' + l for l in wl]
        for k in range(32):
            far = [l for l in mem[k] if l.startswith('buffer')]
            if far and k <= kb:
                mem[k] = [l for l in mem[k] if not l.startswith('buffer')]
                mem[kb + 1 + k] += far
        mem[kb] = [l.lstrip('@') for l in mem[kb]]
    else:
        for k, l in enumerate(rd):
            mem[k].append(l)
    for j in range(8):
        mem[21 + j].append(f'ds_read_b128 {vr(S_ + 4 * j, 4)}, v{vL16} offset:{L_KX + j * 1024}')
    qmv = [f'v_mov_b32_dpp v{QB + k}, v{QA + k} quad_perm:[0,1,0,1] row_mask:0xf bank_mask:0xf' for k in range(8)]
    if qearly:
        for k in range(4):
            alu[17 + k].append(f'v_mov_b64 {vr(VACC + 2 * k, 2)}, 0')
        alu[21].append(f'v_mov_b32 v{vT1}, {NEG:#x}')
        for k in range(5):
            alu[22 + k].append(qmv[k])
        qrest = qmv[5:]
    else:
        zp = [13, 14, 15, 16] if op <= 1 else [16, 17, 25, 26] if op <= 4 else [24, 25, 26, 26]
        for k in range(4):
            alu[zp[k]].append(f'v_mov_b64 {vr(VACC + 2 * k, 2)}, 0')
        for k in range(8):
            alu[18 + k].append(qmv[k])
        alu[12 if op > 1 else 26].append(f'v_mov_b32 v{vT1}, {NEG:#x}')
        qrest = []
    for k, (tt, x) in zip((27, 28, 29, 30, 31, 31), ((0, 0), (0, 1), (1, 0), (1, 1), (2, 0), (2, 1))):
        alu[k].append(f'v_add_f32 v{ACC + 4 * tt + x}, v{ACC + 4 * tt + x}, v{ACC + 4 * tt + 2 + x}')
    FSL, FRET = a.newlabel('FSL'), a.newlabel('FRET')
    fhop = opt.get('fhop', 1) and not fresh2
    if w == 0 and not fhop and not fresh2:
        mem[6] += [f's_add_u32 s{sT}, s{sStep}, 2', f's_min_u32 s{sT}, s{sT}, {NSEG}']
        alu[7] += ['s_mov_b64 exec, 0xfff', f'v_cmp_gt_u32 vcc, s{sT}, v{v9}', 's_mov_b64 exec, -1']
        mem[10] += [f's_cbranch_vccnz {FSL}', FRET + ':']
    if wwhen == 'qk':
        mem[19].append(warm_ld)
    for k, (t, kt) in enumerate(order):
        a(smf(ACC + 4 * t, A_ + 4 * kt, bop(('qk', t, kt))))
        for l in mem[k] + alu[k]:
            a(l)
    stamp()
    for x in range(2):
        a(f'v_cvt_pk_bf16_f32 v{X_ + 2 * x}, v{ACC + x}, v{ACC + 4 + x}')
    masks = [f'v_cndmask_b32 v{T0 + k}, 0, v{vT1}, {sr(sMASK + 2 * k, 2)}' for k in range(8)]
    pend = qrest + masks
    a(pend.pop(0))
    a(pend.pop(0))
    for x in range(2):
        a(f'v_add_f32 v{ACC + 12 + x}, v{ACC + 12 + x}, v{ACC + 14 + x}')
    for x in range(2):
        a(f'v_cvt_pk_bf16_f32 v{X_ + 2 * x + 1}, v{ACC + 8 + x}, v{ACC + 12 + x}')
    for x in range(2):
        if w < 2:
            a(f'ds_write_b64 v{vXw}, {vr(X_ + 2 * x, 2)} offset:{16 * x}')
        else:
            a(f'ds_write2_b32 v{vXw}, v{X_ + 2 * x}, v{X_ + 2 * x + 1} offset0:{4 * x} offset1:{36 + 4 * x}')
    vlist = [(t, kt) for kt in range(8) for t in range(2)]
    vi = [0]

    def vmf(n, fillers=()):
        fillers = list(fillers)
        for _ in range(n):
            t, kt = vlist[vi[0]]
            vi[0] += 1
            a(smf(VACC + 4 * t, A_ + 4 * ((kt - 2 * w) & 7), bop(('v', t, kt))))
            if fillers:
                a(fillers.pop(0))
        for l in fillers:
            a(l)
    PX, PM = ACC + 12, ACC + 8
    n1, n2 = opt.get('nv1', 5), opt.get('nv2', 5)
    todo = pend + [f'v_mov_b32 v{PM + 1}, 0', f'v_mov_b32 v{PM + 2}, 0']
    f1 = todo[:n1]
    f1[0] = f's_mov_b32 m0, {L_KX + 2048 * w}\ns_add_u32 s{sT}, s{sQKVn}, {2048 * w}\n' + f1[0]
    vmf(n1, f1)
    todo = todo[n1:]
    a('s_waitcnt lgkmcnt(0)')
    a('s_barrier')
    stamp()
    a(f's_mov_b64 exec, {sr(sEM, 2)}')
    for E in range(4):
        a(f'ds_read_b128 {vr(QE[E], 4)}, v{vQr} offset:{576 * E}')
    a('s_mov_b64 exec, -1')
    for z in range(2):
        a(f'ds_read_b128 {vr(KM_ + 4 * z, 4)}, v{vKr} offset:{1152 * z}')
    fstamp('rd')
    kk = [f'buffer_load_dwordx4 v{vL16}, {WS}, s{sT} offen offset:{1024 * p} sc1 lds' if kreal else '' for p in range(2)]
    kkf = kk
    klate = opt.get('klate', 'sm')
    if fresh or klate is not None:
        kk = ['', '']
    todo += [f'v_mov_b64 {vr(TM, 2)}, 0', f'v_mov_b64 {vr(TM + 2, 2)}, 0']
    fl = [kk[0] if k == w else '' for k in range(n2)]
    if wwhen == 'x2':
        fl[0] = warm_ld
    qlds = opt.get('qlds')
    qd = [f'buffer_load_dwordx4 v{vL16}, {WS}, s{sT2} offen offset:{1024 * p} sc1 lds' for p in range(2)]
    qset = f's_mov_b32 m0, {L_MEM + 2048 * w}\ns_add_u32 s{sT2}, s{sQKVn}, {16384 + 2048 * w}'
    kset = f's_mov_b32 m0, {L_KX + 2048 * w}'
    if qlds == 'x2':
        fl[0] = qset + '\n' + fl[0]
        fl[1 + (w & 1)] += '\n' + qd[0]
        fl[3 + (w & 1)] += '\n' + qd[1]
    for k, l in enumerate(todo):
        fl[k % n2] += '\n' + l
    vmf(n2, fl)
    fstamp('v2')
    VX_ = S_
    vxr = [f'ds_read_b128 {vr(VX_ + 4 * U, 4)}, v{vL16} offset:{L_VX + 1024 * U}' for U in range(8)]

    def sc_(E, T):
        return f'v_mfma_f32_16x16x32_bf16 {vr(T0 + 4 * T, 4)}, {vr(S_ + 16 * T + 4 * E, 4)}, {vr(QE[E], 4)}, {vr(T0 + 4 * T, 4)}'
    seq = [sc_(0, 0), sc_(0, 1), sc_(1, 0), sc_(1, 1), smf(TM, KM_, vr(QE[0], 8)), sc_(2, 0), sc_(2, 1),
           smf(TM, KM_ + 4, vr(QE[2], 8)), sc_(3, 0), sc_(3, 1)]
    after = {1: [vxr[0]], 2: [vxr[4]], 3: [vxr[1]], 4: [vxr[5]], 6: [vxr[2]], 7: [vxr[6]], 9: [vxr[3], vxr[7]]}
    for k, l in enumerate(seq):
        a(l)
        if k == w:
            a(kk[1])
        if qlds == 'sc':
            if k == 0:
                a(qset)
            if k == 1 + w:
                a(qd[0])
            if k == 5 + w:
                a(qd[1])
        if qlds and k == 9:
            a(kset)
        if w == 0 and k == 5 and not fresh and not fresh2 and not kpv and opt.get('fpos', -5) < 0:
            a(flag_ld)
        if fresh:
            kp = opt.get('kp', 5)
            if k == kp - 3:
                a(f's_add_u32 s{sT2}, s{sStep}, 2')
                a(f's_min_u32 s{sT2}, s{sT2}, {NSEG}')
                a('s_mov_b64 exec, 0xfff')
                a(f'v_cmp_gt_u32 vcc, s{sT2}, v{v9}')
                a('s_mov_b64 exec, -1')
            if k == kp:
                a(f's_cbranch_vccnz {FSL}')
                a.label(FRET)
                a(kkf[0])
            if k == kp + 2:
                a(kkf[1])
        for x in after.get(k, []):
            a(x)
        fstamp(f'sc{k}')
    stamp()
    a(f'v_add_f32 v{TM}, v{TM}, v{TM + 2}')
    a(f'v_add_f32 v{TM + 1}, v{TM + 1}, v{TM + 3}')
    a(f'v_max3_f32 v{vT0}, v{TM}, v{TM + 1}, v{T0}')
    a(f'v_max3_f32 v{vT0}, v{vT0}, v{T0 + 1}, v{T0 + 2}')
    if opt.get('m7', 1):
        vmf(1)
    a(f'v_max3_f32 v{vT0}, v{vT0}, v{T0 + 3}, v{T1}')
    a(f'v_max3_f32 v{vT0}, v{vT0}, v{T1 + 1}, v{T1 + 2}')
    a(f'v_max_f32 v{vT1}, v{vT0}, v{T1 + 3}')
    a(f'v_max_f32 v{vT0}, v{vT0}, v{T1 + 3}')
    vmf(1)
    a(f'v_permlane16_swap_b32 v{vT0}, v{vT1}')
    a(f'v_max_f32 v{vT0}, v{vT0}, v{vT1}')
    a(f'v_mov_b32 v{vT1}, v{vT0}')
    vmf(1)
    a(f'v_permlane32_swap_b32 v{vT0}, v{vT1}')
    a(f'v_max_f32 v{vT0}, v{vT0}, v{vT1}')
    a(f'v_mul_f32 v{vT0}, s{sC}, v{vT0}')
    sc_regs = [T0 + k for k in range(8)] + [TM, TM + 1]
    if fresh2:
        a(f's_add_u32 s{sT2}, s{sStep}, 2')
        a(f's_min_u32 s{sT2}, s{sT2}, {NSEG}')
        a('s_mov_b64 exec, 0xfff')
        a(f'v_cmp_gt_u32 vcc, s{sT2}, v{v9}')
        a('s_mov_b64 exec, -1')
    a(f'v_fma_f32 v{TM}, v{TM}, s{sC}, -v{vT0}')
    a(f'v_fma_f32 v{TM + 1}, v{TM + 1}, s{sC}, -v{vT0}')
    for k in range(4):
        a(f'v_pk_fma_f32 {vr(T0 + 2 * k, 2)}, {vr(T0 + 2 * k, 2)}, {sr(sC, 2)}, {vr(vT0, 2)} op_sel_hi:[1,1,0] neg_lo:[0,0,1] neg_hi:[0,0,1]')
    kpos = opt.get('kpos', (0, 2))
    for ir, r in enumerate(sc_regs):
        if vi[0] < 16:
            vmf(1)
        if klate == 'sm' and ir in kpos:
            a(kkf[kpos.index(ir)])
        if wwhen == 'ex' and ir == 1:
            a(warm_ld)
        a(f'v_exp_f32 v{r}, v{r}')
    assert vi[0] == 16
    vx_ = [f'v_pk_add_f32 {vr(VACC + 4 * t, 2)}, {vr(VACC + 4 * t, 2)}, {vr(VACC + 4 * t + 2, 2)}' for t in range(2)]
    vx_ += [f'v_cvt_pk_bf16_f32 v{VACC + t}, v{VACC + 4 * t}, v{VACC + 4 * t + 1}' for t in range(2)]
    vx_ += [f'ds_write_b64 v{vL16}, {vr(VACC, 2)} offset:{L_VM + (w >> 1) * 1024 + (w & 1) * 8}']
    a(vx_[0])
    a(f'v_pk_add_f32 {vr(vT0, 2)}, {vr(T0, 2)}, {vr(T0 + 2, 2)}')
    a(f'v_pk_add_f32 {vr(TM + 2, 2)}, {vr(T1, 2)}, {vr(T1 + 2, 2)}')
    a(f'v_pk_add_f32 {vr(vT0, 2)}, {vr(vT0, 2)}, {vr(TM, 2)}')
    a(f'v_pk_add_f32 {vr(vT0, 2)}, {vr(vT0, 2)}, {vr(TM + 2, 2)}')
    a(vx_[1])
    a(f'v_add_f32 v{TM + 2}, v{vT0}, v{vT1}')
    a(f'v_add_f32 v{vT0}, v{vT0}, v{vT1}')
    a(vx_[2])
    a(vx_[3])
    a(f'v_permlane16_swap_b32 v{vT0}, v{TM + 2}')
    a(f'v_add_f32 v{vT1}, v{vT0}, v{TM + 2}')
    a(f'v_add_f32 v{vT0}, v{vT0}, v{TM + 2}')
    a(vx_[4])
    if kpv and w == 0:
        a(f's_add_u32 s{sT}, s{sStep}, 2')
        a(f's_min_u32 s{sT}, s{sT}, {NSEG}')
        a('s_mov_b64 exec, 0xfff')
        a(f'v_cmp_gt_u32 vcc, s{sT}, v{v9}')
        a('s_mov_b64 exec, -1')
    else:
        a(f's_mov_b64 vcc, {sr(sEM, 2)}')
    a(f'v_permlane32_swap_b32 v{vT0}, v{vT1}')
    a(f'v_add_f32 v{vT0}, v{vT0}, v{vT1}')
    a(f'v_rcp_f32 v{vT0}, v{vT0}')
    a(f's_mov_b32 m0, {L_VX + 2048 * w}')
    for k in range(5):
        r = sc_regs[2 * k]
        a(f'v_pk_mul_f32 {vr(r, 2)}, {vr(r, 2)}, {vr(vT0, 2)} op_sel_hi:[1,0]')
    for k in range(4):
        a(f'v_cvt_pk_bf16_f32 v{PX + k}, v{T0 + 2 * k}, v{T0 + 2 * k + 1}')
    a(f'v_cvt_pk_bf16_f32 v{PM}, v{TM}, v{TM + 1}')
    a(f'v_cvt_pk_bf16_f32 v{PM + 3}, v{TM}, v{TM + 1}')
    vsetup = [f's_mov_b32 m0, {L_VX + 2048 * w}', f's_add_u32 s{sT2}, s{sQKVn}, {8192 + 2048 * w}']
    b3chk = []
    if kpv:
        vsetup = [f's_mov_b32 m0, {L_KX + 4096 * w}', f's_add_u32 s{sT2}, s{sQKVn}, {4096 * w}']
        if w == 0:
            b3chk = [f's_cbranch_vccnz {FSL}', FRET + ':', f's_mov_b64 vcc, {sr(sEM, 2)}', f's_cmp_eq_u32 s{sStep}, {NSEG - 1}']
    stamp()
    VM_ = S_ + 56
    OA = [Q_ + 4 * U for U in range(4)] + [VX_ + 4 * U for U in range(4)]
    WA = [A_ + 4 * t for t in range(8)]
    AP = [Q_ + 8, Q_ + 12]
    s3 = [l for key in S3 for l in stage_reads(('o',) + key)]

    def pvx(U):
        return f'v_mfma_f32_16x16x32_bf16 {vr(OA[U], 4)}, {vr(VX_ + 4 * U, 4)}, {vr(PX, 4)}, 0'

    def pvm(U):
        return f'v_mfma_f32_16x16x16_bf16 {vr(OA[U], 4)}, {vr(VM_ + 2 * (U >> 1), 2)}, {vr(PM + 2 * (U & 1), 2)}, {vr(OA[U], 4)}'

    def dcvt(U):
        return [f'v_cvt_pk_bf16_f32 v{DD[U] + d}, v{OA[U] + 2 * d}, v{OA[U] + 2 * d + 1}' for d in range(2)]

    def apx(U):
        return f'v_cndmask_b32_dpp v{AP[U >> 2] + (U & 3)}, v{DD[U] + 1}, v{DD[U]}, vcc quad_perm:[0,1,0,1] row_mask:0xf bank_mask:0xf'

    def zmov(r):
        return [f'v_mov_b64 {vr(r, 2)}, 0', f'v_mov_b64 {vr(r + 2, 2)}, 0']
    kd = [f'buffer_load_dwordx4 v{vL16}, {WS}, s{sT2} offen offset:{1024 * p} sc1 lds' for p in range(4)]
    vmr = [f'ds_read_b128 {vr(VM_ + 4 * hh, 4)}, v{vL16} offset:{L_VM + 1024 * hh}' for hh in range(2)]
    zz = [l for t in range(8) for l in zmov(WA[t])]
    z4 = opt.get('z4', 0)
    pv = [(pvx(0), (zz[12:14] if z4 else []) + ['s_waitcnt lgkmcnt(0)', 's_barrier'] + vmr),
          (pvx(1), [vsetup[1], f's_cmp_eq_u32 s{sStep}, {NSEG - 1}'] + zz[0:2]),
          (pvx(2), zz[2:4]),
          (pvx(3), zz[4:6]),
          (pvx(4), zz[6:8]),
          (pvm(0), zz[8:10]),
          (pvm(1), zz[10:12] + (vsetup[:1] if vlate else [])),
          (pvm(2), dcvt(0)),
          (pvm(3), dcvt(1)),
          (pvx(5), dcvt(2)),
          (pvm(4), dcvt(3)),
          (pvx(6), [apx(0), apx(1)]),
          (pvm(5), [apx(2), apx(3)]),
          (pvx(7), dcvt(4)),
          (pvm(6), dcvt(5)),
          (pvm(7), [f's_cbranch_scc1 {LAST}', apx(4), apx(5)])]
    for k, (m, fl) in enumerate(pv):
        a(m)
        if wwhen == 'pv' and k == 1:
            a(warm_ld)
        if w == 0 and k == opt.get('fpos', -5) + 1:
            a(flag_ld)
        if klate == 'pv':
            if k == 0:
                a(kkf[0])
            if k == 2 + (w >> 1):
                a(kkf[1])
            if k == 5:
                a(vsetup[0])
        if kpv:
            if k >= 1 and (k - 1) % 4 == w and (k - 1) // 4 < 3:
                a(kd[(k - 1) // 4])
            if k == 12 + w:
                a(kd[3])
        else:
            vp = opt.get('vpos', (7, 11))
            if not vlate and k == vp[0] + w:
                a(kd[0])
            if not vlate and k == vp[1] + w:
                a(kd[1])
        for l in fl:
            a(l)
        fstamp(f'pv{k}')
    PD = [ACC + 8, ACC + 12]
    d6, d7 = dcvt(6), dcvt(7)
    za = [[s3[0], s3[1], f's_and_b32 s{sT}, s{sStep}, 1', d6[0]],
          [s3[2], f's_lshl_b32 s{sT}, s{sT}, 18', d6[1], d7[0]],
          [s3[3], f's_add_u32 s{sP}, s{sPb}, s{sT}', d7[1]],
          [apx(6), apx(7), f's_add_u32 s{sPr}, s{sP}, {4 * 8192}', f's_bfe_u32 s{sTag}, s{sStep}, 0x10001']]
    for t in range(4):
        a(smf(WA[t], AP[0], bop(('o', t, 0))))
        for l in za[t]:
            a(l)
    fstamp('z0a')
    for t in range(4):
        a(smf(WA[t], AP[1], bop(('o', t, 1))))
        a(s3[4 + t])
        if t < 2:
            if not z4:
                a(zz[12 + t])
            a(zz[14 + t])
        else:
            a(f'v_add_f32 v{WA[0] + t - 2}, v{WA[0] + t - 2}, v{WA[0] + t}')
    fstamp('z1a')
    ep = []
    for t in (1, 2, 3):
        ep += [f'v_add_f32 v{WA[t] + x}, v{WA[t] + x}, v{WA[t] + 2 + x}' for x in range(2)]
    ep += [f'v_cvt_pk_bf16_f32 v{PD[0] + 2 * x + j}, v{WA[2 * j] + x}, v{WA[2 * j + 1] + x}' for x in range(2) for j in range(2)]
    ep += [f'v_and_or_b32 v{PD[0]}, v{PD[0]}, -2, s{sTag}']
    swp = w & XW
    st0 = f'buffer_store_dwordx4 {vr(PD[0], 4)}, v{vPst}, {WS}, s{sPr if swp else sP} offen{sc}'
    seq = [(t, 0) for t in range(4, 8)] + [(t, 1) for t in range(4, 8)]
    for k, (t, z) in enumerate(seq):
        a(smf(WA[t], AP[z], bop(('o', t, z))))
        if k < 5:
            for _ in range(2):
                a(ep.pop(0))
        elif k == 5:
            a(ep.pop(0))
        elif k == 6:
            a(st0)
            a(f'v_add_f32 v{WA[4]}, v{WA[4]}, v{WA[4] + 2}')
        elif k == 7:
            a(f'v_add_f32 v{WA[4] + 1}, v{WA[4] + 1}, v{WA[4] + 3}')
    assert not ep
    fstamp('z1b')
    for x in range(2):
        a(f'v_add_f32 v{WA[5] + x}, v{WA[5] + x}, v{WA[5] + 2 + x}')
    a(f'v_cvt_pk_bf16_f32 v{PD[1]}, v{WA[4]}, v{WA[5]}')
    for x in range(2):
        a(f'v_add_f32 v{WA[6] + x}, v{WA[6] + x}, v{WA[6] + 2 + x}')
    a(f'v_cvt_pk_bf16_f32 v{PD[1] + 2}, v{WA[4] + 1}, v{WA[5] + 1}')
    a(f'v_and_or_b32 v{PD[1]}, v{PD[1]}, -2, s{sTag}')
    a(f'v_pk_add_f32 {vr(WA[7], 2)}, {vr(WA[7], 2)}, {vr(WA[7] + 2, 2)}')
    for x in range(2):
        a(f'v_cvt_pk_bf16_f32 v{PD[1] + 2 * x + 1}, v{WA[6] + x}, v{WA[7] + x}')
    a(f'buffer_store_dwordx4 {vr(PD[1], 4)}, v{vPst}, {WS}, s{sP if swp else sPr} offen{sc}')
    stamp()
    R_, SELR, RACC, SEN, vRl, vMs = A_ + 8, X_, A_ + 16, A_ + 20, A_ + 22, A_ + 23
    if vlate:
        a(kd[0])
        a(kd[1])
    a(f's_lshl_b32 s{sT}, s{sH}, 13')
    a(f's_add_u32 s{sP}, s{sP}, s{sT}')
    a(f's_add_u32 s{sP}, s{sP}, {2048 * w}')
    pre = [f'v_and_b32 v{vT0}, 16, v{vL16}', f'v_mov_b32 v{vT1}, 0x3f80', f'v_lshlrev_b32 v{vT0}, v{vT0}, v{vT1}']
    pre += [f'v_cndmask_b32 v{SELR + k}, 0, v{vT0}, {sr(sSEL + 2 * k, 2)}' for k in range(4)]
    pre += [f'v_mov_b64 {vr(SEN, 2)}, -1']
    pre += [f'v_bfe_u32 v{vT0}, v{vL16}, 4, 1', f'v_lshrrev_b32 v{vT1}, 8, v{vL16}', f'v_lshl_add_u32 v{vT0}, v{vT1}, 1, v{vT0}',
            f'v_and_b32 v{vT1}, 32, v{vL16}', f'v_lshl_add_u32 v{vMs}, v{vT0}, 3, v{vT1}']
    pre += [f's_and_b32 s{sT}, s{sStep}, 3', f's_lshl_b32 s{sT}, s{sT}, 13', f's_add_u32 s{sM}, s{sMb}, s{sT}',
            f's_add_u32 s{sMw}, s{sM}, {2048 * w}', f's_xor_b32 s{sT}, s{sT}, {2 << 13}', f's_add_u32 s{sMr}, s{sMb}, s{sT}',
            f's_lshl_b32 s{sT}, s{sH}, 8', f's_add_u32 s{sM}, s{sM}, s{sT}', f's_add_u32 s{sMr}, s{sMr}, s{sT}',
            f's_mov_b32 s{sOXp}, s{sOX}', f's_mov_b32 m0, {L_MEM + 2048 * w if kreal or kpv else L_KX + 2048 * w}']
    pre += [f's_mov_b32 s{sSpin}, 0']
    pre += ox_pack()
    pre += [l for key in S1A for l in stage_reads(('qk',) + key)]
    qrd = [f'ds_read_b128 {vr(QA + 4 * p, 4)}, v{vL16} offset:{L_MEM + 2048 * w + 1024 * p}' for p in range(2)]
    pre += [l for t in range(4) for l in zmov(ACC + 4 * t)]
    npre = opt.get('npre', 52)
    rl = [f'buffer_load_dwordx4 {vr(R_ + 4 * u, 4)}, v{vL16}, {WS}, s{sP} offen offset:{1024 * u} sc1' for u in range(2)]
    h1lds = opt.get('h1lds', 0)
    if h1lds:
        rl = [f'buffer_load_dwordx4 v{vL16}, {WS}, s{sP} offen offset:{1024 * u} sc1 lds' for u in range(2)]
    for k, l in enumerate(pre[:npre]):
        if opt.get('dummy1') == k:
            for x in rl:
                a(x.replace(vr(R_, 4), vr(A_ + 24, 4)).replace(vr(R_ + 4, 4), vr(A_ + 28, 4)))
        a(l)
    for _ in range(opt.get('d1', 0)):
        a('s_nop 15')
    if opt.get('a1') is not None:
        a(f's_waitcnt vmcnt({opt["a1"]})')
    for l in rl:
        a(l)
    for l in pre[npre:]:
        a(l)
    RT, ROK = a.newlabel('RT'), a.newlabel('ROK')
    if h1lds:
        a('s_waitcnt vmcnt(0)')
    a.label(RT)
    if h1lds:
        for u in range(2):
            a(f'ds_read_b128 {vr(R_ + 4 * u, 4)}, v{vL16} offset:{L_MEM + 2048 * w + 1024 * u}')
    rm_ = [f'v_mfma_f32_16x16x32_bf16 {vr(RACC, 4)}, {vr(SELR, 4)}, {vr(R_, 4)}, 0',
           f'v_mfma_f32_16x16x32_bf16 {vr(RACC, 4)}, {vr(SELR, 4)}, {vr(R_ + 4, 4)}, {vr(RACC, 4)}']
    rc_ = [f'v_xor_b32 v{vT0}, s{sTag}, v{R_}', f'v_bitop3_b32 v{vT0}, v{vT0}, v{R_ + 4}, s{sTag} bitop3:0xf6',
           f'v_and_b32 v{vT0}, 1, v{vT0}', f'v_cmp_ne_u32 vcc, 0, v{vT0}']
    if opt.get('r3', 2) == 1:
        seq_ = rc_ + rm_
    elif opt.get('r3', 2) == 2:
        seq_ = [rm_[0]] + rc_ + [rm_[1]]
    else:
        seq_ = [rm_[0], rc_[0], rm_[1]] + rc_[1:]
    for l in seq_:
        a(l)
    if opt.get('r4', 1):
        GOOD = a.newlabel('RG')
        a(f's_cbranch_vccz {GOOD}')
        a('s_mov_b64 exec, vcc')
        for l in rl:
            a(l)
        a('s_mov_b64 exec, -1')
        spin_guard(a, sSpin, fail)
        a(f's_branch {RT}')
        a.label(GOOD)
    elif not opt.get('r2', 0):
        a(f's_cbranch_vccnz {ROK}')
    RT1 = RT
    for sh in (4, 8):
        for k in range(4):
            a(f'v_add_f32_dpp v{RACC + k}, v{RACC + k}, v{RACC + k} row_ror:{sh} row_mask:0xf bank_mask:0xf')
    a(f'v_cvt_pk_bf16_f32 v{vT0}, v{RACC}, v{RACC + 1}')
    a(f'v_cvt_pk_bf16_f32 v{vT1}, v{RACC + 2}, v{RACC + 3}')
    a(f'v_min_u32 v{vT0}, -2, v{vT0}')
    a('s_mov_b64 exec, 0xf000f')
    if opt.get('r2', 0):
        a(f's_cbranch_vccnz {ROK}')
    a(f'buffer_store_dwordx2 {vr(vT0, 2)}, v{vMs}, {WS}, s{sM} offen offset:{64 * w}{sc}')
    stamp()
    a(f'buffer_store_dwordx2 {vr(SEN, 2)}, v{vMs}, {WS}, s{sMr} offen offset:{64 * w}{sc}')
    a('s_mov_b64 exec, -1')
    a(f's_add_u32 s{sStep}, s{sStep}, 1')
    a(f's_mov_b32 s{sQKV}, s{sQKVn}')
    a(f's_add_u32 s{sOX}, s{sOX}, 8192')
    for l in sal:
        a(l)
    qafter = opt.get('qafter', 0)
    if qlds:
        for l in qrd:
            a(l)
    elif not qearly and not qafter:
        for l in qld:
            a(l)
    if not kreal and not kpv:
        a(f's_add_u32 s{sT}, s{sQKV}, {2048 * w}')
        for p in range(2):
            a(f'buffer_load_dwordx4 v{vL16}, {WS}, s{sT} offen offset:{1024 * p} sc1 lds')
        a(f's_mov_b32 m0, {L_MEM + 2048 * w}')
    if w == 0 and fhop:
        a(f's_add_u32 s{sT}, s{sStep}, 2')
        a(f's_min_u32 s{sT}, s{sT}, {NSEG}')
        a('s_mov_b64 exec, 0xfff')
        a(f'v_cmp_gt_u32 vcc, s{sT}, v{v9}')
        a('s_mov_b64 exec, -1')
        a(f's_cbranch_vccnz {FSL}')
        a.label(FRET)
    for _ in range(opt.get('d2', 0)):
        a('s_nop 7')
    if opt.get('dummy2'):
        for k in range(2):
            a(f'buffer_load_dwordx4 v{vL16}, {WS}, s{sMw} offen offset:{1024 * k} sc1 lds')
    if opt.get('a2', 0) is not None:
        a(f's_waitcnt vmcnt({opt.get("a2", 0)})')
    md = [f'buffer_load_dwordx4 v{vL16}, {WS}, s{sMw} offen offset:{1024 * k} sc1 lds' for k in range(2)]
    if mreg:
        md = [f'buffer_load_dwordx4 {vr(A_ + 4 * k, 4)}, v{vL16}, {WS}, s{sMw} offen offset:{1024 * k} sc1' for k in range(2)]
    for l in md:
        a(l)
    if qafter:
        for l in qld:
            a(l)
    H2, RT, MRE = a.newlabel('H2'), a.newlabel('MT'), a.newlabel('MRE')
    a(f's_branch {H2}')
    i_h2 = len(a0.items)
    a.label(H2)
    if not mreg:
        a(f's_waitcnt vmcnt({2 if qafter else 0})')
    a.label(RT)
    if not mreg:
        a(memrd(0))
        a(memrd(1))
    a(f'v_max_u32 v{vT0}, v{A_}, v{A_ + 2}')
    a(f'v_max3_u32 v{vT0}, v{vT0}, v{A_ + 4}, v{A_ + 6}')
    a(f'v_cmp_eq_u32 vcc, -1, v{vT0}')
    if mreg:
        for k in range(2):
            a(f'ds_write_b128 v{vL16}, {vr(A_ + 4 * k, 4)} offset:{L_MEM + 2048 * w + 1024 * k}')
    a(f's_cbranch_vccnz {MRE}')
    if prof:
        stamp()
        a('s_waitcnt lgkmcnt(0)')
        a(f's_lshl_b32 s{sT}, s{sL}, 5')
        a(f's_add_u32 s{sT}, s{sT}, s{sH}')
        a(f's_lshl_b32 s{sT}, s{sT}, 2')
        a(f's_add_u32 s{sT}, s{sT}, {w}')
        a(f's_lshl_b32 s{sT}, s{sT}, 6')
        a(f's_add_u32 s{sT}, s{sT}, s{sStep}')
        a(f's_lshl_b32 s{sT}, s{sT}, 6')
        a(f's_add_u32 s{sT}, s{sT}, {PROF_OFF}')
        for k in range(10):
            a(f'v_writelane_b32 v{vT0}, s{sPROF + 2 * k}, {k}')
        a(f'v_writelane_b32 v{vT0}, s{sSpin}, 15')
        a(f'v_lshrrev_b32 v{vT1}, 2, v{vL16}')
        a('s_mov_b64 exec, 0xffff')
        a(f'buffer_store_dword v{vT0}, v{vT1}, {WS}, s{sT} offen')
        a('s_mov_b64 exec, -1')
    tail = a0.items[i_h2:]
    del a0.items[i_h2:]
    a0.items[i_loop:i_loop] = tail
    a.label(ROK)
    a('s_mov_b64 exec, vcc')
    for l in rl:
        a(l)
    a('s_mov_b64 exec, -1')
    spin_guard(a, sSpin, fail)
    a(f's_branch {RT1}')
    a.label(MRE)
    a('s_mov_b64 exec, vcc')
    for l in md:
        a(l)
    a('s_mov_b64 exec, -1')
    spin_guard(a, sSpin, fail)
    if opt.get('mwait'):
        a('s_waitcnt vmcnt(0)')
    a(f's_branch {RT}')
    if w == 0 or fresh or fresh2:
        a.label(FSL)
        flag_wait(a, sT2 if fresh or fresh2 else sT, fail)
        a(f's_branch {FRET}')
    a.label(LAST)
    for U in range(6, 8):
        for l in dcvt(U):
            a(l)
    for l in ox_pack():
        a(l)
    for u in range(2):
        a(ox_store(u, sOX))
    a(f's_branch {done}')
```

```python
import re

REG_RE = re.compile(r'^(-|\|)?(v|a|s)(\d+)\|?$')
RNG_RE = re.compile(r'^(-)?(v|a|s)\[(\d+):(\d+)\]$')
TRANS = ('v_exp_f32', 'v_log_f32', 'v_rcp_f32', 'v_rsq_f32', 'v_sqrt_f32', 'v_sin_f32', 'v_cos_f32')


def regs_of(op):
    op = op.strip()
    if op.startswith('abs(') and op.endswith(')'):
        op = op[4:-1]
    if op.startswith('-abs(') and op.endswith(')'):
        op = op[5:-1]
    m = REG_RE.match(op)
    if m:
        return [(m.group(2), int(m.group(3)))]
    m = RNG_RE.match(op)
    if m:
        return [(m.group(2), i) for i in range(int(m.group(3)), int(m.group(4)) + 1)]
    if op in ('vcc', 'vcc_lo', 'vcc_hi'):
        return [('s', 'vcc')]
    if op in ('exec', 'exec_lo', 'exec_hi'):
        return [('s', 'exec')]
    if op == 'm0':
        return [('s', 'm0')]
    return []


class Ins:
    __slots__ = ('text', 'mn', 'kind', 'wr', 'rd', 'cyc', 'srcc', 'ab', 'trans', 'dpp', 'perm', 'rdlane',
                 'wide_store', 'target', 'uncond', 'nopn', 'wait', 'lds_dma', 'sdwa', 'dst_key', 'asyncw', 'nowait')

    def __init__(self, text):
        self.nowait = text.startswith('!')
        text = text.lstrip('!')
        self.text = text
        t = text.split(';')[0].strip()
        parts = t.split(None, 1)
        mn = parts[0]
        self.mn = mn
        rest = parts[1] if len(parts) > 1 else ''
        ops, depth, cur = [], 0, ''
        for ch in rest:
            if ch in '[(':
                depth += 1
            if ch in '])':
                depth -= 1
            if ch == ',' and depth == 0:
                ops.append(cur.strip())
                cur = ''
            else:
                cur += ch
        if cur.strip():
            ops.append(cur.strip())
        mods = ''
        if ops:
            last = ops[-1].split(None, 1)
            if len(last) > 1 and not mn.startswith('s_waitcnt') and not mn.startswith('s_getreg'):
                ops[-1] = last[0]
                mods = last[1]
        self.wr, self.rd, self.srcc, self.ab, self.asyncw = [], [], [], [], []
        self.cyc = 0
        self.trans = self.dpp = self.perm = self.rdlane = self.lds_dma = self.sdwa = False
        self.wide_store = []
        self.target = None
        self.uncond = False
        self.nopn = None
        self.wait = None
        self.dst_key = None
        R = regs_of
        allr = lambda l: [r for o in l for r in R(o)]
        if mn.startswith('v_mfma') or mn.startswith('v_smfmac'):
            self.kind = 'mfma'
            self.cyc = 32 if '32x32' in mn else 16
            self.wr = R(ops[0])
            self.dst_key = (self.wr[0], len(self.wr), mn)
            if mn.startswith('v_smfmac'):
                self.srcc = R(ops[0])
                self.ab = allr(ops[1:4])
            else:
                self.srcc = R(ops[3])
                self.ab = allr(ops[1:3])
            self.rd = self.srcc + self.ab
        elif mn.startswith('ds_'):
            self.kind = 'ds'
            if mn.startswith('ds_read') or mn.startswith('ds_bpermute') or mn.startswith('ds_swizzle') or mn.startswith('ds_permute'):
                self.asyncw = R(ops[0])
                self.rd = allr(ops[1:])
            else:
                self.rd = allr(ops)
        elif mn.startswith('buffer_') or mn.startswith('global_'):
            self.kind = 'vmem'
            if mn in ('buffer_wbl2', 'buffer_inv'):
                pass
            elif 'load_lds' in mn or re.search(r'\blds\b', mods):
                self.lds_dma = True
                self.rd = allr(ops) + [('s', 'm0')]
            elif '_load_' in mn:
                self.asyncw = R(ops[0])
                self.rd = allr(ops[1:])
            elif '_atomic_' in mn:
                if re.search(r'\bsc0\b', mods):
                    self.asyncw = R(ops[0])
                    self.rd = allr(ops[1:]) if mn.startswith('global_') else allr(ops)
                else:
                    self.rd = allr(ops)
            else:
                self.rd = allr(ops)
                if 'x4' in mn or 'x3' in mn:
                    self.wide_store = R(ops[0]) if mn.startswith('buffer_') else R(ops[1])
        elif mn.startswith('v_'):
            self.kind = 'valu'
            base = mn.replace('_e32', '').replace('_e64', '')
            self.trans = base in TRANS
            self.dpp = mn.endswith('_dpp') or 'quad_perm' in mods or 'row_' in mods
            self.sdwa = mn.endswith('_sdwa') and 'dst_sel:DWORD' not in mods
            if 'permlane' in mn:
                self.perm = True
                self.wr = allr(ops[:2])
                self.rd = allr(ops[:2])
            elif mn.startswith('v_cmp'):
                self.wr = R(ops[0])
                self.rd = allr(ops[1:])
            elif mn.startswith('v_readlane') or mn.startswith('v_readfirstlane'):
                self.rdlane = True
                self.wr = R(ops[0])
                self.rd = allr(ops[1:])
            elif mn.startswith('v_add_co') or mn.startswith('v_sub_co') or mn.startswith('v_addc_co'):
                self.wr = allr(ops[:2])
                self.rd = allr(ops[2:])
            else:
                self.wr = R(ops[0])
                self.rd = allr(ops[1:])
                if 'fmac' in mn or 'dot2c' in mn or self.dpp or mn.startswith('v_writelane'):
                    self.rd += self.wr
        elif mn.startswith('s_'):
            self.kind = 'salu'
            if mn == 's_nop':
                self.nopn = int(ops[0])
            elif mn == 's_waitcnt':
                w = {}
                for k, v in re.findall(r'(vmcnt|lgkmcnt)\((\d+)\)', rest):
                    w[k] = int(v)
                self.wait = w
            elif mn == 's_branch':
                self.target = ops[0]
                self.uncond = True
            elif mn.startswith('s_cbranch'):
                self.target = ops[0]
            elif mn == 's_endpgm':
                self.uncond = True
            elif mn.startswith('s_load') or mn.startswith('s_memtime') or mn.startswith('s_memrealtime') or mn.startswith('s_buffer_load'):
                self.kind = 'smem'
                self.asyncw = R(ops[0])
                self.rd = allr(ops[1:])
            elif mn.startswith('s_cmp') or mn in ('s_barrier', 's_setprio', 's_sleep') or mn.startswith('s_bitcmp'):
                self.rd = allr(ops)
            else:
                self.wr = R(ops[0])
                self.rd = allr(ops[1:])
                if 'saveexec' in mn:
                    self.wr = self.wr + [('s', 'exec')]
        else:
            raise ValueError('unknown instruction: ' + text)


CAP = 96


class State:
    def __init__(self):
        self.h = {}
        self.vm = {}
        self.lg = {}
        self.smem = False
        self.last_mfma = None
        self.prev_mfma = False

    def copy(self):
        s = State()
        s.h = dict(self.h)
        s.vm = dict(self.vm)
        s.lg = dict(self.lg)
        s.smem = self.smem
        s.last_mfma = self.last_mfma
        s.prev_mfma = self.prev_mfma
        return s

    def merge(self, o):
        ch = False
        for k, v in o.h.items():
            if k not in self.h:
                self.h[k] = v
                ch = True
            else:
                a, i = self.h[k]
                b, j = v
                n = (min(a, b), i if i == j else (max(i[0], j[0]), None) if i and j else None)
                if n != self.h[k]:
                    self.h[k] = n
                    ch = True
        for d, e in ((self.vm, o.vm), (self.lg, o.lg)):
            for k, v in e.items():
                if k not in d or v < d[k]:
                    d[k] = v
                    ch = True
        if o.smem and not self.smem:
            self.smem = True
            ch = True
        if self.last_mfma != o.last_mfma and self.last_mfma is not None:
            self.last_mfma = None
            ch = True
        if self.prev_mfma and not o.prev_mfma:
            self.prev_mfma = False
            ch = True
        return ch

    def advance(self, dt, slot=None):
        slot = dt if slot is None else slot
        nh = {}
        for k, (a, i) in self.h.items():
            d = dt if k[0] == 'mfmaw' else slot
            if a + d < CAP:
                nh[k] = (a + d, i)
        self.h = nh
        if self.last_mfma:
            a, c = self.last_mfma
            self.last_mfma = (a + dt, c) if a + dt < CAP else None


def is_v(r):
    return r[0] in ('v', 'a')


class Asm:
    def __init__(self):
        self.items = []
        self.uid = 0

    def __call__(self, text):
        for line in text.split('\n'):
            line = line.strip()
            if not line:
                continue
            if line.startswith(';'):
                self.items.append(('c', line))
            elif line.endswith(':') and ' ' not in line:
                self.items.append(('l', line[:-1]))
            elif line.startswith('.'):
                self.items.append(('d', line))
            else:
                self.items.append(('i', Ins(line)))

    def label(self, name):
        self.items.append(('l', name))

    def newlabel(self, p='L'):
        self.uid += 1
        return f'{p}_{self.uid}'

    def comment(self, t):
        self.items.append(('c', '; ' + t))

    def _step(self, st, ins, out):
        need_vm = need_lg = None
        touched = [] if ins.nowait else ins.rd + ins.wr + ins.asyncw
        for r in touched:
            if r in st.vm:
                if not (r in ins.asyncw and ins.kind == 'vmem' and r not in ins.rd):
                    n = st.vm[r]
                    need_vm = n if need_vm is None else min(need_vm, n)
            if r in st.lg:
                if not (r in ins.asyncw and ins.kind == 'ds' and r not in ins.rd):
                    n = max(st.lg[r], 0)
                    need_lg = n if need_lg is None else min(need_lg, n)
        if need_vm is not None or need_lg is not None:
            p = []
            if need_vm is not None:
                p.append(f'vmcnt({min(need_vm, 63)})')
            if need_lg is not None:
                p.append(f'lgkmcnt({min(need_lg, 15)})')
            w = Ins('s_waitcnt ' + ' '.join(p))
            self._issue(st, w)
            out.append(w.text)
        dt = self._dt(st, ins)
        short = 0

        def need(kind, reg, states):
            nonlocal short
            e = st.h.get((kind, reg))
            if e is not None:
                req = 4 * (states + 1)
                short = max(short, req - (e[0] + (dt if kind == 'mfmaw' else 4)))

        for r in ins.rd:
            if is_v(r):
                if ins.kind == 'mfma':
                    need('valu', r, 2)
                if ins.kind == 'valu':
                    if ins.dpp or ins.perm:
                        need('valu', r, 2)
                    if ins.rdlane:
                        need('valu', r, 1)
                    if not ins.trans:
                        need('trans', r, 1)
                    need('sdwa', r, 1)
                e = st.h.get(('mfmaw', r))
                if e is not None:
                    cyc, key = e[1]
                    if ins.kind == 'mfma' and r in ins.srcc and r not in ins.ab:
                        same = key is not None and ins.srcc and key == (ins.srcc[0], len(ins.srcc), ins.mn)
                        if not same:
                            need('mfmaw', r, 6 if cyc == 16 else 10)
                    else:
                        need('mfmaw', r, 8 if cyc == 16 else 12)
            else:
                if ins.kind == 'valu' and r != ('s', 'exec'):
                    need('valus', r, 4 if ins.rdlane else 2)
                if ins.kind == 'vmem':
                    need('valus', r, 5)
                if ins.lds_dma and r == ('s', 'm0'):
                    need('m0', r, 1)
        for r in ins.wr + ins.asyncw:
            if is_v(r):
                e = st.h.get(('mfmaw', r))
                if e is not None:
                    cyc, key = e[1]
                    if ins.kind == 'mfma':
                        if not (r in ins.srcc):
                            need('mfmaw', r, 8 if cyc == 16 else 12)
                    else:
                        need('mfmaw', r, 8 if cyc == 16 else 12)
                e = st.h.get(('mfmac', r))
                if e is not None and ins.kind == 'valu':
                    need('mfmac', r, 3 if e[1][0] == 16 else 7)
                need('wstore', r, 2)
        if short > 0:
            n = (short + 3) // 4
            while n > 0:
                k = min(n, 16)
                nop = Ins(f's_nop {k - 1}')
                self._issue(st, nop)
                out.append(nop.text)
                n -= k
        self._issue(st, ins)
        out.append(ins.text)

    def _dt(self, st, ins):
        dt = 4
        if ins.kind == 'mfma' and st.last_mfma:
            a, c = st.last_mfma
            dt = max(dt, c - a)
        return dt

    def _issue(self, st, ins):
        st.advance(self._dt(st, ins), 4)
        if ins.nopn is not None:
            st.advance(4 * ins.nopn)
        st.prev_mfma = ins.kind == 'mfma'
        if ins.wait is not None:
            if 'vmcnt' in ins.wait:
                n = ins.wait['vmcnt']
                st.vm = {r: a for r, a in st.vm.items() if a < n}
            if 'lgkmcnt' in ins.wait:
                n = ins.wait['lgkmcnt']
                st.lg = {} if n == 0 else {r: a for r, a in st.lg.items() if a < n}
        if ins.kind == 'vmem':
            st.vm = {r: a + 1 for r, a in st.vm.items()}
            for r in ins.asyncw:
                st.vm[r] = 0
            for r in ins.wide_store:
                st.h[('wstore', r)] = (0, None)
        elif ins.kind == 'ds':
            st.lg = {r: (a + 1 if a >= 0 else a) for r, a in st.lg.items()}
            for r in ins.asyncw:
                st.lg[r] = 0
        elif ins.kind == 'smem':
            for r in ins.asyncw:
                st.lg[r] = -1
        elif ins.kind == 'mfma':
            for r in ins.wr:
                st.h[('mfmaw', r)] = (0, (ins.cyc, ins.dst_key))
                st.h.pop(('valu', r), None)
            for r in ins.srcc:
                st.h[('mfmac', r)] = (0, (ins.cyc, None))
            st.last_mfma = (0, ins.cyc)
        elif ins.kind == 'valu':
            for r in ins.wr:
                if is_v(r):
                    st.h[('valu', r)] = (0, None)
                    if ins.trans:
                        st.h[('trans', r)] = (0, None)
                    else:
                        st.h.pop(('trans', r), None)
                    if ins.sdwa:
                        st.h[('sdwa', r)] = (0, None)
                else:
                    st.h[('valus', r)] = (0, None)
        elif ins.kind == 'salu':
            for r in ins.wr:
                st.h.pop(('valus', r), None)
                if r == ('s', 'm0'):
                    st.h[('m0', r)] = (0, None)

    def finalize(self, entries=()):
        lab_state = {}
        for _ in range(12):
            changed = False
            out = []
            st = State()
            for kind, it in self.items:
                if kind == 'c' or kind == 'd':
                    out.append(it)
                elif kind == 'l':
                    if it in entries:
                        st = State()
                    elif it in lab_state:
                        if st is None:
                            st = lab_state[it].copy()
                        else:
                            st.merge(lab_state[it])
                    out.append(it + ':')
                else:
                    if st is None:
                        st = State()
                    self._step(st, it, out)
                    if it.target is not None:
                        t = st.copy()
                        t.prev_mfma = False
                        if it.target in lab_state:
                            changed |= lab_state[it.target].merge(t)
                        else:
                            lab_state[it.target] = t
                            changed = True
                    if it.uncond:
                        st = None
            if not changed:
                return '\n'.join(out) + '\n'
        raise RuntimeError('finalize did not converge')


def vr(base, n=1):
    return f'v{base}' if n == 1 else f'v[{base}:{base + n - 1}]'


def ar(base, n=1):
    return f'a{base}' if n == 1 else f'a[{base}:{base + n - 1}]'


def sr(base, n=1):
    return f's{base}' if n == 1 else f's[{base}:{base + n - 1}]'
```

```python
import re
from asmlib import *
from layout import *

L_MEM, L_KX, L_VX = 0, 8192, 16384
L_QM = 24576
L_KM = L_QM + 2304
L_VM = L_KM + 2304
L_ZERO = L_VM + 2048
L_WST = 32768
vL16, vW16, vXw, vQr, vKr, vIdx, vPst, vOx, v8, v9, vT0, vT1 = range(12)
A_, ACC, S_, X_ = 12, 44, 60, 124
sStep, sQKV, sQKVn, sOX, sOX2, sP, sPr, sM, sMr, sMw, sSpin, sFlag, sT, sT2, sPb, sMb, sQx, sQx2 = range(20, 38)
sC = 38
sMASK = 40
sEM, sEX = 56, 58
sSEL = 60
sOXp, sTag = 68, 69
sPROF = 70
SPIN_MAX = 1 << 22

S1A = [(t, 0) for t in range(4)] + [(0, 1), (1, 1)]
S1B = [(t, 5) for t in range(4)]
S1C = [(0, 4), (1, 4)]
S3 = [(t, 1) for t in range(4, 8)]


def resident_map():
    staged = S1A + S1B + S1C
    ops = [('qk', t, kt) for kt in range(8) for t in range(4) if (t, kt) not in staged]
    ops += [('v', t, kt) for kt in range(8) for t in range(2)]
    ops += [('o', t, z) for z in range(2) for t in range(8) if (t, z) not in S3]
    assert len(ops) == 48
    m = {}
    for i, o in enumerate(ops):
        m[o] = ('a', 8 * i) if i < 32 else ('v', 128 + 8 * (i - 32))
    for i, (t, kt) in enumerate(S1A):
        m[('qk', t, kt)] = ('lds', i, S_ + 8 * i)
    for i, (t, kt) in enumerate(S1B):
        m[('qk', t, kt)] = ('lds', 6 + i, S_ + 8 * i)
    for i, (t, kt) in enumerate(S1C):
        m[('qk', t, kt)] = ('lds', 10 + i, S_ + 32 + 8 * i)
    for i, (t, z) in enumerate(S3):
        m[('o', t, z)] = ('lds', 12 + i, [ACC, S_ + 32, S_ + 16, S_ + 24][i])
    return m


RM = resident_map()


def bop(key):
    e = RM[key]
    if e[0] == 'a':
        return ar(e[1], 8)
    if e[0] == 'v':
        return vr(e[1], 8)
    return vr(e[2], 8)


def stage_reads(key):
    e = RM[key]
    return [f'ds_read_b128 {vr(e[2] + 4 * hh, 4)}, v{vW16} offset:{e[1] * 2048 + hh * 1024}' for hh in range(2)]


def zfill(reg):
    return f'ds_read_b128 {vr(reg, 4)}, v{vL16} offset:{L_ZERO}'


XW = 0
vCNT, vFLG = 124, 7


sOKF = 78


def count_load(a, d_ready):
    a(f's_load_dwordx2 s[70:71], s[0:1], {KA_DBG}')
    a(f'v_mov_b32 v114, {d_ready}')
    a('s_waitcnt lgkmcnt(0)')
    a('s_mov_b64 exec, 1')
    a(f'global_load_dword v{vCNT}, v114, s[70:71] sc1')
    a('s_mov_b64 exec, -1')


def flag_load(a, dst):
    a(f'v_readlane_b32 s79, v{vCNT}, 0')
    a('v_mbcnt_lo_u32_b32 v113, -1, 0')
    a('v_lshlrev_b32 v112, 4, v113')
    a(f's_lshl_b32 s3, s{sL}, 5')
    a(f's_add_u32 s3, s3, s{sH}')
    a('s_lshl_b32 s76, s3, 8')
    a(f's_add_u32 s76, s76, {FLAG_OFF}')
    a('s_mov_b64 exec, 0xfff')
    a(f'buffer_load_dword v{dst}, v112, {WS}, s76 offen sc1')
    a('s_mov_b64 exec, -1')


def check_eval(a, src, need):
    a('s_mov_b64 exec, 0xfff')
    a(f'v_cmp_gt_u32 vcc, {need}, v{src}')
    a('s_mov_b64 exec, -1')
    a('s_cmp_eq_u64 vcc, 0')
    a('s_cselect_b32 s76, s79, 0')
    a('s_cmp_ge_u32 s76, 48')


def first_loads(a):
    a(f's_load_dwordx2 s[72:73], s[0:1], {KA_MEM0}')
    a('s_mov_b32 s74, 8192')
    a('s_mov_b32 s75, 0x20000')
    a('v_mbcnt_lo_u32_b32 v113, -1, 0')
    a('v_mbcnt_hi_u32_b32 v113, -1, v113')
    a('v_lshlrev_b32 v112, 4, v113')
    a(f's_lshl_b32 s3, s{sL}, 5')
    a(f's_add_u32 s3, s3, s{sH}')
    a('s_lshl_b32 s3, s3, 6')
    a(f's_mul_i32 s77, s3, {QKV_BLK}')
    a(f's_lshl_b32 s3, s{sW}, 12')
    a(f's_add_u32 m0, s3, {L_KX}')
    a('s_add_u32 s3, s3, s77')
    for p in range(4):
        a(f'buffer_load_dwordx4 v112, {WS}, s3 offen offset:{1024 * p} sc1 lds')
    a('v_and_b32 v114, 1, v113')
    a('v_bfe_u32 v115, v113, 2, 2')
    a('v_lshl_add_u32 v114, v115, 1, v114')
    a('v_lshrrev_b32 v115, 4, v113')
    a('v_bfe_u32 v113, v113, 1, 1')
    a('v_lshlrev_b32 v114, 10, v114')
    a('v_lshl_add_u32 v114, v115, 5, v114')
    a('v_lshl_add_u32 v114, v113, 4, v114')
    a(f's_lshl_b32 s3, s{sW}, 11')
    a('s_add_u32 s3, s3, s77')
    a('s_add_u32 s3, s3, 16384')
    a(f'buffer_load_dwordx4 v[116:119], v112, {WS}, s3 offen sc1')
    a(f'buffer_load_dwordx4 v[120:123], v112, {WS}, s3 offen offset:1024 sc1')
    a(f's_lshl_b32 s3, s{sL}, 19')
    a(f's_lshl_b32 s76, s{sH}, 13')
    a('s_add_u32 s3, s3, s76')
    a(f's_and_b32 s76, s{sW}, 1')
    a('s_lshl_b32 s76, s76, 18')
    a('s_add_u32 s3, s3, s76')
    a(f's_add_u32 s3, s3, {CPART_OFF}')
    a(f's_lshl_b32 s76, s{sL}, 15')
    a(f's_lshl_b32 s77, s{sH}, 10')
    a('s_add_u32 s76, s76, s77')
    a(f's_add_u32 s76, s76, {CMEM_OFF}')
    a(f's_cmp_lt_u32 s{sW}, 2')
    a('s_cselect_b32 s3, s3, s76')
    a('s_cselect_b32 s76, 3, 0')
    a('v_lshlrev_b32 v115, s76, v112')
    a(f'buffer_load_dword v115, v115, {WS}, s3 offen sc1')
    a('s_waitcnt lgkmcnt(0)')
    for k in range(2):
        a(f's_lshl_b32 s3, s{sW}, 11')
        a(f's_add_u32 m0, s3, {L_MEM + 1024 * k}')
        a(f's_lshl_b32 s3, s{sW}, 8')
        a(f's_add_u32 s3, s3, {128 * k}')
        a('buffer_load_dwordx4 v114, s[72:75], s3 offen lds')


def emit_chain_setup(a, hook=None, d_ready=None, opt=None):
    lane, vn, vgb, vAq, vAv, vAo = 0, 1, 2, 3, 4, 5
    a(f'v_and_b32 v{vn}, 15, v{lane}')
    a(f'v_lshrrev_b32 v{vgb}, 4, v{lane}')
    a(f'v_lshrrev_b32 v6, 1, v{vgb}')
    a(f'v_and_b32 v7, 1, v{vgb}')
    a(f'v_lshlrev_b32 v8, 17, v6')
    a(f'v_lshl_add_u32 v8, v7, 15, v8')
    a(f'v_lshl_add_u32 v{vAq}, v{vn}, 3, v8')
    a(f'v_and_b32 v9, 14, v{vn}')
    a(f'v_lshl_add_u32 v{vAv}, v9, 2, v8')
    a(f'v_and_b32 v9, 1, v{vn}')
    a(f'v_lshl_add_u32 v{vAv}, v9, 18, v{vAv}')
    a(f'v_lshlrev_b32 v8, 15, v7')
    a(f'v_lshl_add_u32 v8, v6, 13, v8')
    a(f'v_lshl_add_u32 v{vAo}, v{vn}, 3, v8')
    a(f's_lshl_b32 s3, s{sW}, 15')
    a(f's_add_u32 s3, s3, {L_WST}')
    a(f'v_lshl_add_u32 v6, v{lane}, 4, s3')
    vSt = 6
    a(f's_load_dwordx4 s[40:43], s[0:1], {KA_WQ}')
    a(f's_load_dwordx4 s[44:47], s[0:1], {KA_WV}')
    a('s_waitcnt lgkmcnt(0)')
    a(f's_cmp_lt_u32 s{sW}, 2')
    a('s_cselect_b32 s4, s40, s42')
    a('s_cselect_b32 s5, s41, s43')
    a('s_mov_b32 s6, 0x400000')
    a('s_mov_b32 s7, 0x20000')
    a('s_mov_b32 s8, s44')
    a('s_mov_b32 s9, s45')
    a('s_mov_b32 s10, 0x400000')
    a('s_mov_b32 s11, 0x20000')
    a('s_mov_b32 s48, s46')
    a('s_mov_b32 s49, s47')
    a('s_mov_b32 s50, 0x400000')
    a('s_mov_b32 s51, 0x20000')
    a(f's_lshl_b32 s20, s{sH}, 8')
    a(f's_and_b32 s21, s{sW}, 1')
    a('s_lshl_b32 s21, s21, 7')
    a('s_add_u32 s21, s21, s20')
    a(f's_lshl_b32 s22, s{sW}, 6')
    a('s_add_u32 s22, s22, s20')
    a(f's_lshl_b32 s23, s{sH}, 17')
    a(f's_lshl_b32 s24, s{sW}, 8')
    a('s_add_u32 s23, s23, s24')
    a(f's_and_b32 s24, s{sW}, {XW}')
    a('s_lshl_b32 s24, s24, 7')
    a('s_add_u32 s23, s23, s24')
    a('s_xor_b32 s29, s23, 128')
    a('s_mov_b32 s26, 0x05040100')
    a('s_mov_b32 s27, 0x07060302')
    a('s_mov_b32 s30, 0x55555555')
    a('s_mov_b32 s31, 0x55555555')
    SEL = (26, 27)
    rowqk = lambda jb: 32 * (jb >> 3) + 8 * ((jb >> 1) & 1) + 2 * ((jb >> 2) & 1) + (jb & 1)
    rowo = lambda jb: 16 * (jb >> 3) + 2 * (jb & 3) + ((jb >> 2) & 1)
    BUF = [16, 48, 80]
    TMP = 8
    units = []

    def put(key, j0, n, srcs):
        out = []
        e = RM[key]
        for k, (hi, lo, sel) in enumerate(srcs):
            if e[0] == 'v':
                out.append(f'v_perm_b32 v{e[1] + j0 + k}, v{hi}, v{lo}, s{SEL[sel]}')
            else:
                out.append(f'v_perm_b32 v{TMP + k}, v{hi}, v{lo}, s{SEL[sel]}')
        if e[0] == 'a':
            out += [f'v_accvgpr_write_b32 a{e[1] + j0 + k}, v{TMP + k}' for k in range(n)]
        elif e[0] == 'lds':
            for hh in range(n // 4):
                out.append(f'ds_write_b128 v{vSt}, {vr(TMP + 4 * hh, 4)} offset:{e[1] * 2048 + (j0 // 4 + hh) * 1024}')
        return out

    def rot(kt, base):
        return [f's_lshl_b32 s28, s{sW}, 1', f's_add_u32 s28, s28, {kt}', 's_and_b32 s28, s28, 7', 's_lshl_b32 s28, s28, 19', f's_add_u32 s28, s28, s{base}']

    for kt in range(8):
        def ld(B, kt=kt):
            o = rot(kt, 21)
            for jb in range(16):
                o.append(f's_add_u32 s25, s28, {rowqk(jb) * 8192}')
                o.append(f'buffer_load_dwordx2 {vr(B + 2 * jb, 2)}, v{vAq}, s[4:7], s25 offen')
            return o

        def pr(B, kt=kt):
            o = []
            for t in range(4):
                o += put(('qk', t, kt), 0, 8, [(B + 2 * (2 * jj + 1) + (t >> 1), B + 2 * (2 * jj) + (t >> 1), t & 1) for jj in range(8)])
            return o
        units.append((ld, pr))
    for kp in range(4):
        def ld(B, kp=kp):
            o = []
            for kk in range(2):
                for jb in range(8):
                    o.append(f's_add_u32 s25, s22, {(64 * (2 * kp + kk) + rowqk(jb)) * 8192}')
                    o.append(f'buffer_load_dwordx2 {vr(B + 16 * kk + 2 * jb, 2)}, v{vAv}, s[8:11], s25 offen')
            return o

        def pr(B, kp=kp):
            o = []
            for kk in range(2):
                R = B + 16 * kk
                o.append('s_mov_b64 vcc, s[30:31]')
                o += [f'v_cndmask_b32_dpp v{112 + j}, v{R + 2 * j + 1}, v{R + 2 * j}, vcc quad_perm:[0,0,2,2] row_mask:0xf bank_mask:0xf' for j in range(8)]
                o.append('s_not_b64 vcc, vcc')
                o += [f'v_cndmask_b32_dpp v{R + 2 * j + 1}, v{R + 2 * j}, v{R + 2 * j + 1}, vcc quad_perm:[1,1,3,3] row_mask:0xf bank_mask:0xf' for j in range(8)]
                row = lambda jb: 112 + jb if jb < 8 else R + 2 * (jb - 8) + 1
                for t in range(2):
                    o += put(('v', t, 2 * kp + kk), 0, 8, [(row(2 * jj + 1), row(2 * jj), t) for jj in range(8)])
            return o
        units.append((ld, pr))
    for z in range(2):
        for hb in range(2):
            def ld(B, z=z, hb=hb):
                o = []
                for jb in range(16):
                    o.append(f's_add_u32 s25, s{23 if hb == 0 else 29}, {(64 * z + rowo(jb)) * 1024}')
                    o.append(f'buffer_load_dwordx2 {vr(B + 2 * jb, 2)}, v{vAo}, s[48:51], s25 offen')
                return o

            def pr(B, z=z, hb=hb):
                o = []
                for t in range(4):
                    o += put(('o', 4 * hb + t, z), 0, 8, [(B + 2 * (2 * jj + 1) + (t >> 1), B + 2 * (2 * jj) + (t >> 1), t & 1) for jj in range(8)])
                return o
            units.append((ld, pr))
    opt = opt or {}
    if opt.get('wfl'):
        units = [((lambda B, f=ld: [x + ' ' + opt['wfl'] if x.startswith('buffer') else x for x in f(B)]), pr) for ld, pr in units]
    if opt.get('wofirst', 0):
        units = units[12:] + units[8:12] + units[:8]
    D = opt.get('depth', 2)
    n = len(units)
    for u in range(n + 2):
        if hook:
            if u == n - 6 and not opt.get('one', 1):
                count_load(a, d_ready)
            if u == n - 3:
                flag_load(a, vFLG)
            if u == n:
                NL = a.newlabel('CNL')
                check_eval(a, vFLG, 2)
                a(f's_cselect_b32 s{sOKF}, 1, 0')
                a(f's_cbranch_scc0 {NL}')
                first_loads(a)
                a.label(NL)
        if opt.get('vbar') and 8 <= u < 12:
            a('s_barrier')
        if u < n:
            for l in units[u][0](BUF[u % 3]):
                if opt.get('cap') and l.startswith('buffer'):
                    a(f's_waitcnt vmcnt({opt["cap"] - 1})')
                a(l)
        if hook:
            hook(u)
        if D <= u < n + D:
            for l in units[u - D][1](BUF[(u - D) % 3]):
                a(l)
    a('v_mov_b64 v[12:13], 0')
    a('v_mov_b64 v[14:15], 0')
    a(f'v_lshlrev_b32 v8, 4, v{lane}')
    a(f'ds_write_b128 v8, v[12:15] offset:{L_ZERO}')
    a(f'v_mov_b32 v125, v{vFLG}')
    a('s_waitcnt lgkmcnt(0)')


def emit_chain_consts(a, w, par=0):
    i, g, t1, t2, vtq, vhf = 20, 21, 22, 23, 24, 25
    a(f'v_and_b32 v{i}, 15, v0')
    a(f'v_lshrrev_b32 v{g}, 4, v0')
    a(f'v_lshrrev_b32 v{t1}, 2, v{i}')
    a(f'v_and_b32 v{t2}, 1, v{i}')
    a(f'v_lshl_add_u32 v{vtq}, v{t1}, 1, v{t2}')
    a(f'v_bfe_u32 v{vhf}, v{i}, 1, 1')
    a(f'v_mov_b32 v26, v0')
    a(f'v_lshlrev_b32 v{vL16}, 4, v26')
    a(f'v_add_u32 v{vW16}, {L_WST + w * 32768}, v{vL16}')
    a('s_movk_i32 s3, 144')
    if w < 2:
        a(f'v_lshrrev_b32 v27, 1, v{i}')
        a(f'v_mul_lo_u32 v27, v27, s3')
        a(f'v_lshl_add_u32 v27, v{g}, 5, v27')
        a(f'v_lshl_add_u32 v27, v{t2}, 3, v27')
        a(f'v_add_u32 v{vXw}, {L_QM + 8 * w * 144}, v27')
    else:
        a(f'v_lshlrev_b32 v27, 1, v{t1}')
        a(f'v_mul_lo_u32 v27, v27, s3')
        a(f'v_lshl_add_u32 v27, v{g}, 5, v27')
        a(f'v_and_b32 v28, 3, v{i}')
        a(f'v_lshl_add_u32 v27, v28, 2, v27')
        a(f'v_add_u32 v{vXw}, {L_KM + 8 * (w - 2) * 144}, v27')
    a(f'v_mul_lo_u32 v27, v{g}, s3')
    a(f'v_lshl_add_u32 v27, v{vtq}, 4, v27')
    a(f'v_add_u32 v{vQr}, {L_QM}, v27')
    a(f'v_lshl_add_u32 v27, v{g}, 1, v{vhf}')
    a(f'v_mul_lo_u32 v27, v27, s3')
    a(f'v_lshl_add_u32 v27, v{vtq}, 4, v27')
    a(f'v_add_u32 v{vKr}, {L_KM}, v27')
    a(f'v_mul_u32_u24 v27, 0xaaaa, v{vhf}')
    a(f'v_add_u32 v{vIdx}, 0x4444, v27')
    a(f'v_lshlrev_b32 v27, 13, v{t1}')
    a(f'v_lshl_add_u32 v27, v{g}, 11, v27')
    a(f'v_and_b32 v28, 3, v{i}')
    a(f'v_lshl_add_u32 v27, v28, 4, v27')
    a(f's_lshl_b32 s3, s{sH}, 6')
    a(f's_add_u32 s3, s3, {8 * w * 8192}')
    a(f'v_add_u32 v{vPst}, s3, v27')
    for k in range(4):
        smov64(a, sSEL + 2 * k, mask64(lambda i, g: (i >> 1) == k))
    a(f'v_lshlrev_b32 v28, 10, v{vtq}')
    a(f'v_lshl_add_u32 v28, v{g}, 5, v28')
    a(f'v_lshl_add_u32 v28, v{vhf}, 4, v28')
    for T in range(2):
        for rho in range(4):
            m = mask64(lambda i, g: hf(i) == 1 and 16 * (g >> 1) + 8 * T + 4 * (g & 1) + rho > (16 * (w & 1) + 2 * tq(i) + (w >> 1) if par else 8 * w + tq(i)))
            smov64(a, sMASK + 2 * (4 * T + rho), m)
    smov64(a, sEM, 0x3333333333333333)
    smov64(a, sEX, 0xcccccccccccccccc)
    a(f's_mov_b32 s{sC}, {f32bits(SCALE_A):#x}')
    a(f's_mov_b32 s{sC + 1}, {f32bits(SCALE_A):#x}')
    a(f's_mov_b32 s{sStep}, 0')
    a(f's_lshl_b32 s3, s{sL}, 5')
    a(f's_add_u32 s3, s3, s{sH}')
    a('s_lshl_b32 s3, s3, 6')
    a(f's_mul_i32 s{sQKV}, s3, {QKV_BLK}')
    a(f's_lshl_b32 s{sOX}, s3, 13')
    a(f's_add_u32 s{sOX}, s{sOX}, {OX_OFF + 2048 * w}')
    a(f's_lshl_b32 s{sPb}, s{sL}, 19')
    a(f's_add_u32 s{sPb}, s{sPb}, {CPART_OFF}')
    a(f's_lshl_b32 s{sMb}, s{sL}, 15')
    a(f's_add_u32 s{sMb}, s{sMb}, {CMEM_OFF}')
    a(f's_lshl_b32 s3, s{sL}, 5')
    a(f's_add_u32 s3, s3, s{sH}')
    a('s_lshl_b32 s3, s3, 8')
    a(f's_add_u32 s{sFlag}, s3, {FLAG_OFF}')


def flag_wait(a, need_sreg, fail, preloaded=False):
    L, Lok = a.newlabel('FW'), a.newlabel('FOK')
    a('s_mov_b64 exec, 0xfff')
    if preloaded:
        a(f'v_cmp_gt_u32 vcc, s{need_sreg}, v{v9}')
        a(f's_cbranch_vccz {Lok}')
    a.label(L)
    spin_guard(a, sSpin, fail)
    a(f'buffer_load_dword v{v9}, v{vL16}, {WS}, s{sFlag} offen sc1')
    a(f'v_cmp_gt_u32 vcc, s{need_sreg}, v{v9}')
    a(f's_cbranch_vccnz {L}')
    a.label(Lok)
    a('s_mov_b64 exec, -1')


def prefetch_next(a):
    for key in S1A:
        for l in stage_reads(('qk',) + key):
            a(l)
    for t in range(4):
        a(f'v_mov_b64 {vr(ACC + 4 * t, 2)}, 0')
        a(f'v_mov_b64 {vr(ACC + 4 * t + 2, 2)}, 0')


def emit_chain_first(a, w, fail, d_ready, need2=True):
    RE, OK = a.newlabel('CF'), a.newlabel('CK')
    a(f's_mov_b32 s{sSpin}, 0')
    a(f's_cmp_eq_u32 s{sOKF}, 1')
    a(f's_cbranch_scc1 {OK}')
    a.label(RE)
    spin_guard(a, sSpin, fail)
    RF = a.newlabel('CG')
    a('s_cmp_ge_u32 s79, 48')
    a(f's_cbranch_scc1 {RF}')
    count_load(a, d_ready)
    a.label(RF)
    flag_load(a, 125)
    check_eval(a, 125, 1)
    a(f's_cbranch_scc0 {RE}')
    first_loads(a)
    if w == 0 and need2:
        a(f's_mov_b32 s{sT}, 2')
        flag_wait(a, sT, fail)
        a(f'v_mov_b32 v125, v{v9}')
    a.label(OK)
    a(f'v_mov_b32 v{v9}, v125')
    a('s_waitcnt vmcnt(0)')
    for k in range(2):
        a(f'ds_read_b128 {vr(A_ + 4 * k, 4)}, v{vL16} offset:{L_MEM + 1024 * (2 * w + k)}')
    prefetch_next(a)
    a(f's_mov_b32 s{sOXp}, {WS_BYTES}')
    a('s_waitcnt lgkmcnt(0)')


def emit_chain_loop(a0, w, fast, fail, done, prof=False, opt=None):
    opt = opt or {}
    drop = opt.get('drop', [])

    class Filt:
        def __call__(self, text):
            for line in text.split('\n'):
                if not any(re.search(p, line) for p in drop):
                    a0(line)

        def __getattr__(self, n):
            return getattr(a0, n)
    a = Filt()
    sc = '' if fast else ' sc1'
    LOOP = a.newlabel('CL')
    LAST = a.newlabel('CLAST')
    npr = [0]

    fine = opt.get('fine')

    def fstamp(name):
        if prof and fine and name in fine:
            a(f's_memtime {sr(sPROF + 16 + 2 * fine.index(name), 2)}')

    def stamp():
        if prof:
            a(f'{"s_memrealtime" if opt.get("rt") else "s_memtime"} {sr(sPROF + 2 * npr[0], 2)}')
            npr[0] += 1

    def smf(d, A, B):
        return f'v_smfmac_f32_16x16x64_bf16 {vr(d, 4)}, {vr(A, 4)}, {B}, v{vIdx}'

    Q_, VACC = S_ + 32, S_ + 48
    QA, QB, KM_ = S_ + 56, S_ + 40, S_ + 32
    QE = [QA, QA + 4, QB, QB + 4]
    T0, T1, TM = ACC, ACC + 4, X_
    DD = [S_ + 48 + 2 * U for U in range(8)]

    def ox_store(u, s0):
        return f'buffer_store_dwordx4 {vr(DD[2 * u], 4)}, v{vL16}, {WS}, s{s0} offen offset:{1024 * u} sc1'

    def ox_pack():
        o = [f's_mov_b64 vcc, {sr(sEX, 2)}']
        o += [f'v_cndmask_b32_dpp v{DD[0] + k}, v{DD[4] + k}, v{DD[0] + k}, vcc quad_perm:[2,3,2,3] row_mask:0xf bank_mask:0xf' for k in range(8)]
        o += [f'v_min_u32 v{DD[2 * u]}, -2, v{DD[2 * u]}' for u in range(2)]
        return o

    def memrd(k):
        return f'ds_read_b128 {vr(A_ + 4 * k, 4)}, v{vL16} offset:{L_MEM + 1024 * ((2 * w + k) & 7)}'
    sal = [f's_add_u32 s{sQx}, s{sQKV}, {16384 + 2048 * w}',
           f's_add_u32 s{sQKVn}, s{sQKV}, {0 if opt.get("samekv") else QKV_BLK}', f's_add_u32 s{sQx2}, s{sQKVn}, {8192 * max(w - 1, 0)}']
    for l in sal:
        a(l)
    a(f'v_lshlrev_b32 v{vOx}, 3, v{vL16}')
    a(f's_branch {LOOP}')
    i_loop = len(a0.items)
    a.label(LOOP)
    mreg = opt.get('mreg', 3)
    if not mreg:
        a('s_barrier')
    stamp()
    order = [(t, kt) for kt in range(6) for t in range(4)] + [(t, kt) for t in range(4) for kt in (6, 7)]
    mem = [[] for _ in range(32)]
    alu = [[] for _ in range(32)]
    qearly = opt.get('qearly', 0)
    qld = [f'buffer_load_dwordx4 {vr(QA + 4 * p, 4)}, v{vL16}, {WS}, s{sQx} offen offset:{1024 * p} sc1' for p in range(2)]
    vm = ['\n'.join(qld)] if qearly else []
    kpv = opt.get('kpv', 0)
    kreal = 0 if kpv else opt.get('kreal', 1)
    vlate = opt.get('vlate', 0)
    if w > (1 if kreal and not opt.get('kwarm') else 0) and opt.get('warm', 1):
        warm_ld = f'buffer_load_dword v{v8}, v{vOx}, {WS}, s{sQx2} offen sc1'
        wwhen = opt.get('vw', 'x2') if w == 2 else (None if opt.get('qlds') else opt.get('qw', 'b1'))
        if wwhen == 'b1':
            vm.append(warm_ld)
    else:
        wwhen = None
    flag_ld = f's_mov_b64 exec, 0xfff\nbuffer_load_dword v{v9}, v{vL16}, {WS}, s{sFlag} offen sc1\ns_mov_b64 exec, -1'
    fresh = opt.get('fresh', 0)
    fresh2 = opt.get('fresh2', 0)
    if fresh2:
        vm = [flag_ld] + vm
    if kpv and w == 0:
        vm = [flag_ld] + vm
    if fresh:
        vm = [flag_ld + ''.join('\n' + x for x in vm)]
    vm += [ox_store(0, sOXp), ox_store(1, sOXp)]
    op = opt.get('opos', 0)
    for k, l in enumerate(vm):
        mem[4 * k + w + (op if l.startswith('buffer_store') else opt.get('wpos', 0))].append(l)
    rd = [memrd(k) for k in range(2, 8)]
    rd += [l for key in S1C + S1B for l in stage_reads(('qk',) + key)]
    if mreg:
        kb = mreg - 1
        mem[kb] += ['s_waitcnt lgkmcnt(0)', 's_barrier', rd[0], rd[1]]
        mem[kb + 1] += [rd[2], rd[3]]
        mem[kb + 2] += [rd[4], rd[5]]
        for k, l in enumerate(rd[6:]):
            mem[max(6 + k, kb + 3 + k // 2 if k < 4 else 0)].append(l)
        if opt.get('wfirst', 0):
            for k in range(32):
                wl = [l for l in mem[k] if l.startswith('buffer_load_dword ')]
                if wl:
                    mem[k] = [l for l in mem[k] if l not in wl]
                    ib = mem[kb].index('s_barrier') + (1 if opt['wfirst'] == 1 else 3)
                    mem[kb][ib:ib] = ['@' + l for l in wl]
        for k in range(32):
            far = [l for l in mem[k] if l.startswith('buffer')]
            if far and k <= kb:
                mem[k] = [l for l in mem[k] if not l.startswith('buffer')]
                mem[kb + 1 + k] += far
        mem[kb] = [l.lstrip('@') for l in mem[kb]]
    else:
        for k, l in enumerate(rd):
            mem[k].append(l)
    for j in range(8):
        mem[21 + j].append(f'ds_read_b128 {vr(S_ + 4 * j, 4)}, v{vL16} offset:{L_KX + j * 1024}')
    qmv = [f'v_mov_b32_dpp v{QB + k}, v{QA + k} quad_perm:[0,1,0,1] row_mask:0xf bank_mask:0xf' for k in range(8)]
    if qearly:
        for k in range(4):
            alu[17 + k].append(f'v_mov_b64 {vr(VACC + 2 * k, 2)}, 0')
        alu[21].append(f'v_mov_b32 v{vT1}, {NEG:#x}')
        for k in range(5):
            alu[22 + k].append(qmv[k])
        qrest = qmv[5:]
    else:
        zp = [13, 14, 15, 16] if op <= 1 else [16, 17, 25, 26] if op <= 4 else [24, 25, 26, 26]
        for k in range(4):
            alu[zp[k]].append(f'v_mov_b64 {vr(VACC + 2 * k, 2)}, 0')
        for k in range(8):
            alu[18 + k].append(qmv[k])
        alu[12 if op > 1 else 26].append(f'v_mov_b32 v{vT1}, {NEG:#x}')
        qrest = []
    for k, (tt, x) in zip((27, 28, 29, 30, 31, 31), ((0, 0), (0, 1), (1, 0), (1, 1), (2, 0), (2, 1))):
        alu[k].append(f'v_add_f32 v{ACC + 4 * tt + x}, v{ACC + 4 * tt + x}, v{ACC + 4 * tt + 2 + x}')
    FSL, FRET = a.newlabel('FSL'), a.newlabel('FRET')
    fhop = opt.get('fhop', 1) and not fresh2
    if w == 0 and not fhop and not fresh2:
        mem[6] += [f's_add_u32 s{sT}, s{sStep}, 2', f's_min_u32 s{sT}, s{sT}, {NSEG}']
        alu[7] += ['s_mov_b64 exec, 0xfff', f'v_cmp_gt_u32 vcc, s{sT}, v{v9}', 's_mov_b64 exec, -1']
        mem[10] += [f's_cbranch_vccnz {FSL}', FRET + ':']
    if wwhen == 'qk':
        mem[19].append(warm_ld)
    for k, (t, kt) in enumerate(order):
        a(smf(ACC + 4 * t, A_ + 4 * kt, bop(('qk', t, kt))))
        for l in mem[k] + alu[k]:
            a(l)
    stamp()
    for x in range(2):
        a(f'v_cvt_pk_bf16_f32 v{X_ + 2 * x}, v{ACC + x}, v{ACC + 4 + x}')
    masks = [f'v_cndmask_b32 v{T0 + k}, 0, v{vT1}, {sr(sMASK + 2 * k, 2)}' for k in range(8)]
    pend = qrest + masks
    a(pend.pop(0))
    a(pend.pop(0))
    for x in range(2):
        a(f'v_add_f32 v{ACC + 12 + x}, v{ACC + 12 + x}, v{ACC + 14 + x}')
    for x in range(2):
        a(f'v_cvt_pk_bf16_f32 v{X_ + 2 * x + 1}, v{ACC + 8 + x}, v{ACC + 12 + x}')
    for x in range(2):
        if w < 2:
            a(f'ds_write_b64 v{vXw}, {vr(X_ + 2 * x, 2)} offset:{16 * x}')
        else:
            a(f'ds_write2_b32 v{vXw}, v{X_ + 2 * x}, v{X_ + 2 * x + 1} offset0:{4 * x} offset1:{36 + 4 * x}')
    vlist = [(t, kt) for kt in range(8) for t in range(2)]
    vi = [0]

    def vmf(n, fillers=()):
        fillers = list(fillers)
        for _ in range(n):
            t, kt = vlist[vi[0]]
            vi[0] += 1
            a(smf(VACC + 4 * t, A_ + 4 * ((kt - 2 * w) & 7), bop(('v', t, kt))))
            if fillers:
                a(fillers.pop(0))
        for l in fillers:
            a(l)
    PX, PM = ACC + 12, ACC + 8
    n1, n2 = opt.get('nv1', 5), opt.get('nv2', 5)
    todo = pend + [f'v_mov_b32 v{PM + 1}, 0', f'v_mov_b32 v{PM + 2}, 0']
    f1 = todo[:n1]
    f1[0] = f's_mov_b32 m0, {L_KX + 2048 * w}\ns_add_u32 s{sT}, s{sQKVn}, {2048 * w}\n' + f1[0]
    vmf(n1, f1)
    todo = todo[n1:]
    a('s_waitcnt lgkmcnt(0)')
    a('s_barrier')
    stamp()
    a(f's_mov_b64 exec, {sr(sEM, 2)}')
    for E in range(4):
        a(f'ds_read_b128 {vr(QE[E], 4)}, v{vQr} offset:{576 * E}')
    a('s_mov_b64 exec, -1')
    for z in range(2):
        a(f'ds_read_b128 {vr(KM_ + 4 * z, 4)}, v{vKr} offset:{1152 * z}')
    fstamp('rd')
    kk = [f'buffer_load_dwordx4 v{vL16}, {WS}, s{sT} offen offset:{1024 * p} sc1 lds' if kreal else '' for p in range(2)]
    kkf = kk
    klate = opt.get('klate', 'sm')
    if fresh or klate is not None:
        kk = ['', '']
    todo += [f'v_mov_b64 {vr(TM, 2)}, 0', f'v_mov_b64 {vr(TM + 2, 2)}, 0']
    fl = [kk[0] if k == w else '' for k in range(n2)]
    if wwhen == 'x2':
        fl[0] = warm_ld
    qlds = opt.get('qlds')
    qd = [f'buffer_load_dwordx4 v{vL16}, {WS}, s{sT2} offen offset:{1024 * p} sc1 lds' for p in range(2)]
    qset = f's_mov_b32 m0, {L_MEM + 2048 * w}\ns_add_u32 s{sT2}, s{sQKVn}, {16384 + 2048 * w}'
    kset = f's_mov_b32 m0, {L_KX + 2048 * w}'
    if qlds == 'x2':
        fl[0] = qset + '\n' + fl[0]
        fl[1 + (w & 1)] += '\n' + qd[0]
        fl[3 + (w & 1)] += '\n' + qd[1]
    for k, l in enumerate(todo):
        fl[k % n2] += '\n' + l
    vmf(n2, fl)
    fstamp('v2')
    VX_ = S_
    vxr = [f'ds_read_b128 {vr(VX_ + 4 * U, 4)}, v{vL16} offset:{L_VX + 1024 * U}' for U in range(8)]

    def sc_(E, T):
        return f'v_mfma_f32_16x16x32_bf16 {vr(T0 + 4 * T, 4)}, {vr(S_ + 16 * T + 4 * E, 4)}, {vr(QE[E], 4)}, {vr(T0 + 4 * T, 4)}'
    seq = [sc_(0, 0), sc_(0, 1), sc_(1, 0), sc_(1, 1), smf(TM, KM_, vr(QE[0], 8)), sc_(2, 0), sc_(2, 1),
           smf(TM, KM_ + 4, vr(QE[2], 8)), sc_(3, 0), sc_(3, 1)]
    after = {1: [vxr[0]], 2: [vxr[4]], 3: [vxr[1]], 4: [vxr[5]], 6: [vxr[2]], 7: [vxr[6]], 9: [vxr[3], vxr[7]]}
    for k, l in enumerate(seq):
        a(l)
        if k == w:
            a(kk[1])
        if qlds == 'sc':
            if k == 0:
                a(qset)
            if k == 1 + w:
                a(qd[0])
            if k == 5 + w:
                a(qd[1])
        if qlds and k == 9:
            a(kset)
        if w == 0 and k == 5 and not fresh and not fresh2 and not kpv and opt.get('fpos', -5) < 0:
            a(flag_ld)
        if fresh:
            kp = opt.get('kp', 5)
            if k == kp - 3:
                a(f's_add_u32 s{sT2}, s{sStep}, 2')
                a(f's_min_u32 s{sT2}, s{sT2}, {NSEG}')
                a('s_mov_b64 exec, 0xfff')
                a(f'v_cmp_gt_u32 vcc, s{sT2}, v{v9}')
                a('s_mov_b64 exec, -1')
            if k == kp:
                a(f's_cbranch_vccnz {FSL}')
                a.label(FRET)
                a(kkf[0])
            if k == kp + 2:
                a(kkf[1])
        for x in after.get(k, []):
            a(x)
        fstamp(f'sc{k}')
    stamp()
    a(f'v_add_f32 v{TM}, v{TM}, v{TM + 2}')
    a(f'v_add_f32 v{TM + 1}, v{TM + 1}, v{TM + 3}')
    a(f'v_max3_f32 v{vT0}, v{TM}, v{TM + 1}, v{T0}')
    a(f'v_max3_f32 v{vT0}, v{vT0}, v{T0 + 1}, v{T0 + 2}')
    if opt.get('m7', 1):
        vmf(1)
    a(f'v_max3_f32 v{vT0}, v{vT0}, v{T0 + 3}, v{T1}')
    a(f'v_max3_f32 v{vT0}, v{vT0}, v{T1 + 1}, v{T1 + 2}')
    a(f'v_max_f32 v{vT1}, v{vT0}, v{T1 + 3}')
    a(f'v_max_f32 v{vT0}, v{vT0}, v{T1 + 3}')
    vmf(1)
    a(f'v_permlane16_swap_b32 v{vT0}, v{vT1}')
    a(f'v_max_f32 v{vT0}, v{vT0}, v{vT1}')
    a(f'v_mov_b32 v{vT1}, v{vT0}')
    vmf(1)
    a(f'v_permlane32_swap_b32 v{vT0}, v{vT1}')
    a(f'v_max_f32 v{vT0}, v{vT0}, v{vT1}')
    a(f'v_mul_f32 v{vT0}, s{sC}, v{vT0}')
    sc_regs = [T0 + k for k in range(8)] + [TM, TM + 1]
    if fresh2:
        a(f's_add_u32 s{sT2}, s{sStep}, 2')
        a(f's_min_u32 s{sT2}, s{sT2}, {NSEG}')
        a('s_mov_b64 exec, 0xfff')
        a(f'v_cmp_gt_u32 vcc, s{sT2}, v{v9}')
        a('s_mov_b64 exec, -1')
    a(f'v_fma_f32 v{TM}, v{TM}, s{sC}, -v{vT0}')
    a(f'v_fma_f32 v{TM + 1}, v{TM + 1}, s{sC}, -v{vT0}')
    for k in range(4):
        a(f'v_pk_fma_f32 {vr(T0 + 2 * k, 2)}, {vr(T0 + 2 * k, 2)}, {sr(sC, 2)}, {vr(vT0, 2)} op_sel_hi:[1,1,0] neg_lo:[0,0,1] neg_hi:[0,0,1]')
    kpos = opt.get('kpos', (0, 2))
    for ir, r in enumerate(sc_regs):
        if vi[0] < 16:
            vmf(1)
        if klate == 'sm' and ir in kpos:
            a(kkf[kpos.index(ir)])
        if wwhen == 'ex' and ir == 1:
            a(warm_ld)
        a(f'v_exp_f32 v{r}, v{r}')
    assert vi[0] == 16
    vx_ = [f'v_pk_add_f32 {vr(VACC + 4 * t, 2)}, {vr(VACC + 4 * t, 2)}, {vr(VACC + 4 * t + 2, 2)}' for t in range(2)]
    vx_ += [f'v_cvt_pk_bf16_f32 v{VACC + t}, v{VACC + 4 * t}, v{VACC + 4 * t + 1}' for t in range(2)]
    vx_ += [f'ds_write_b64 v{vL16}, {vr(VACC, 2)} offset:{L_VM + (w >> 1) * 1024 + (w & 1) * 8}']
    a(vx_[0])
    a(f'v_pk_add_f32 {vr(vT0, 2)}, {vr(T0, 2)}, {vr(T0 + 2, 2)}')
    a(f'v_pk_add_f32 {vr(TM + 2, 2)}, {vr(T1, 2)}, {vr(T1 + 2, 2)}')
    a(f'v_pk_add_f32 {vr(vT0, 2)}, {vr(vT0, 2)}, {vr(TM, 2)}')
    a(f'v_pk_add_f32 {vr(vT0, 2)}, {vr(vT0, 2)}, {vr(TM + 2, 2)}')
    a(vx_[1])
    a(f'v_add_f32 v{TM + 2}, v{vT0}, v{vT1}')
    a(f'v_add_f32 v{vT0}, v{vT0}, v{vT1}')
    a(vx_[2])
    a(vx_[3])
    a(f'v_permlane16_swap_b32 v{vT0}, v{TM + 2}')
    a(f'v_add_f32 v{vT1}, v{vT0}, v{TM + 2}')
    a(f'v_add_f32 v{vT0}, v{vT0}, v{TM + 2}')
    a(vx_[4])
    if kpv and w == 0:
        a(f's_add_u32 s{sT}, s{sStep}, 2')
        a(f's_min_u32 s{sT}, s{sT}, {NSEG}')
        a('s_mov_b64 exec, 0xfff')
        a(f'v_cmp_gt_u32 vcc, s{sT}, v{v9}')
        a('s_mov_b64 exec, -1')
    else:
        a(f's_mov_b64 vcc, {sr(sEM, 2)}')
    a(f'v_permlane32_swap_b32 v{vT0}, v{vT1}')
    a(f'v_add_f32 v{vT0}, v{vT0}, v{vT1}')
    a(f'v_rcp_f32 v{vT0}, v{vT0}')
    a(f's_mov_b32 m0, {L_VX + 2048 * w}')
    for k in range(5):
        r = sc_regs[2 * k]
        a(f'v_pk_mul_f32 {vr(r, 2)}, {vr(r, 2)}, {vr(vT0, 2)} op_sel_hi:[1,0]')
    for k in range(4):
        a(f'v_cvt_pk_bf16_f32 v{PX + k}, v{T0 + 2 * k}, v{T0 + 2 * k + 1}')
    a(f'v_cvt_pk_bf16_f32 v{PM}, v{TM}, v{TM + 1}')
    a(f'v_cvt_pk_bf16_f32 v{PM + 3}, v{TM}, v{TM + 1}')
    vsetup = [f's_mov_b32 m0, {L_VX + 2048 * w}', f's_add_u32 s{sT2}, s{sQKVn}, {8192 + 2048 * w}']
    b3chk = []
    if kpv:
        vsetup = [f's_mov_b32 m0, {L_KX + 4096 * w}', f's_add_u32 s{sT2}, s{sQKVn}, {4096 * w}']
        if w == 0:
            b3chk = [f's_cbranch_vccnz {FSL}', FRET + ':', f's_mov_b64 vcc, {sr(sEM, 2)}', f's_cmp_eq_u32 s{sStep}, {NSEG - 1}']
    stamp()
    VM_ = S_ + 56
    OA = [Q_ + 4 * U for U in range(4)] + [VX_ + 4 * U for U in range(4)]
    WA = [A_ + 4 * t for t in range(8)]
    AP = [Q_ + 8, Q_ + 12]
    s3 = [l for key in S3 for l in stage_reads(('o',) + key)]

    def pvx(U):
        return f'v_mfma_f32_16x16x32_bf16 {vr(OA[U], 4)}, {vr(VX_ + 4 * U, 4)}, {vr(PX, 4)}, 0'

    def pvm(U):
        return f'v_mfma_f32_16x16x16_bf16 {vr(OA[U], 4)}, {vr(VM_ + 2 * (U >> 1), 2)}, {vr(PM + 2 * (U & 1), 2)}, {vr(OA[U], 4)}'

    def dcvt(U):
        return [f'v_cvt_pk_bf16_f32 v{DD[U] + d}, v{OA[U] + 2 * d}, v{OA[U] + 2 * d + 1}' for d in range(2)]

    def apx(U):
        return f'v_cndmask_b32_dpp v{AP[U >> 2] + (U & 3)}, v{DD[U] + 1}, v{DD[U]}, vcc quad_perm:[0,1,0,1] row_mask:0xf bank_mask:0xf'

    def zmov(r):
        return [f'v_mov_b64 {vr(r, 2)}, 0', f'v_mov_b64 {vr(r + 2, 2)}, 0']
    kd = [f'buffer_load_dwordx4 v{vL16}, {WS}, s{sT2} offen offset:{1024 * p} sc1 lds' for p in range(4)]
    vmr = [f'ds_read_b128 {vr(VM_ + 4 * hh, 4)}, v{vL16} offset:{L_VM + 1024 * hh}' for hh in range(2)]
    zz = [l for t in range(8) for l in zmov(WA[t])]
    z4 = opt.get('z4', 0)
    pv = [(pvx(0), (zz[12:14] if z4 else []) + ['s_waitcnt lgkmcnt(0)', 's_barrier'] + vmr),
          (pvx(1), [vsetup[1], f's_cmp_eq_u32 s{sStep}, {NSEG - 1}'] + zz[0:2]),
          (pvx(2), zz[2:4]),
          (pvx(3), zz[4:6]),
          (pvx(4), zz[6:8]),
          (pvm(0), zz[8:10]),
          (pvm(1), zz[10:12] + (vsetup[:1] if vlate else [])),
          (pvm(2), dcvt(0)),
          (pvm(3), dcvt(1)),
          (pvx(5), dcvt(2)),
          (pvm(4), dcvt(3)),
          (pvx(6), [apx(0), apx(1)]),
          (pvm(5), [apx(2), apx(3)]),
          (pvx(7), dcvt(4)),
          (pvm(6), dcvt(5)),
          (pvm(7), [f's_cbranch_scc1 {LAST}', apx(4), apx(5)])]
    for k, (m, fl) in enumerate(pv):
        a(m)
        if wwhen == 'pv' and k == 1:
            a(warm_ld)
        if w == 0 and k == opt.get('fpos', -5) + 1:
            a(flag_ld)
        if klate == 'pv':
            if k == 0:
                a(kkf[0])
            if k == 2 + (w >> 1):
                a(kkf[1])
            if k == 5:
                a(vsetup[0])
        if kpv:
            if k >= 1 and (k - 1) % 4 == w and (k - 1) // 4 < 3:
                a(kd[(k - 1) // 4])
            if k == 12 + w:
                a(kd[3])
        else:
            vp = opt.get('vpos', (7, 11))
            if not vlate and k == vp[0] + w:
                a(kd[0])
            if not vlate and k == vp[1] + w:
                a(kd[1])
        for l in fl:
            a(l)
        fstamp(f'pv{k}')
    PD = [ACC + 8, ACC + 12]
    d6, d7 = dcvt(6), dcvt(7)
    za = [[s3[0], s3[1], f's_and_b32 s{sT}, s{sStep}, 1', d6[0]],
          [s3[2], f's_lshl_b32 s{sT}, s{sT}, 18', d6[1], d7[0]],
          [s3[3], f's_add_u32 s{sP}, s{sPb}, s{sT}', d7[1]],
          [apx(6), apx(7), f's_add_u32 s{sPr}, s{sP}, {4 * 8192}', f's_bfe_u32 s{sTag}, s{sStep}, 0x10001']]
    for t in range(4):
        a(smf(WA[t], AP[0], bop(('o', t, 0))))
        for l in za[t]:
            a(l)
    fstamp('z0a')
    for t in range(4):
        a(smf(WA[t], AP[1], bop(('o', t, 1))))
        a(s3[4 + t])
        if t < 2:
            if not z4:
                a(zz[12 + t])
            a(zz[14 + t])
        else:
            a(f'v_add_f32 v{WA[0] + t - 2}, v{WA[0] + t - 2}, v{WA[0] + t}')
    fstamp('z1a')
    ep = []
    for t in (1, 2, 3):
        ep += [f'v_add_f32 v{WA[t] + x}, v{WA[t] + x}, v{WA[t] + 2 + x}' for x in range(2)]
    ep += [f'v_cvt_pk_bf16_f32 v{PD[0] + 2 * x + j}, v{WA[2 * j] + x}, v{WA[2 * j + 1] + x}' for x in range(2) for j in range(2)]
    ep += [f'v_and_or_b32 v{PD[0]}, v{PD[0]}, -2, s{sTag}']
    swp = w & XW
    st0 = f'buffer_store_dwordx4 {vr(PD[0], 4)}, v{vPst}, {WS}, s{sPr if swp else sP} offen{sc}'
    seq = [(t, 0) for t in range(4, 8)] + [(t, 1) for t in range(4, 8)]
    for k, (t, z) in enumerate(seq):
        a(smf(WA[t], AP[z], bop(('o', t, z))))
        if k < 5:
            for _ in range(2):
                a(ep.pop(0))
        elif k == 5:
            a(ep.pop(0))
        elif k == 6:
            a(st0)
            a(f'v_add_f32 v{WA[4]}, v{WA[4]}, v{WA[4] + 2}')
        elif k == 7:
            a(f'v_add_f32 v{WA[4] + 1}, v{WA[4] + 1}, v{WA[4] + 3}')
    assert not ep
    fstamp('z1b')
    for x in range(2):
        a(f'v_add_f32 v{WA[5] + x}, v{WA[5] + x}, v{WA[5] + 2 + x}')
    a(f'v_cvt_pk_bf16_f32 v{PD[1]}, v{WA[4]}, v{WA[5]}')
    for x in range(2):
        a(f'v_add_f32 v{WA[6] + x}, v{WA[6] + x}, v{WA[6] + 2 + x}')
    a(f'v_cvt_pk_bf16_f32 v{PD[1] + 2}, v{WA[4] + 1}, v{WA[5] + 1}')
    a(f'v_and_or_b32 v{PD[1]}, v{PD[1]}, -2, s{sTag}')
    a(f'v_pk_add_f32 {vr(WA[7], 2)}, {vr(WA[7], 2)}, {vr(WA[7] + 2, 2)}')
    for x in range(2):
        a(f'v_cvt_pk_bf16_f32 v{PD[1] + 2 * x + 1}, v{WA[6] + x}, v{WA[7] + x}')
    a(f'buffer_store_dwordx4 {vr(PD[1], 4)}, v{vPst}, {WS}, s{sP if swp else sPr} offen{sc}')
    stamp()
    R_, SELR, RACC, SEN, vRl, vMs = A_ + 8, X_, A_ + 16, A_ + 20, A_ + 22, A_ + 23
    if vlate:
        a(kd[0])
        a(kd[1])
    a(f's_lshl_b32 s{sT}, s{sH}, 13')
    a(f's_add_u32 s{sP}, s{sP}, s{sT}')
    a(f's_add_u32 s{sP}, s{sP}, {2048 * w}')
    pre = [f'v_and_b32 v{vT0}, 16, v{vL16}', f'v_mov_b32 v{vT1}, 0x3f80', f'v_lshlrev_b32 v{vT0}, v{vT0}, v{vT1}']
    pre += [f'v_cndmask_b32 v{SELR + k}, 0, v{vT0}, {sr(sSEL + 2 * k, 2)}' for k in range(4)]
    pre += [f'v_mov_b64 {vr(SEN, 2)}, -1']
    pre += [f'v_bfe_u32 v{vT0}, v{vL16}, 4, 1', f'v_lshrrev_b32 v{vT1}, 8, v{vL16}', f'v_lshl_add_u32 v{vT0}, v{vT1}, 1, v{vT0}',
            f'v_and_b32 v{vT1}, 32, v{vL16}', f'v_lshl_add_u32 v{vMs}, v{vT0}, 3, v{vT1}']
    pre += [f's_and_b32 s{sT}, s{sStep}, 3', f's_lshl_b32 s{sT}, s{sT}, 13', f's_add_u32 s{sM}, s{sMb}, s{sT}',
            f's_add_u32 s{sMw}, s{sM}, {2048 * w}', f's_xor_b32 s{sT}, s{sT}, {2 << 13}', f's_add_u32 s{sMr}, s{sMb}, s{sT}',
            f's_lshl_b32 s{sT}, s{sH}, 8', f's_add_u32 s{sM}, s{sM}, s{sT}', f's_add_u32 s{sMr}, s{sMr}, s{sT}',
            f's_mov_b32 s{sOXp}, s{sOX}', f's_mov_b32 m0, {L_MEM + 2048 * w if kreal or kpv else L_KX + 2048 * w}']
    pre += [f's_mov_b32 s{sSpin}, 0']
    pre += ox_pack()
    pre += [l for key in S1A for l in stage_reads(('qk',) + key)]
    qrd = [f'ds_read_b128 {vr(QA + 4 * p, 4)}, v{vL16} offset:{L_MEM + 2048 * w + 1024 * p}' for p in range(2)]
    pre += [l for t in range(4) for l in zmov(ACC + 4 * t)]
    npre = opt.get('npre', 52)
    rl = [f'buffer_load_dwordx4 {vr(R_ + 4 * u, 4)}, v{vL16}, {WS}, s{sP} offen offset:{1024 * u} sc1' for u in range(2)]
    h1lds = opt.get('h1lds', 0)
    if h1lds:
        rl = [f'buffer_load_dwordx4 v{vL16}, {WS}, s{sP} offen offset:{1024 * u} sc1 lds' for u in range(2)]
    for k, l in enumerate(pre[:npre]):
        if opt.get('dummy1') == k:
            for x in rl:
                a(x.replace(vr(R_, 4), vr(A_ + 24, 4)).replace(vr(R_ + 4, 4), vr(A_ + 28, 4)))
        a(l)
    for _ in range(opt.get('d1', 0)):
        a('s_nop 15')
    if opt.get('a1') is not None:
        a(f's_waitcnt vmcnt({opt["a1"]})')
    for l in rl:
        a(l)
    for l in pre[npre:]:
        a(l)
    RT, ROK = a.newlabel('RT'), a.newlabel('ROK')
    if h1lds:
        a('s_waitcnt vmcnt(0)')
    a.label(RT)
    if h1lds:
        for u in range(2):
            a(f'ds_read_b128 {vr(R_ + 4 * u, 4)}, v{vL16} offset:{L_MEM + 2048 * w + 1024 * u}')
    rm_ = [f'v_mfma_f32_16x16x32_bf16 {vr(RACC, 4)}, {vr(SELR, 4)}, {vr(R_, 4)}, 0',
           f'v_mfma_f32_16x16x32_bf16 {vr(RACC, 4)}, {vr(SELR, 4)}, {vr(R_ + 4, 4)}, {vr(RACC, 4)}']
    rc_ = [f'v_xor_b32 v{vT0}, s{sTag}, v{R_}', f'v_bitop3_b32 v{vT0}, v{vT0}, v{R_ + 4}, s{sTag} bitop3:0xf6',
           f'v_and_b32 v{vT0}, 1, v{vT0}', f'v_cmp_ne_u32 vcc, 0, v{vT0}']
    if opt.get('r3', 2) == 1:
        seq_ = rc_ + rm_
    elif opt.get('r3', 2) == 2:
        seq_ = [rm_[0]] + rc_ + [rm_[1]]
    else:
        seq_ = [rm_[0], rc_[0], rm_[1]] + rc_[1:]
    for l in seq_:
        a(l)
    if opt.get('pipe1'):
        GOOD, PA, PB, OKB, OKA = [a.newlabel(x) for x in ('RG', 'RPA', 'RPB', 'ROB', 'ROA')]
        B_ = A_ + 24
        rb = [x.replace(vr(R_, 4), vr(B_, 4)).replace(vr(R_ + 4, 4), vr(B_ + 4, 4)) for x in rl]
        cb = [x.replace(f'v{R_ + 4},', f'v{B_ + 4},').replace(f'v{R_}', f'v{B_}') for x in rc_]
        a(f's_cbranch_vccz {GOOD}')
        a('s_mov_b64 exec, vcc')
        for l in rb:
            a(l)
        a(f's_sleep {opt["pipe1"]}')
        a.label(PA)
        for l in rl:
            a(l)
        spin_guard(a, sSpin, fail)
        a('s_waitcnt vmcnt(2)')
        for l in cb:
            a(l)
        a(f's_cbranch_vccz {OKB}')
        for l in rb:
            a(l)
        a('s_waitcnt vmcnt(2)')
        for l in rc_:
            a(l)
        a(f's_cbranch_vccnz {PA}')
        a(f's_branch {OKA}')
        a.label(OKB)
        a('s_not_b64 exec, exec')
        for k in range(4):
            a(f'!v_mov_b64 {vr(B_ + 2 * k, 2)}, {vr(R_ + 2 * k, 2)}')
        a('s_mov_b64 exec, -1')
        for l in rm_:
            a(l.replace(vr(R_, 4), vr(B_, 4)).replace(vr(R_ + 4, 4), vr(B_ + 4, 4)))
        a('s_nop 2')
        a(f's_branch {GOOD}')
        a.label(OKA)
        a('s_mov_b64 exec, -1')
        for l in rm_:
            a(l)
        a('s_nop 3')
        a.label(GOOD)
    elif opt.get('r4', 1):
        GOOD = a.newlabel('RG')
        a(f's_cbranch_vccz {GOOD}')
        a('s_mov_b64 exec, vcc')
        for l in rl:
            a(l)
        a('s_mov_b64 exec, -1')
        spin_guard(a, sSpin, fail)
        a(f's_branch {RT}')
        a.label(GOOD)
    elif not opt.get('r2', 0):
        a(f's_cbranch_vccnz {ROK}')
    RT1 = RT
    for sh in (4, 8):
        for k in range(4):
            a(f'v_add_f32_dpp v{RACC + k}, v{RACC + k}, v{RACC + k} row_ror:{sh} row_mask:0xf bank_mask:0xf')
    a(f'v_cvt_pk_bf16_f32 v{vT0}, v{RACC}, v{RACC + 1}')
    a(f'v_cvt_pk_bf16_f32 v{vT1}, v{RACC + 2}, v{RACC + 3}')
    a(f'v_min_u32 v{vT0}, -2, v{vT0}')
    a('s_mov_b64 exec, 0xf000f')
    if opt.get('r2', 0):
        a(f's_cbranch_vccnz {ROK}')
    a(f'buffer_store_dwordx2 {vr(vT0, 2)}, v{vMs}, {WS}, s{sM} offen offset:{64 * w}{sc}')
    stamp()
    a(f'buffer_store_dwordx2 {vr(SEN, 2)}, v{vMs}, {WS}, s{sMr} offen offset:{64 * w}{sc}')
    a('s_mov_b64 exec, -1')
    a(f's_add_u32 s{sStep}, s{sStep}, 1')
    a(f's_mov_b32 s{sQKV}, s{sQKVn}')
    a(f's_add_u32 s{sOX}, s{sOX}, 8192')
    for l in sal:
        a(l)
    qafter = opt.get('qafter', 0)
    if qlds:
        for l in qrd:
            a(l)
    elif not qearly and not qafter:
        for l in qld:
            a(l)
    if not kreal and not kpv:
        a(f's_add_u32 s{sT}, s{sQKV}, {2048 * w}')
        for p in range(2):
            a(f'buffer_load_dwordx4 v{vL16}, {WS}, s{sT} offen offset:{1024 * p} sc1 lds')
        a(f's_mov_b32 m0, {L_MEM + 2048 * w}')
    if w == 0 and fhop:
        a(f's_add_u32 s{sT}, s{sStep}, 2')
        a(f's_min_u32 s{sT}, s{sT}, {NSEG}')
        a('s_mov_b64 exec, 0xfff')
        a(f'v_cmp_gt_u32 vcc, s{sT}, v{v9}')
        a('s_mov_b64 exec, -1')
        a(f's_cbranch_vccnz {FSL}')
        a.label(FRET)
    for _ in range(opt.get('d2', 0)):
        a('s_nop 7')
    if opt.get('dummy2'):
        for k in range(2):
            a(f'buffer_load_dwordx4 v{vL16}, {WS}, s{sMw} offen offset:{1024 * k} sc1 lds')
    if opt.get('a2', 0) is not None:
        a(f's_waitcnt vmcnt({opt.get("a2", 0)})')
    md = [f'buffer_load_dwordx4 v{vL16}, {WS}, s{sMw} offen offset:{1024 * k} sc1 lds' for k in range(2)]
    if mreg:
        md = [f'buffer_load_dwordx4 {vr(A_ + 4 * k, 4)}, v{vL16}, {WS}, s{sMw} offen offset:{1024 * k} sc1' for k in range(2)]
    for l in md:
        a(l)
    if qafter:
        for l in qld:
            a(l)
    H2, RT, MRE = a.newlabel('H2'), a.newlabel('MT'), a.newlabel('MRE')
    a(f's_branch {H2}')
    i_h2 = len(a0.items)
    a.label(H2)
    if not mreg:
        a(f's_waitcnt vmcnt({2 if qafter else 0})')
    a.label(RT)
    if not mreg:
        a(memrd(0))
        a(memrd(1))
    a(f'v_max_u32 v{vT0}, v{A_}, v{A_ + 2}')
    a(f'v_max3_u32 v{vT0}, v{vT0}, v{A_ + 4}, v{A_ + 6}')
    a(f'v_cmp_eq_u32 vcc, -1, v{vT0}')
    if mreg:
        for k in range(2):
            a(f'ds_write_b128 v{vL16}, {vr(A_ + 4 * k, 4)} offset:{L_MEM + 2048 * w + 1024 * k}')
    a(f's_cbranch_vccnz {MRE}')
    if prof:
        stamp()
        a('s_waitcnt lgkmcnt(0)')
        a(f's_lshl_b32 s{sT}, s{sL}, 5')
        a(f's_add_u32 s{sT}, s{sT}, s{sH}')
        a(f's_lshl_b32 s{sT}, s{sT}, 2')
        a(f's_add_u32 s{sT}, s{sT}, {w}')
        a(f's_lshl_b32 s{sT}, s{sT}, 6')
        a(f's_add_u32 s{sT}, s{sT}, s{sStep}')
        a(f's_lshl_b32 s{sT}, s{sT}, 6')
        a(f's_add_u32 s{sT}, s{sT}, {PROF_OFF}')
        for k in range(10):
            a(f'v_writelane_b32 v{vT0}, s{sPROF + 2 * k}, {k}')
        a(f'v_writelane_b32 v{vT0}, s{sSpin}, 15')
        a(f'v_lshrrev_b32 v{vT1}, 2, v{vL16}')
        a('s_mov_b64 exec, 0xffff')
        a(f'buffer_store_dword v{vT0}, v{vT1}, {WS}, s{sT} offen')
        a('s_mov_b64 exec, -1')
    tail = a0.items[i_h2:]
    del a0.items[i_h2:]
    a0.items[i_loop:i_loop] = tail
    a.label(ROK)
    a('s_mov_b64 exec, vcc')
    for l in rl:
        a(l)
    a('s_mov_b64 exec, -1')
    spin_guard(a, sSpin, fail)
    a(f's_branch {RT1}')
    a.label(MRE)
    a('s_mov_b64 exec, vcc')
    for l in md:
        a(l)
    a('s_mov_b64 exec, -1')
    spin_guard(a, sSpin, fail)
    if opt.get('mwait'):
        a('s_waitcnt vmcnt(0)')
    a(f's_branch {RT}')
    if w == 0 or fresh or fresh2:
        a.label(FSL)
        flag_wait(a, sT2 if fresh or fresh2 else sT, fail)
        a(f's_branch {FRET}')
    a.label(LAST)
    for U in range(6, 8):
        for l in dcvt(U):
            a(l)
    for l in ox_pack():
        a(l)
    for u in range(2):
        a(ox_store(u, sOX))
    a(f's_branch {done}')
```
